```python
import torch

def _softmax(x, axis=-1):
    return torch.softmax(x, dim=axis)
def _gelu(x):
    return torch.nn.functional.gelu(x, approximate="tanh")
def _silu(x):
    return torch.nn.functional.silu(x)
def _sigmoid(x):
    return torch.sigmoid(x)
def _layernorm(x, axis=-1, eps=1e-5):
    m = x.mean(dim=axis, keepdim=True)
    v = x.var(dim=axis, keepdim=True, unbiased=False)
    return (x - m) / torch.sqrt(v + eps)
def _scatter_add(tgt, idx, src, axis=0):
    return tgt.clone().index_add_(axis, idx, src)
def _segment_sum(src, seg, n):
    out = torch.zeros((n,) + src.shape[1:], dtype=src.dtype)
    return out.index_add_(0, seg, src)
def _pad(x, pw):
    flat = tuple(v for pair in reversed(pw) for v in pair)
    return torch.nn.functional.pad(x, flat)

kernel_name = 'interleave_layers__linear_attn_block__glu_gated_swiglu__prompt'

def setup_inputs():

    _w = (lambda a: (lambda t: t.to(torch.bfloat16) if t.is_floating_point() else t)(torch.as_tensor(a)))
    def _A_setup():
        B, S, D = 1, 2048, 640
        return {
            "x": _w((lambda *s: torch.randn(*s, dtype=torch.bfloat16) * 0.05)(B, S, D)),
            "wqkv": _w((lambda *s: torch.randn(*s, dtype=torch.bfloat16) * 0.05)(D, 3 * D)),
            "wo": _w((lambda *s: torch.randn(*s, dtype=torch.bfloat16) * 0.05)(D, D)),
        }
    _A_in = _A_setup()

    def _B_setup():
        B, S, D, F = 1, 2048, 640, 1536
        return {
            "x": _w((lambda *s: torch.randn(*s, dtype=torch.bfloat16) * 0.05)(B, S, D)),
            "w1": _w((lambda *s: torch.randn(*s, dtype=torch.bfloat16) * 0.4)(D, F) * (2.0 / D) ** 0.5),
            "w3": _w((lambda *s: torch.randn(*s, dtype=torch.bfloat16) * 0.4)(D, F) * (2.0 / D) ** 0.5),
            "w2": _w((lambda *s: torch.randn(*s, dtype=torch.bfloat16) * 0.4)(F, D) * (2.0 / F) ** 0.5),
        }
    _B_in = _B_setup()

    return {
        "A_x": _A_in["x"],
        "A_wqkv": _A_in["wqkv"],
        "A_wo": _A_in["wo"],
        "B_x": _B_in["x"],
        "B_w1": _B_in["w1"],
        "B_w3": _B_in["w3"],
        "B_w2": _B_in["w2"],
    }

def reference(A_x, A_wqkv, A_wo, B_x, B_w1, B_w3, B_w2):
    def _A_ref(x, wqkv, wo):
        B, S, D = x.shape
        H = 32; Dh = D // H
        qkv = (lambda x, *d: x.permute(*d))((x @ wqkv).reshape(B, S, 3, H, Dh), 2, 0, 3, 1, 4)
        q, k, v = qkv[0], qkv[1], qkv[2]
        phi = lambda t: torch.where(t > 0, t + 1, torch.exp(t)) + 1e-6
        pq, pk = phi(q), phi(k)
        kv = torch.einsum("bhsd,bhse->bhde", pk, v)
        z = torch.einsum("bhsd->bhd", pk)
        num = torch.einsum("bhqd,bhde->bhqe", pq, kv)
        den = torch.einsum("bhqd,bhd->bhq", pq, z)[..., None] + 1e-6
        o = num / den
        return (lambda x, *d: x.permute(*d))(o, 0, 2, 1, 3).reshape(B, S, D) @ wo

    def _B_ref(x, w1, w3, w2):
        gate = torch.einsum("bsd,df->bsf", x, w1)
        up = torch.einsum("bsd,df->bsf", x, w3)
        h = _silu(gate) * up
        out = torch.einsum("bsf,fd->bsd", h, w2)
        return out

    x = A_x
    x = x + _A_ref(_layernorm(x, axis=-1), A_wqkv, A_wo)
    x = x + _B_ref(_layernorm(x, axis=-1), B_w1, B_w3, B_w2)
    x = x + _A_ref(_layernorm(x, axis=-1), A_wqkv, A_wo)
    x = x + _B_ref(_layernorm(x, axis=-1), B_w1, B_w3, B_w2)
    return x
```

```python
import re

TRANS = ("v_exp_f32", "v_log_f32", "v_rcp_f32", "v_rsq_f32", "v_sqrt_f32", "v_sin_f32", "v_cos_f32")


def _regs(tok):
    tok = tok.strip()
    tok = tok.lstrip("-")
    if tok.startswith("abs(") or tok.startswith("|"):
        tok = tok.replace("abs(", "").replace(")", "").replace("|", "")
    m = re.fullmatch(r"([vas])(\d+)", tok)
    if m:
        return {(m.group(1), int(m.group(2)))}
    m = re.fullmatch(r"([vas])\[(\d+):(\d+)\]", tok)
    if m:
        return {(m.group(1), n) for n in range(int(m.group(2)), int(m.group(3)) + 1)}
    if tok == "vcc":
        return {("s", 106), ("s", 107)}
    if tok == "vcc_lo":
        return {("s", 106)}
    if tok == "vcc_hi":
        return {("s", 107)}
    if tok == "exec":
        return {("s", 126), ("s", 127)}
    if tok == "exec_lo":
        return {("s", 126)}
    if tok == "exec_hi":
        return {("s", 127)}
    if tok == "m0":
        return {("s", 124)}
    return set()


class Ins:
    __slots__ = ("text", "op", "kind", "wr", "rd", "passes", "srcC", "srcAB", "states", "wide_store", "lds_dma", "sdata")

    def __init__(self, text):
        self.text = text
        t = text.split(";")[0].strip()
        parts = t.split(None, 1)
        self.op = parts[0] if parts else ""
        rest = parts[1] if len(parts) > 1 else ""
        ops = [o.strip() for o in rest.split(",")] if rest else []
        if ops:
            last = ops[-1].split()
            mods = last[1:]
            ops[-1] = last[0] if last else ""
        else:
            mods = []
        ops2 = []
        for o in ops:
            ops2.append(o.split()[0] if o else o)
        ops = ops2
        op = self.op
        self.kind = "other"
        self.wr = set()
        self.rd = set()
        self.passes = 0
        self.srcC = set()
        self.srcAB = set()
        self.states = 1
        self.wide_store = False
        self.lds_dma = False
        self.sdata = set()
        R = [_regs(o) for o in ops]
        if op.endswith(":") or op.startswith("."):
            self.kind = "label"
            self.states = 0
        elif op == "s_nop":
            self.kind = "nop"
            self.states = int(ops[0], 0) + 1
        elif op.startswith("v_mfma"):
            self.kind = "mfma"
            self.passes = 8 if "32x32" in op else 4
            self.wr = R[0]
            self.srcAB = R[1] | R[2]
            self.srcC = R[3]
            self.rd = self.srcAB | self.srcC
        elif op.startswith("v_"):
            self.kind = "trans" if op.replace("_e32", "").replace("_e64", "") in TRANS else "valu"
            if op.startswith("v_permlane") and "swap" in op:
                self.wr = R[0] | R[1]
                self.rd = R[0] | R[1]
            elif op.startswith(("v_add_co", "v_sub_co", "v_addc_co", "v_subb_co")):
                self.wr = R[0] | R[1]
                self.rd = set().union(*R[2:])
            else:
                self.wr = R[0]
                self.rd = set().union(*R[1:]) if len(R) > 1 else set()
                if op.startswith(("v_fmac", "v_dot2c", "v_pk_fmac")):
                    self.rd |= R[0]
        elif op.startswith("ds_"):
            self.kind = "ds"
            if op.startswith("ds_read"):
                self.wr = R[0]
                self.rd = set().union(*R[1:])
            else:
                self.rd = set().union(*R)
        elif op.startswith(("buffer_", "global_")):
            self.kind = "vmem"
            if " lds" in t or "load_lds" in op:
                self.lds_dma = True
                self.rd = set().union(*R)
            elif "load" in op:
                self.wr = R[0]
                self.rd = set().union(*R[1:])
            else:
                self.rd = set().union(*R)
                if op.endswith(("x3", "x4")):
                    self.wide_store = True
                    self.sdata = R[0] if op.startswith("buffer_") else R[1]
                if "atomic" in op and "sc0" in t:
                    self.wr = R[0]
        elif op.startswith("s_"):
            self.kind = "salu"
            if op.startswith(("s_cmp", "s_cbranch", "s_branch", "s_barrier", "s_waitcnt", "s_endpgm", "s_sleep", "s_setprio")):
                self.rd = set().union(*R) if R else set()
            else:
                self.wr = R[0] if R else set()
                self.rd = set().union(*R[1:]) if len(R) > 1 else set()
                if "saveexec" in op:
                    self.wr = self.wr | _regs("exec")


def isv(s):
    return {r for r in s if r[0] in ("v", "a")}


def iss(s):
    return {r for r in s if r[0] == "s"}


def need_states(p, c):
    n = 0
    pv = p.kind in ("valu", "trans")
    cv = c.kind in ("valu", "trans")
    if pv:
        wv = isv(p.wr)
        ws = iss(p.wr)
        if c.kind == "mfma" and wv & c.rd:
            n = max(n, 2)
        if cv and c.op.startswith("v_permlane") and wv & c.rd:
            n = max(n, 2)
        if cv and c.op.startswith(("v_readfirstlane", "v_readlane")) and wv & c.rd:
            n = max(n, 1)
        if cv and "dpp" in c.text and wv & c.rd:
            n = max(n, 2)
        if p.kind == "trans" and cv and wv & c.rd:
            n = max(n, 1)
        if p.kind == "trans" and c.kind in ("ds", "vmem") and wv & c.rd:
            n = max(n, 1)
        if ws:
            if cv and (ws & c.rd or (c.op.startswith("v_cndmask") and ("s", 106) in ws)):
                n = max(n, 2)
            if c.kind == "vmem" and ws & c.rd:
                n = max(n, 5)
            if c.kind == "salu" and ws & c.rd:
                n = max(n, 2)
            if c.op.startswith("s_cbranch_vcc") and ("s", 106) in ws:
                n = max(n, 2)
        if p.op.startswith("v_dot"):
            if (cv or c.kind in ("ds", "vmem", "mfma")) and (wv & (c.rd | c.wr)):
                same = c.op == p.op
                n = max(n, 0 if same else 3)
    if p.kind == "mfma":
        d = p.wr
        big = {4: 8, 8: 12}[p.passes]
        if c.kind == "mfma":
            if d & c.srcAB:
                n = max(n, big)
            if d & c.srcC:
                if not (d == c.srcC and p.passes == c.passes):
                    n = max(n, {4: 6, 8: 10}[p.passes])
            elif d & c.wr:
                n = max(n, big)
        elif cv or c.kind in ("ds", "vmem"):
            if d & (c.rd | c.wr):
                n = max(n, big)
        if cv and p.srcC & c.wr:
            n = max(n, {4: 3, 8: 7}[p.passes])
    if p.kind == "salu" and ("s", 124) in p.wr and c.lds_dma:
        n = max(n, 1)
    if p.wide_store and (cv or c.kind in ("ds", "vmem", "mfma")) and p.sdata & c.wr:
        n = max(n, 2)
    return n


class Asm:
    def __init__(self):
        self.out = []
        self.vmq = []
        self.lgq = []
        self.nlabel = 0
        self.nops_added = 0

    def e(self, text):
        for line in text.split("\n"):
            line = line.strip()
            if not line:
                continue
            if line.startswith(";"):
                i = Ins("s_nop 0")
                i.text = line
                i.kind = "label"
                i.states = 0
                self.out.append(i)
                continue
            ins = Ins(line)
            if ins.kind not in ("label", "nop"):
                need = 0
                dist = 0
                for p in reversed(self.out):
                    if dist > 20:
                        break
                    k = need_states(p, ins)
                    if k > dist:
                        need = max(need, k - dist)
                    dist += p.states
                while need > 0:
                    n = min(need, 16)
                    self.out.append(Ins(f"s_nop {n-1}"))
                    self.nops_added += 1
                    need -= n
            self.out.append(ins)

    def label(self, base="L"):
        self.nlabel += 1
        return f"{base}_{self.nlabel}"

    def vm(self, text, tag=None):
        self.e(text)
        self.vmq.append(tag)

    def wait_vm(self, pred):
        if not callable(pred):
            t = pred
            pred = lambda x: x == t
        idx = -1
        for k, tg in enumerate(self.vmq):
            if pred(tg):
                idx = k
        if idx < 0:
            return
        n = len(self.vmq) - 1 - idx
        n = min(n, 63)
        self.e(f"s_waitcnt vmcnt({n})")
        self.vmq = self.vmq[len(self.vmq) - n:] if n > 0 else []

    def wait_vm_all(self):
        self.e("s_waitcnt vmcnt(0)")
        self.vmq = []

    def ds(self, text, tag=None):
        self.e(text)
        self.lgq.append(tag)

    def wait_ds(self, pred):
        if not callable(pred):
            t = pred
            pred = lambda x: x == t
        idx = -1
        for k, tg in enumerate(self.lgq):
            if pred(tg):
                idx = k
        if idx < 0:
            return
        n = len(self.lgq) - 1 - idx
        n = min(n, 15)
        self.e(f"s_waitcnt lgkmcnt({n})")
        self.lgq = self.lgq[len(self.lgq) - n:] if n > 0 else []

    def wait_ds_all(self):
        self.e("s_waitcnt lgkmcnt(0)")
        self.lgq = []

    def text(self):
        o = []
        for i in self.out:
            if i.kind == "label" and not i.text.startswith(";"):
                o.append(i.text)
            else:
                o.append("    " + i.text)
        return "\n".join(o) + "\n"


def f32bits(x):
    import struct
    return struct.unpack("<I", struct.pack("<f", x))[0]


def kd(name, vgpr, sgpr, accum):
    return f""".p2align 6
.amdhsa_kernel {name}
  .amdhsa_next_free_vgpr {vgpr}
  .amdhsa_next_free_sgpr {sgpr}
  .amdhsa_accum_offset {accum}
  .amdhsa_group_segment_fixed_size 0
  .amdhsa_kernarg_size 80
  .amdhsa_user_sgpr_count 2
  .amdhsa_user_sgpr_kernarg_segment_ptr 1
  .amdhsa_system_sgpr_workgroup_id_x 1
.end_amdhsa_kernel
"""
```

```python
from asmcore import *
import layout as L

RING = 156
P1S, SCR, P2S, P3S, P4S, TOT = 0, 164, 192, 292, 540, 780
FIX = RING * 1024
SCRB = (SCR % RING) * 1024
GC_OFF, GC_STR = SCRB, 3360
GB_OFF = GC_OFF + 4 * GC_STR
QT_OFF = GB_OFF + 5120
RS_OFF = FIX
Q1_OFF = FIX + 1024
assert QT_OFF + 4 * 2304 <= SCRB + 28 * 1024
LOG2E = 1.4426950408889634
SPIN = 400000

V_LANE, V_L16, V_T16, V_L16B, V_L16C = 1, 2, 3, 4, 5
V_STL, V_OST, V_HST, V_XS1, V_XS2, V_OUT1, V_OUT2 = 6, 7, 8, 9, 10, 11, 12
V_G0, V_G1, V_GBW, V_GBX, V_GBY = 13, 14, 15, 16, 17
V_QW3, V_QW1, V_QR, V_QR2 = 18, 19, 20, 21
V_C2, V_C3, V_LO = 22, 24, 26
V_RSW, V_RSR, V_STS = 27, 28, 29
V_RES = 32
V_MF = 52
V_ST = 56
V_ACC = 64
V_FIFO = 160
V_TMP = 208
S_W, S_I, S_J, S_LAY, S_LOFF, S_COFF, S_W1K = 3, 14, 15, 16, 17, 18, 19
S_SEG = {P1S: 20, P2S: 21, P3S: 22, P4S: 23}
S_TB32, S_TB16, S_TB32P = 24, 25, 26
S_XA, S_STA, S_OA, S_HA, S_XS, S_STS, S_OS = 27, 28, 29, 30, 31, 32, 33
S_HS = (34, 35, 36)
S_KVS, S_KVR, S_OUT, S_KVC = 38, 39, 40, 41
S_T = 44
S_M210 = 60
S_ONE = 62
S_POLL = 63
SRD_WS, SRD_OUT, SRD_NX = 4, 8, 64
S_DBG = 68
S_A = 70
S_EPS2 = 76
S_ONE2 = 78
S_TS = 80


class Ring:
    def __init__(self, a):
        self.a = a
        self.next = 0
        self.pub = 0
        self.freed = 0
        self.cons = 0

    def seg(self, pos):
        p = pos % TOT
        for s, e in ((P1S, SCR), (P2S, P3S), (P3S, P4S), (P4S, TOT)):
            if s <= p < e:
                return s, p - s
        return None

    def can_dma(self):
        n = self.next
        if n % TOT == SCR:
            n += P2S - SCR
        return n + 4 - RING <= self.freed

    def dma(self):
        a = self.a
        if self.next % TOT == SCR:
            self.next += P2S - SCR
        pos = self.next
        assert pos + 4 - RING <= self.freed, (pos, self.freed)
        s, rel = self.seg(pos)
        srd = SRD_NX if pos >= TOT else SRD_WS
        a.e(f"s_add_u32 m0, s{S_W1K}, {(pos % RING) * 1024}")
        a.e(f"s_add_u32 s{S_T+15}, s{S_SEG[s]}, {rel * 1024}")
        a.vm(f"buffer_load_dwordx4 v{V_T16}, s[{srd}:{srd+3}], s{S_T+15} offen lds", ("dma", pos))
        self.next = pos + 4

    def dma_upto(self, limit, maxn=10 ** 9):
        n = 0
        while n < maxn and self.next < limit and self.can_dma():
            self.dma()
            n += 1
        return n

    def barrier(self, need, free_to=None):
        a = self.a
        assert need <= self.next or (self.next % TOT == SCR and need <= self.next + P2S - SCR), (need, self.next)
        a.wait_vm(lambda t: isinstance(t, tuple) and t[0] == "dma" and t[1] < need)
        a.e("s_barrier")
        out = [t[1] for t in a.vmq if isinstance(t, tuple) and t[0] == "dma"]
        self.pub = min(out) if out else self.next
        self.freed = max(self.freed, self.cons if free_to is None else free_to)

    def read(self, pos, reg):
        assert pos < self.pub, (pos, self.pub)
        addr = (pos % RING) * 1024
        base = (V_L16, V_L16B, V_L16C)[addr >> 16]
        self.a.ds(f"ds_read_b128 v[{reg}:{reg+3}], v{base} offset:{addr & 0xffff}", ("frag", pos))


def run_pass(a, ring, mf, fill, bars, depth):
    n = len(mf)

    def rd(m):
        if m in bars:
            ring.barrier(bars[m])
        ring.read(mf[m][0], V_FIFO + 4 * (m % depth))

    for m in range(min(depth - 1, n)):
        rd(m)
    for m in range(n):
        if m + depth - 1 < n:
            rd(m + depth - 1)
        a.wait_ds(("frag", mf[m][0]))
        ring.cons = mf[m][0] + 1
        mf[m][1](V_FIFO + 4 * (m % depth))
        for f in fill.get(m, []):
            f()


def spread(fill, items, start, per):
    x = float(start)
    for it in items:
        fill.setdefault(int(x), []).append(it)
        x += 1.0 / per
    return int(x) + 1


def lines(a, text):
    return [(lambda t=t: a.e(t)) for t in text.strip().split("\n") if t.strip()]


def cnt_off(a, dst, kind, sidx, nextlayer=False):
    c = (kind * 64 + (L.CNT_PER_LAYER if nextlayer else 0)) * L.CNT_STRIDE
    a.e(f"s_lshl_b32 s{dst}, s{sidx}, 8\ns_add_u32 s{dst}, s{dst}, s{S_COFF}")
    if c:
        a.e(f"s_add_u32 s{dst}, s{dst}, {c}")


def signal(a, kind, sidx, nextlayer=False):
    cnt_off(a, S_T + 13, kind, sidx, nextlayer)
    a.e(f"s_atomic_add s{S_ONE}, s[12:13], s{S_T+13}")


def poll(a, kind, sidx, target=16):
    cnt_off(a, S_T + 12, kind, sidx)
    lp, ok = a.label("Lpoll"), a.label("Lok")
    a.e(f"s_mov_b32 s{S_T+11}, 0")
    a.e(f"{lp}:")
    a.e(f"s_mov_b32 s{S_POLL}, 0")
    a.e(f"s_atomic_add s{S_POLL}, s[12:13], s{S_T+12} glc")
    a.e(f"s_add_u32 s{S_T+11}, s{S_T+11}, 1")
    a.e("s_waitcnt lgkmcnt(0)")
    a.lgq = []
    a.e(f"s_cmp_ge_u32 s{S_POLL}, {target}\ns_cbranch_scc1 {ok}")
    a.e(f"s_cmp_lt_u32 s{S_T+11}, {SPIN}\ns_cbranch_scc1 {lp}")
    a.e(f"{ok}:")


def aload(a, s, sbase_setup):
    if s % 4 == 0:
        sbase_setup(s)
    a.vm(f"buffer_load_dwordx4 a[{4*s}:{4*s+3}], v{V_L16}, s[{SRD_WS}:{SRD_WS+3}], s{S_A} offen offset:{(s%4)*1024} sc1", ("A", s))


def a_setup(a, rel_sgpr, const):
    def f(s):
        if s == 0:
            a.e(f"s_add_u32 s{S_A}, s{S_LOFF}, s{rel_sgpr}\ns_add_u32 s{S_A}, s{S_A}, {const}")
        else:
            a.e(f"s_add_u32 s{S_A}, s{S_A}, 4096")
    return f


def stats_load(a, const):
    a.e(f"s_add_u32 s{S_T}, s{S_LOFF}, s{S_STA}\ns_add_u32 s{S_T}, s{S_T}, {const}")
    for n in range(4):
        a.vm(f"buffer_load_dwordx2 v[{V_ST+2*n}:{V_ST+2*n+1}], v{V_STL}, s[{SRD_WS}:{SRD_WS+3}], s{S_T} offen offset:{n*256} sc1", "st")


def stats_math(a, t):
    S = V_ST
    f = [lambda: a.wait_vm("st")]
    f += lines(a, f"""
v_add_f32 v{t}, v{S}, v{S+2}
v_add_f32 v{t+1}, v{S+4}, v{S+6}
v_add_f32 v{t}, v{t}, v{t+1}
v_mov_b32 v{t+1}, v{t}
v_permlane32_swap_b32 v{t}, v{t+1}
v_add_f32 v{t}, v{t}, v{t+1}
v_mul_f32 v{t}, {f32bits(-0.125)}, v{t}
""")
    for n in range(4):
        f += lines(a, f"""
v_add_f32 v{t+1}, v{S+2*n}, v{t}
v_mul_f32 v{t+1}, v{t+1}, v{t+1}
v_fmac_f32 v{S+2*n+1}, {f32bits(80.0)}, v{t+1}
""")
    f += lines(a, f"""
v_add_f32 v{t+1}, v{S+1}, v{S+3}
v_add_f32 v{t+2}, v{S+5}, v{S+7}
v_add_f32 v{t+1}, v{t+1}, v{t+2}
v_mov_b32 v{t+2}, v{t+1}
v_permlane32_swap_b32 v{t+1}, v{t+2}
v_add_f32 v{t+1}, v{t+1}, v{t+2}
v_mov_b32 v{t+2}, {f32bits(1e-5)}
v_fmac_f32 v{t+2}, {f32bits(1.0/640)}, v{t+1}
v_rsq_f32 v{S}, v{t+2}
v_cvt_pk_bf16_f32 v{t+1}, v{t}, v{t}
v_and_b32 v{t+1}, 0xffff0000, v{t+1}
v_sub_f32 v{t+1}, v{t}, v{t+1}
v_cvt_pk_bf16_f32 v{V_MF}, v{t}, v{t+1}
v_mov_b32 v{V_MF+1}, v{V_MF}
v_mov_b32 v{V_MF+2}, v{V_MF}
v_mov_b32 v{V_MF+3}, v{V_MF}
""")
    return f


def stamp(a, n, cfg):
    if not cfg.get("timing"):
        return
    a.e(f"s_memtime s[{S_TS}:{S_TS+1}]")
    a.e("s_waitcnt lgkmcnt(0)")
    a.lgq = []
    a.e(f"s_lshl_b32 s{S_TS+1}, s{S_LAY}, 7\ns_add_u32 s{S_TS+1}, s{S_TS+1}, s{S_TS+2}")
    a.e(f"v_mov_b32 v31, s{S_TS}")
    a.e("s_mov_b64 exec, 1")
    a.vm(f"buffer_store_dword v31, v30, s[72:75], s{S_TS+1} offen offset:{4*n}", "stamp")
    a.e("s_mov_b64 exec, -1")


def phi_tile(a, acc, dst, R, RL, t, mixed):
    f = []
    for p in range(8):
        r = 2 * p
        u, e = t + 4 * (p & 1), t + 4 * (p & 1) + 2
        if mixed:
            f += lines(a, f"""
v_pk_fma_f32 v[{e}:{e+1}], v[{acc+r}:{acc+r+1}], v[{RL+r}:{RL+r+1}], v[{V_C2}:{V_C2+1}] op_sel_hi:[1,1,0]
v_pk_fma_f32 v[{u}:{u+1}], v[{acc+r}:{acc+r+1}], v[{R+r}:{R+r+1}], v[{V_C3}:{V_C3+1}] op_sel_hi:[1,1,0]
v_exp_f32 v{e}, v{e} clamp
v_exp_f32 v{e+1}, v{e+1} clamp
v_max_f32 v{u}, v{V_LO}, v{u}
v_max_f32 v{u+1}, v{V_LO}, v{u+1}
""")
        else:
            f += lines(a, f"""
v_pk_mul_f32 v[{e}:{e+1}], v[{acc+r}:{acc+r+1}], v[{RL+r}:{RL+r+1}]
v_pk_fma_f32 v[{u}:{u+1}], v[{acc+r}:{acc+r+1}], v[{R+r}:{R+r+1}], s[{S_EPS2}:{S_EPS2+1}]
v_exp_f32 v{e}, v{e} clamp
v_exp_f32 v{e+1}, v{e+1} clamp
v_max_f32 v{u}, s{S_EPS2}, v{u}
v_max_f32 v{u+1}, s{S_EPS2}, v{u+1}
""")
        f += lines(a, f"""
v_pk_add_f32 v[{u}:{u+1}], v[{u}:{u+1}], v[{e}:{e+1}]
v_cvt_pk_bf16_f32 v{dst+p}, v{u}, v{u+1}
""")
    return f


def set_exec(a, lo, hi):
    a.e(f"s_mov_b32 exec_lo, {lo:#x}\ns_mov_b32 exec_hi, {hi:#x}")


def lanemask(fn):
    m = 0
    for l in range(64):
        if fn(l):
            m |= 1 << l
    return m & 0xffffffff, m >> 32


def phase1(a, ring, cfg):
    AW = cfg.get("aw", 10)
    skip = a.label("Lskip")
    a.e(f"s_cmp_eq_u32 s{S_LAY}, 0\ns_cbranch_scc1 {skip}")
    poll(a, L.C_X, S_TB32)
    a.e(f"{skip}:")
    stamp(a, 1, cfg)
    stats_load(a, L.ST)
    setup = a_setup(a, S_XA, L.X)
    for s in range(AW):
        aload(a, s, setup)
    T = [V_ACC + 16 * t for t in range(4)]
    R, RL = V_TMP, V_TMP + 16
    PT = [144, 152, 240]
    tt = 248

    def mk(t, s):
        def f(b):
            if s < 40:
                a.wait_vm(("A", s))
            x = f"a[{4*s}:{4*s+3}]" if s < 40 else f"v[{V_MF}:{V_MF+3}]"
            c = "0" if s == 0 else f"v[{T[t]}:{T[t]+15}]"
            a.e(f"v_mfma_f32_32x32x16_bf16 v[{T[t]}:{T[t]+15}], {x}, v[{b}:{b+3}], {c}")
        return f
    mf = [(P1S + 3 * s + t, mk(t, s)) for s in range(41) for t in range(3)]
    fill = {}
    for s in range(AW, 40):
        fill.setdefault(3 * (s - AW), []).append(lambda s=s: aload(a, s, setup))
    f = stats_math(a, tt)
    f += lines(a, f"v_mul_f32 v{tt}, {f32bits(LOG2E)}, v{V_ST}\nv_cmp_gt_u32 vcc, 32, v{V_LANE}\nv_cndmask_b32 v{tt}, v{tt}, v{V_ST}, vcc")
    f += [lambda: a.ds(f"ds_write_b32 v{V_RSW}, v{tt}", "rs")]
    for i in range(4):
        f += [lambda i=i: a.ds(f"ds_read_b128 v[{R+4*i}:{R+4*i+3}], v{V_RSR} offset:{32*i}", "rs")]
        f += [lambda i=i: a.ds(f"ds_read_b128 v[{RL+4*i}:{RL+4*i+3}], v{V_RSR} offset:{128+32*i}", "rs")]
    spread(fill, f, 30, 2)
    MID = 66
    z = lines(a, f"v_mov_b32 v{tt+4}, 0\nv_mov_b32 v{tt+5}, 0\nv_mov_b32 v{tt+6}, 0\nv_mov_b32 v{tt+7}, 0")
    z += [lambda: a.ds(f"ds_write_b128 v{V_T16}, v[{tt+4}:{tt+7}] offset:{GB_OFF}", "z"),
          lambda: a.ds(f"ds_write_b128 v{V_T16}, v[{tt+4}:{tt+7}] offset:{GB_OFF+1024}", "z")]
    spread(fill, z, MID + 2, 2)
    spread(fill, [lambda: ring.dma_upto(10 ** 9, 1)] * 8, 92, 0.34)
    run_pass(a, ring, mf, fill, {0: P1S + 123, MID: P1S + 123}, cfg.get("d32", 6))
    assert ring.freed >= P2S - RING
    stamp(a, 2, cfg)
    a.wait_ds("rs")
    for g in phi_tile(a, T[0], PT[0], R, RL, tt, False):
        g()
    for g in phi_tile(a, T[1], PT[1], R, RL, tt, True):
        g()
    for p in range(8):
        u = tt + 2 * (p & 3)
        a.e(f"v_pk_mul_f32 v[{u}:{u+1}], v[{T[2]+2*p}:{T[2]+2*p+1}], v[{R+2*p}:{R+2*p+1}]")
        a.e(f"v_cvt_pk_bf16_f32 v{PT[2]+p}, v{u}, v{u+1}")
    KVA = [64, 80, 96, 128]
    pairs = [(0, 2), (0, 1), (1, 2), (1, 1)]
    for u in range(2):
        for b, (x, y) in enumerate(pairs):
            c = "0" if u == 0 else f"v[{KVA[b]}:{KVA[b]+15}]"
            a.e(f"v_mfma_f32_32x32x16_bf16 v[{KVA[b]}:{KVA[b]+15}], v[{PT[x]+4*u}:{PT[x]+4*u+3}], v[{PT[y]+4*u}:{PT[y]+4*u+3}], {c}")
    set_exec(a, 0x0FF00000, 0x0FF00000)
    for i in range(4):
        a.ds(f"ds_write_b64 v{V_QW1}, v[{PT[1]+2*i}:{PT[1]+2*i+1}] offset:{16*i}", "q")
    rho = lambda l, i: 8 * i + 4 * (l >> 5)
    for i in range(4):
        set_exec(a, *lanemask(lambda l: ((l & 31) < 20) == (rho(l, i) < 20)))
        a.ds(f"ds_write_b128 v{V_G0}, v[{KVA[0]+4*i}:{KVA[0]+4*i+3}] offset:{32*i}", "g")
    for i in range(4):
        set_exec(a, *lanemask(lambda l: (l & 31) == 16 or (8 <= (l & 31) < 16 and rho(l, i) >= 20)))
        a.ds(f"ds_write_b128 v{V_G1}, v[{KVA[1]+4*i}:{KVA[1]+4*i+3}] offset:{32*i}", "g")
    set_exec(a, *lanemask(lambda l: (l & 31) >= 20))
    a.ds(f"ds_write_b128 v{V_G0}, v[{KVA[2]}:{KVA[2]+3}] offset:128", "g")
    set_exec(a, *lanemask(lambda l: 8 <= (l & 31) <= 16))
    a.ds(f"ds_write_b128 v{V_G1}, v[{KVA[3]}:{KVA[3]+3}] offset:128", "g")
    a.e("s_mov_b64 exec, -1")
    a.wait_ds_all()
    ring.barrier(P1S + 164)
    for w in range(4):
        a.ds(f"ds_read_b128 v[{64+4*w}:{67+4*w}], v{V_T16} offset:{GC_OFF + w*GC_STR}", "g")
    a.e(f"s_add_u32 s{S_T}, s{S_LOFF}, s{S_KVS}")
    a.wait_ds_all()
    a.e("v_pk_add_f32 v[64:65], v[64:65], v[68:69]\nv_pk_add_f32 v[66:67], v[66:67], v[70:71]")
    a.e("v_pk_add_f32 v[72:73], v[72:73], v[76:77]\nv_pk_add_f32 v[74:75], v[74:75], v[78:79]")
    a.e("v_pk_add_f32 v[64:65], v[64:65], v[72:73]\nv_pk_add_f32 v[66:67], v[66:67], v[74:75]")
    a.e(f"s_mov_b64 exec, s[{S_M210}:{S_M210+1}]")
    a.vm(f"buffer_store_dwordx4 v[64:67], v{V_T16}, s[{SRD_WS}:{SRD_WS+3}], s{S_T} offen sc1", "kvst")
    a.e("s_mov_b64 exec, -1")
    stamp(a, 3, cfg)
    mf = [(P1S + 123 + s, mk(3, s)) for s in range(41)]
    fill = {}
    spread(fill, [lambda: ring.dma_upto(10 ** 9, 1)] * 17, 0, 0.42)
    sigpos = cfg.get("kvsig", 26)
    fill.setdefault(sigpos, []).extend([lambda: a.wait_vm("kvst"), lambda: signal(a, L.C_KV, S_KVC)])
    run_pass(a, ring, mf, fill, {}, cfg.get("d32", 6))
    f = phi_tile(a, T[3], PT[0], R, RL, tt, False)
    k = 0
    for g in f:
        g()
        k += 1
        if k % 16 == 0:
            ring.dma_upto(10 ** 9, 1)
    for i in range(4):
        a.ds(f"ds_write_b64 v{V_QW3}, v[{PT[0]+2*i}:{PT[0]+2*i+1}] offset:{16*i}", "q")
    PQ = 144
    a.wait_ds_all()
    for s in range(2):
        for u in range(2):
            a.ds(f"ds_read_b64_tr_b16 v[{PQ+4*s+2*u}:{PQ+4*s+2*u+1}], v{V_QR} offset:{(16*s+4*u)*72}", "pq")
    for u in range(2):
        a.ds(f"ds_read_b64_tr_b16 v[{PQ+8+2*u}:{PQ+8+2*u+1}], v{V_QR2} offset:{4*u*72}", "pq")
    stamp(a, 4, cfg)
    poll(a, L.C_KV, S_KVC)
    stamp(a, 5, cfg)
    a.e(f"s_add_u32 s{S_T}, s{S_LOFF}, s{S_KVR}")
    a.e(f"s_mov_b64 exec, s[{S_M210}:{S_M210+1}]")
    for i in range(16):
        a.vm(f"buffer_load_dwordx4 v[{64+4*i}:{67+4*i}], v{V_T16}, s[{SRD_WS}:{SRD_WS+3}], s{S_T} offen sc1", ("kv", i))
        a.e(f"s_add_u32 s{S_T}, s{S_T}, {L.KV_STR}")
    for i in range(1, 16):
        a.wait_vm(("kv", i))
        d = 64 if i != 1 and False else 64
        a.e(f"v_pk_add_f32 v[64:65], v[64:65], v[{64+4*i}:{65+4*i}]\nv_pk_add_f32 v[66:67], v[66:67], v[{66+4*i}:{67+4*i}]")
    a.e("v_cvt_pk_bf16_f32 v68, v64, v65\nv_cvt_pk_bf16_f32 v69, v66, v67")
    a.ds(f"ds_write_b64 v{V_GBW}, v[68:69]", "gb")
    a.e("s_mov_b64 exec, -1")
    a.wait_ds_all()
    ring.barrier(0)
    GX, GY, DX, DY = 208, 220, 64, 80
    for s in range(3):
        a.ds(f"ds_read_b128 v[{GX+4*s}:{GX+4*s+3}], v{V_GBX} offset:{32*s}", ("gx", s))
        a.ds(f"ds_read_b128 v[{GY+4*s}:{GY+4*s+3}], v{V_GBY} offset:{32*s}", ("gy", s))
    for s in range(3):
        a.wait_ds(("gy", s))
        c = "0" if s == 0 else f"v[{DY}:{DY+15}]"
        a.e(f"v_mfma_f32_32x32x16_bf16 v[{DY}:{DY+15}], v[{GY+4*s}:{GY+4*s+3}], v[{PQ+4*s}:{PQ+4*s+3}], {c}")
        c = "0" if s == 0 else f"v[{DX}:{DX+15}]"
        a.e(f"v_mfma_f32_32x32x16_bf16 v[{DX}:{DX+15}], v[{GX+4*s}:{GX+4*s+3}], v[{PQ+4*s}:{PQ+4*s+3}], {c}")
    ring.dma_upto(10 ** 9, 2)
    a.e(f"s_add_u32 s{S_T}, s{S_LOFF}, s{S_OS}")
    r0, r1 = 232, 234
    a.e(f"v_add_f32 v{r0}, s{S_EPS2}, v{DY+8}\nv_add_f32 v{r1}, s{S_EPS2}, v{DY+9}")
    a.e(f"v_rcp_f32 v{r0}, v{r0}\nv_rcp_f32 v{r1}, v{r1}")
    OP = 236
    for (src, rr, dst) in ((DX, (r0, r0), OP), (DX + 8, (r1, r1), OP + 4), (DY, (r0, r1), OP + 8)):
        for p in range(4):
            r = rr[p >> 1]
            a.e(f"v_pk_mul_f32 v[{src+2*p}:{src+2*p+1}], v[{src+2*p}:{src+2*p+1}], v[{r}:{r+1}] op_sel_hi:[1,0]")
        for p in range(4):
            a.e(f"v_cvt_pk_bf16_f32 v{dst+p}, v{src+2*p}, v{src+2*p+1}")
    a.vm(f"buffer_store_dwordx4 v[{OP}:{OP+3}], v{V_OST}, s[{SRD_WS}:{SRD_WS+3}], s{S_T} offen sc1", "ost")
    a.vm(f"buffer_store_dwordx4 v[{OP+4}:{OP+7}], v{V_OST}, s[{SRD_WS}:{SRD_WS+3}], s{S_T} offen offset:768 sc1", "ost")
    a.e("s_mov_b32 exec_hi, 0")
    a.vm(f"buffer_store_dwordx4 v[{OP+8}:{OP+11}], v{V_OST}, s[{SRD_WS}:{SRD_WS+3}], s{S_T} offen offset:512 sc1", "ost")
    a.e("s_mov_b64 exec, -1")
    ring.dma_upto(10 ** 9, 8)
    a.wait_vm("ost")
    signal(a, L.C_O, S_TB32)
    ring.dma_upto(10 ** 9)
    ring.cons = P2S
    stamp(a, 6, cfg)


def out_epilogue(a, ring, cfg, xconst, stconst, kind, nextlayer, final_branch):
    P = V_TMP
    for p in range(10):
        a.e(f"v_cvt_pk_bf16_f32 v{P+p}, v{V_RES+2*p}, v{V_RES+2*p+1}")
    if final_branch:
        a.e(f"s_cmp_eq_u32 s{S_LAY}, 1\ns_cbranch_scc1 L_final")
    a.e(f"s_add_u32 s{S_T}, s{S_LOFF}, s{S_XS}\ns_add_u32 s{S_T}, s{S_T}, {xconst}")
    a.vm(f"buffer_store_dwordx4 v[{P}:{P+3}], v{V_XS1}, s[{SRD_WS}:{SRD_WS+3}], s{S_T} offen sc1", "xst")
    a.vm(f"buffer_store_dwordx4 v[{P+4}:{P+7}], v{V_XS1}, s[{SRD_WS}:{SRD_WS+3}], s{S_T} offen offset:2048 sc1", "xst")
    a.vm(f"buffer_store_dwordx2 v[{P+8}:{P+9}], v{V_XS2}, s[{SRD_WS}:{SRD_WS+3}], s{S_T} offen sc1", "xst")
    for p in range(10):
        a.e(f"v_lshlrev_b32 v{V_RES+2*p}, 16, v{P+p}\nv_and_b32 v{V_RES+2*p+1}, 0xffff0000, v{P+p}")
    t = V_TMP + 16
    a.e(f"v_pk_add_f32 v[{t}:{t+1}], v[{V_RES}:{V_RES+1}], v[{V_RES+2}:{V_RES+3}]")
    a.e(f"v_pk_add_f32 v[{t+2}:{t+3}], v[{V_RES+4}:{V_RES+5}], v[{V_RES+6}:{V_RES+7}]")
    for p in range(4, 10):
        d = t + 2 * (p & 1)
        a.e(f"v_pk_add_f32 v[{d}:{d+1}], v[{d}:{d+1}], v[{V_RES+2*p}:{V_RES+2*p+1}]")
    a.e(f"v_pk_add_f32 v[{t}:{t+1}], v[{t}:{t+1}], v[{t+2}:{t+3}]\nv_add_f32 v{t}, v{t}, v{t+1}")

    def red(x, y):
        a.e(f"v_mov_b32 v{y}, v{x}\nv_permlane16_swap_b32 v{x}, v{y}\nv_add_f32 v{x}, v{x}, v{y}")
        a.e(f"v_mov_b32 v{y}, v{x}\nv_permlane32_swap_b32 v{x}, v{y}\nv_add_f32 v{x}, v{x}, v{y}")
    red(t, t + 1)
    a.e(f"v_mul_f32 v{t}, {f32bits(1.0/80)}, v{t}")
    q = t + 4
    for p in range(10):
        d = t + 8 + 2 * (p & 3)
        a.e(f"v_pk_add_f32 v[{d}:{d+1}], v[{V_RES+2*p}:{V_RES+2*p+1}], v[{t}:{t+1}] op_sel_hi:[1,0] neg_lo:[0,1] neg_hi:[0,1]")
        qq = q + 2 * (p & 1)
        if p < 2:
            a.e(f"v_pk_mul_f32 v[{qq}:{qq+1}], v[{d}:{d+1}], v[{d}:{d+1}]")
        else:
            a.e(f"v_pk_fma_f32 v[{qq}:{qq+1}], v[{d}:{d+1}], v[{d}:{d+1}], v[{qq}:{qq+1}]")
    a.e(f"v_pk_add_f32 v[{q}:{q+1}], v[{q}:{q+1}], v[{q+2}:{q+3}]\nv_add_f32 v{t+1}, v{q}, v{q+1}")
    red(t + 1, t + 2)
    a.e(f"s_add_u32 s{S_T}, s{S_LOFF}, s{S_STS}\ns_add_u32 s{S_T}, s{S_T}, {stconst}")
    a.e("s_mov_b64 exec, 0xffff")
    a.vm(f"buffer_store_dwordx2 v[{t}:{t+1}], v{V_STS}, s[{SRD_WS}:{SRD_WS+3}], s{S_T} offen sc1", "xst")
    a.e("s_mov_b64 exec, -1")
    ring.dma_upto(10 ** 9, cfg.get("dma_after_st", 10))
    a.wait_vm("xst")
    signal(a, kind, S_TB32P, nextlayer)
    ring.dma_upto(10 ** 9)


def mk16(a, t, s):
    def f(b):
        a.wait_vm(("A", s))
        c = V_RES + 4 * t
        a.e(f"v_mfma_f32_16x16x32_bf16 v[{c}:{c+3}], v[{b}:{b+3}], a[{4*s}:{4*s+3}], v[{c}:{c+3}]")
    return f


def phase2(a, ring, cfg):
    AW = cfg.get("aw", 10)
    poll(a, L.C_O, S_TB32P)
    stamp(a, 7, cfg)
    setup = a_setup(a, S_OA, L.O)
    for s in range(AW):
        aload(a, s, setup)
    mf = [(P2S + 5 * s + t, mk16(a, t, s)) for s in range(20) for t in range(5)]
    fill = {}
    for s in range(AW, 20):
        fill.setdefault(5 * (s - AW), []).append(lambda s=s: aload(a, s, setup))
    spread(fill, [lambda: ring.dma_upto(10 ** 9, 1)] * 7, 55, 0.2)
    run_pass(a, ring, mf, fill, {0: P2S + 100}, cfg.get("d16", 12))
    stamp(a, 8, cfg)
    ring.barrier(0)
    ring.dma_upto(10 ** 9, cfg.get("dma_before_st", 4))
    out_epilogue(a, ring, cfg, L.X1, L.ST1, L.C_X1, False, False)
    stamp(a, 9, cfg)


def silu_tile(a, acc, dst, t):
    NRL, R2 = V_ST + 2, V_ST + 4
    f = []
    for p in range(4):
        g, u = acc + 2 * p, acc + 8 + 2 * p
        e = t + 2 * (p & 1)
        f += lines(a, f"""
v_pk_mul_f32 v[{e}:{e+1}], v[{g}:{g+1}], v[{NRL}:{NRL+1}] op_sel_hi:[1,0]
v_pk_mul_f32 v[{g}:{g+1}], v[{g}:{g+1}], v[{u}:{u+1}]
v_exp_f32 v{e}, v{e}
v_exp_f32 v{e+1}, v{e+1}
v_pk_mul_f32 v[{g}:{g+1}], v[{g}:{g+1}], v[{R2}:{R2+1}] op_sel_hi:[1,0]
v_pk_add_f32 v[{e}:{e+1}], v[{e}:{e+1}], s[{S_ONE2}:{S_ONE2+1}]
v_rcp_f32 v{e}, v{e}
v_rcp_f32 v{e+1}, v{e+1}
v_pk_mul_f32 v[{g}:{g+1}], v[{g}:{g+1}], v[{e}:{e+1}]
v_cvt_pk_bf16_f32 v{dst+p}, v{g}, v{g+1}
""")
    return f


def phase3(a, ring, cfg):
    AW = cfg.get("aw", 10)
    poll(a, L.C_X1, S_TB32)
    stamp(a, 10, cfg)
    stats_load(a, L.ST1)
    setup = a_setup(a, S_XA, L.X1)
    for s in range(AW):
        aload(a, s, setup)
    T = [V_ACC + 16 * t for t in range(6)]
    tt = V_TMP + 40

    def mk(t, s):
        def f(b):
            if s < 40:
                a.wait_vm(("A", s))
            x = f"a[{4*s}:{4*s+3}]" if s < 40 else f"v[{V_MF}:{V_MF+3}]"
            c = "0" if s == 0 else f"v[{T[t]}:{T[t]+15}]"
            a.e(f"v_mfma_f32_32x32x16_bf16 v[{T[t]}:{T[t]+15}], v[{b}:{b+3}], {x}, {c}")
        return f
    mf = [(P3S + 3 * s + t, mk(t, s)) for s in range(41) for t in range(3)]
    mf += [(P3S + 123 + 2 * s + t, mk(3 + t, s)) for s in range(41) for t in range(2)]
    mf += [(P3S + 205 + s, mk(5, s)) for s in range(41)]
    fill = {}
    for s in range(AW, 40):
        fill.setdefault(3 * (s - AW), []).append(lambda s=s: aload(a, s, setup))
    f = stats_math(a, tt)
    f += lines(a, f"v_mul_f32 v{V_ST+2}, {f32bits(-LOG2E)}, v{V_ST}\nv_mul_f32 v{V_ST+4}, v{V_ST}, v{V_ST}")
    spread(fill, f, 30, 2)

    def epi(tiles, inst):
        f = [lambda: a.e(f"s_add_u32 s{S_T+1}, s{S_LOFF}, s{S_HS[inst]}")]
        for n, t in enumerate(tiles):
            d = V_TMP + 4 * t
            f += silu_tile(a, T[t], d, tt)
            f += [lambda d=d, n=n: a.vm(f"buffer_store_dwordx4 v[{d}:{d+3}], v{V_HST}, s[{SRD_WS}:{SRD_WS+3}], s{S_T+1} offen offset:{512*n} sc1", ("hst", inst))]
        return f
    e0 = spread(fill, epi([0, 1, 2], 0), 125, 3)
    fill.setdefault(min(e0 + 34, 204), []).extend([lambda: a.wait_vm(("hst", 0)), lambda: signal(a, L.C_H0, S_TB32)])
    e1 = spread(fill, epi([3, 4], 1), 207, 3)
    bars = {0: P3S + 156}
    for b in range(48, 246, 24):
        bars[b] = min(P3S + b + 24 + 6, P3S + 246)
    dm = [lambda: ring.dma_upto(10 ** 9, 1)] * 70
    spread(fill, dm, 50, 0.4)
    run_pass(a, ring, mf, fill, bars, cfg.get("d32", 6))
    stamp(a, 11, cfg)
    for g in epi([5], 2):
        g()
    a.wait_vm(("hst", 1))
    signal(a, L.C_H1, S_TB32)
    ring.cons = P4S
    stamp(a, 12, cfg)


def phase4(a, ring, cfg):
    AW = cfg.get("aw", 10)
    poll(a, L.C_H0, S_TB32P)
    stamp(a, 13, cfg)
    setup = a_setup(a, S_HA, L.H)
    for s in range(AW):
        aload(a, s, setup)
    a.wait_vm(("hst", 2))
    signal(a, L.C_H2, S_TB32)
    mf = [(P4S + 5 * s + t, mk16(a, t, s)) for s in range(48) for t in range(5)]
    fill = {}
    for s in range(AW, 48):
        k = 5 * (s - AW)
        if s == 24:
            fill.setdefault(k, []).append(lambda: poll(a, L.C_H1, S_TB32P))
        if s == 40:
            fill.setdefault(k, []).append(lambda: poll(a, L.C_H2, S_TB32P))
        fill.setdefault(k, []).append(lambda s=s: aload(a, s, setup))
    D = cfg.get("d16", 12)
    bars = {}
    for b in range(0, 240, 30):
        bars[b] = min(P4S + b + 30, P4S + 240)
    dm = [lambda: ring.dma_upto(10 ** 9, 1)] * 60
    spread(fill, dm, 2, 0.25)
    run_pass(a, ring, mf, fill, bars, D)
    stamp(a, 14, cfg)
    ring.barrier(0)
    ring.dma_upto(10 ** 9, cfg.get("dma_before_st", 4))
    out_epilogue(a, ring, cfg, L.LSTR + L.X, L.LSTR + L.ST, L.C_X, True, True)
    stamp(a, 15, cfg)


def gen_main(name="main_kernel", cfg=None):
    cfg = cfg or {}
    a = Asm()
    ring = Ring(a)
    a.e(f".globl {name}\n.p2align 8\n.type {name},@function\n{name}:")
    a.e("s_cmp_ge_u32 s2, 256\ns_cbranch_scc1 L_end")
    a.e("s_load_dwordx2 s[44:45], s[0:1], 56\ns_load_dwordx2 s[12:13], s[0:1], 72")
    a.e(f"v_and_b32 v{V_LANE}, 63, v0\nv_lshlrev_b32 v{V_L16}, 4, v{V_LANE}\nv_lshlrev_b32 v{V_T16}, 4, v0")
    a.e(f"v_lshrrev_b32 v30, 6, v0\nv_readfirstlane_b32 s{S_W}, v30")
    a.e(f"s_and_b32 s46, s2, 6\ns_lshl_b32 s46, s46, 1\ns_lshr_b32 s47, s2, 3\ns_and_b32 s47, s47, 3\ns_add_u32 s{S_I}, s46, s47")
    a.e(f"s_and_b32 s46, s2, 1\ns_lshl_b32 s46, s46, 3\ns_lshr_b32 s47, s2, 5\ns_add_u32 s{S_J}, s46, s47")
    a.e(f"s_lshl_b32 s{S_W1K}, s{S_W}, 10")
    a.e(f"s_lshr_b32 s48, s{S_J}, 1\ns_and_b32 s49, s{S_J}, 1")
    a.e(f"s_mul_i32 s20, s{S_J}, {L.WQKV_STR}\ns_add_u32 s20, s20, {L.WQKV}")
    a.e(f"s_mul_i32 s21, s48, {L.WO_STR}\ns_add_u32 s21, s21, {L.WO}")
    a.e(f"s_mul_i32 s22, s{S_J}, {L.W13_STR}\ns_add_u32 s22, s22, {L.W13}")
    a.e(f"s_mul_i32 s23, s48, {L.W2_STR}\ns_add_u32 s23, s23, {L.W2}")
    a.e("s_waitcnt lgkmcnt(0)")
    for d in (SRD_WS, SRD_NX):
        a.e(f"s_mov_b32 s{d}, s12\ns_and_b32 s{d+1}, s13, 0xffff\ns_mov_b32 s{d+2}, {L.WS_USED}\ns_mov_b32 s{d+3}, 0x20000")
    a.e(f"s_mov_b32 s8, s44\ns_and_b32 s9, s45, 0xffff\ns_mov_b32 s10, {2048*1280}\ns_mov_b32 s11, 0x20000")
    a.e(f"s_mov_b32 s{S_LAY}, 0\ns_mov_b32 s{S_LOFF}, {L.LBASE}\ns_mov_b32 s{S_COFF}, 0")
    if cfg.get("timing"):
        a.e(f"s_add_u32 s72, s12, {cfg['timing']}\ns_addc_u32 s73, s13, 0\ns_and_b32 s73, s73, 0xffff\ns_mov_b32 s74, {1024*256}\ns_mov_b32 s75, 0x20000")
        a.e(f"s_lshl_b32 s{S_TS+2}, s2, 2\ns_add_u32 s{S_TS+2}, s{S_TS+2}, s{S_W}\ns_lshl_b32 s{S_TS+2}, s{S_TS+2}, 8\nv_mov_b32 v30, 0")
    stamp(a, 0, cfg)
    ring.freed = 0
    ring.dma_upto(RING)
    a.e(f"s_lshl_b32 s{S_TB32}, s{S_I}, 2\ns_add_u32 s{S_TB32}, s{S_TB32}, s{S_W}")
    a.e(f"s_lshl_b32 s{S_TB16}, s{S_I}, 3\ns_lshl_b32 s46, s49, 2\ns_add_u32 s{S_TB16}, s{S_TB16}, s46\ns_add_u32 s{S_TB16}, s{S_TB16}, s{S_W}")
    a.e(f"s_lshr_b32 s{S_TB32P}, s{S_TB16}, 1")
    a.e(f"s_mul_i32 s{S_XA}, s{S_TB32}, 40960\ns_lshl_b32 s{S_STA}, s{S_TB32}, 11")
    a.e(f"s_mul_i32 s{S_OA}, s{S_TB16}, 20480\ns_mul_i32 s{S_HA}, s{S_TB16}, 49152")
    a.e(f"s_and_b32 s50, s{S_TB16}, 1")
    a.e(f"s_mul_i32 s{S_XS}, s{S_TB32P}, 40960\ns_mul_i32 s46, s48, 5120\ns_add_u32 s{S_XS}, s{S_XS}, s46\ns_lshl_b32 s46, s50, 8\ns_add_u32 s{S_XS}, s{S_XS}, s46")
    a.e(f"s_lshl_b32 s{S_STS}, s{S_TB32P}, 11\ns_lshl_b32 s46, s48, 8\ns_add_u32 s{S_STS}, s{S_STS}, s46\ns_lshl_b32 s46, s50, 7\ns_add_u32 s{S_STS}, s{S_STS}, s46")
    a.e(f"s_mul_i32 s{S_OS}, s{S_TB32}, 40960\ns_mul_i32 s46, s{S_J}, 1280\ns_add_u32 s{S_OS}, s{S_OS}, s46\ns_add_u32 s{S_OS}, s{S_OS}, {L.O}")
    a.e(f"s_mul_i32 s47, s{S_TB32}, {2*49152}\ns_add_u32 s47, s47, {L.H}")
    a.e(f"s_mul_i32 s46, s{S_J}, 1536\ns_add_u32 s{S_HS[0]}, s47, s46")
    a.e(f"s_lshl_b32 s46, s{S_J}, 10\ns_add_u32 s46, s46, {48*512}\ns_add_u32 s{S_HS[1]}, s47, s46")
    a.e(f"s_lshl_b32 s46, s{S_J}, 9\ns_add_u32 s46, s46, {80*512}\ns_add_u32 s{S_HS[2]}, s47, s46")
    a.e(f"s_mul_i32 s{S_KVR}, s{S_J}, {16*L.KV_STR}\ns_add_u32 s{S_KVR}, s{S_KVR}, {L.KV}")
    a.e(f"s_mul_i32 s46, s{S_I}, {L.KV_STR}\ns_add_u32 s{S_KVS}, s{S_KVR}, s46")
    a.e(f"s_mul_i32 s{S_OUT}, s{S_TB16}, {16*1280}\ns_mul_i32 s46, s48, 160\ns_add_u32 s{S_OUT}, s{S_OUT}, s46")
    a.e(f"s_lshl_b32 s{S_KVC}, s{S_J}, 2\ns_add_u32 s{S_KVC}, s{S_KVC}, s{S_W}")
    a.e(f"s_mov_b32 s{S_ONE}, 1")
    a.e(f"s_mov_b32 s{S_EPS2}, {f32bits(1e-6)}\ns_mov_b32 s{S_EPS2+1}, {f32bits(1e-6)}\ns_mov_b32 s{S_ONE2}, 1.0\ns_mov_b32 s{S_ONE2+1}, 1.0")
    a.e(f"v_mov_b32 v31, 210\nv_cmp_gt_u32 s[{S_M210}:{S_M210+1}], v31, v0")
    tok, hf, t16, g, x, y, z = 208, 209, 210, 211, 212, 213, 214
    ln = V_LANE
    a.e(f"v_add_u32 v{V_L16B}, 0x10000, v{V_L16}\nv_add_u32 v{V_L16C}, 0x20000, v{V_L16}")
    a.e(f"v_and_b32 v{tok}, 31, v{ln}\nv_lshrrev_b32 v{hf}, 5, v{ln}\nv_and_b32 v{t16}, 15, v{ln}\nv_lshrrev_b32 v{g}, 4, v{ln}")
    a.e(f"v_lshlrev_b32 v{x}, 10, v{hf}\nv_lshl_add_u32 v{V_STL}, v{tok}, 3, v{x}")
    a.e(f"v_lshlrev_b32 v{x}, 8, v{hf}\nv_lshl_add_u32 v{x}, v{t16}, 4, v{x}\nv_bfe_u32 v{y}, v{ln}, 4, 1")
    a.e(f"v_mul_u32_u24 v{z}, 20480, v{y}\nv_add_u32 v{V_OST}, v{x}, v{z}")
    a.e(f"v_mul_u32_u24 v{z}, 49152, v{y}\nv_add_u32 v{V_HST}, v{x}, v{z}")
    a.e(f"v_lshlrev_b32 v{x}, 9, v{g}\nv_lshl_add_u32 v{V_XS1}, v{t16}, 4, v{x}")
    a.e(f"v_lshlrev_b32 v{x}, 9, v{hf}\nv_lshl_add_u32 v{x}, v{t16}, 4, v{x}\nv_lshl_add_u32 v{x}, v{y}, 3, v{x}\nv_add_u32 v{V_XS2}, 4096, v{x}")
    a.e(f"v_mul_u32_u24 v{x}, 1280, v{t16}\nv_lshl_add_u32 v{V_OUT1}, v{g}, 4, v{x}\nv_lshl_add_u32 v{x}, v{g}, 3, v{x}\nv_add_u32 v{V_OUT2}, 128, v{x}")
    a.e(f"v_lshlrev_b32 v{V_STS}, 3, v{ln}")
    a.e(f"s_add_u32 s{S_T}, s{S_XS}, {L.LBASE + L.X}")
    P = 220
    a.vm(f"buffer_load_dwordx4 v[{P}:{P+3}], v{V_XS1}, s[{SRD_WS}:{SRD_WS+3}], s{S_T} offen", "res")
    a.vm(f"buffer_load_dwordx4 v[{P+4}:{P+7}], v{V_XS1}, s[{SRD_WS}:{SRD_WS+3}], s{S_T} offen offset:2048", "res")
    a.vm(f"buffer_load_dwordx2 v[{P+8}:{P+9}], v{V_XS2}, s[{SRD_WS}:{SRD_WS+3}], s{S_T} offen", "res")
    a.e(f"s_mul_i32 s46, s{S_W}, {GC_STR}\ns_add_u32 s46, s46, {GC_OFF}")
    a.e(f"v_mul_u32_u24 v{x}, 80, v{tok}\nv_lshl_add_u32 v{x}, v{hf}, 4, v{x}\nv_add_u32 v{x}, s46, v{x}")
    a.e(f"v_subrev_u32 v{y}, 80, v{x}\nv_cmp_le_u32 vcc, 20, v{tok}\nv_cndmask_b32 v{V_G0}, v{x}, v{y}, vcc")
    a.e(f"v_add_u32 v{x}, {24*80}, v{x}\nv_subrev_u32 v{y}, 80, v{x}\nv_cmp_gt_u32 vcc, 16, v{tok}\nv_cndmask_b32 v{V_G1}, v{x}, v{y}, vcc")
    a.e(f"v_mul_u32_u24 v{x}, 205, v0\nv_lshrrev_b32 v{x}, 10, v{x}\nv_mul_u32_u24 v{y}, 5, v{x}\nv_sub_u32 v{y}, v0, v{y}")
    a.e(f"v_mul_u32_u24 v{z}, 112, v{x}\nv_lshl_add_u32 v{z}, v{y}, 3, v{z}\nv_add_u32 v{z}, {GB_OFF}, v{z}\nv_add_u32 v{y}, 40, v{z}")
    a.e(f"v_cmp_le_u32 vcc, 20, v{x}\nv_cndmask_b32 v{y}, v{z}, v{y}, vcc\nv_cmp_eq_u32 vcc, 40, v{x}\nv_cndmask_b32 v{V_GBW}, v{y}, v{z}, vcc")
    a.e(f"v_lshrrev_b32 v{x}, 4, v{tok}\nv_mul_u32_u24 v{x}, 24, v{x}\nv_bfe_u32 v{y}, v{tok}, 2, 1\nv_lshl_add_u32 v{x}, v{y}, 3, v{x}")
    a.e(f"v_bfe_u32 v{y}, v{tok}, 3, 1\nv_lshl_add_u32 v{x}, v{y}, 2, v{x}\nv_and_b32 v{z}, 3, v{tok}\nv_add_u32 v{x}, v{x}, v{z}")
    a.e(f"v_mul_u32_u24 v{x}, 112, v{x}\nv_lshl_add_u32 v{x}, v{hf}, 4, v{x}\nv_add_u32 v{V_GBX}, {GB_OFF}, v{x}")
    a.e(f"v_lshl_add_u32 v{x}, v{y}, 2, v{z}\nv_add_u32 v{x}, 16, v{x}\nv_mov_b32 v{y}, 42")
    a.e(f"v_and_b32 v215, 0x14, v{tok}\nv_cmp_eq_u32 vcc, 0, v215\nv_cndmask_b32 v{y}, v{y}, v{x}, vcc")
    a.e(f"v_add_u32 v{x}, 40, v{z}\nv_and_b32 v215, 0x1a, v{tok}\nv_cmp_eq_u32 vcc, 16, v215\nv_cndmask_b32 v{y}, v{y}, v{x}, vcc")
    a.e(f"v_mul_u32_u24 v{x}, 112, v{y}\nv_lshl_add_u32 v{x}, v{hf}, 4, v{x}\nv_add_u32 v{V_GBY}, {GB_OFF}, v{x}")
    a.e(f"s_mul_i32 s46, s{S_W}, 2304\ns_add_u32 s46, s46, {QT_OFF}\ns_mul_i32 s47, s{S_W}, 576\ns_add_u32 s47, s47, {Q1_OFF}")
    a.e(f"v_mul_u32_u24 v{x}, 72, v{tok}\nv_lshl_add_u32 v{x}, v{hf}, 3, v{x}\nv_add_u32 v{V_QW3}, s46, v{x}")
    a.e(f"v_add_u32 v{x}, s47, v{x}\nv_subrev_u32 v{V_QW1}, {20*72}, v{x}")
    a.e(f"v_bfe_u32 v{x}, v{ln}, 2, 2\nv_mul_u32_u24 v{x}, 72, v{x}\nv_bfe_u32 v{y}, v{ln}, 4, 1\nv_lshl_add_u32 v{x}, v{y}, 5, v{x}")
    a.e(f"v_and_b32 v{y}, 3, v{ln}\nv_lshl_add_u32 v{x}, v{y}, 3, v{x}\nv_add_u32 v{V_QR2}, s47, v{x}")
    a.e(f"v_mul_u32_u24 v{y}, {8*72}, v{hf}\nv_add_u32 v{x}, v{x}, v{y}\nv_add_u32 v{V_QR}, s46, v{x}")
    a.e(f"v_mov_b32 v{V_C2}, 0\nv_mov_b32 v{V_C3}, 0\nv_mov_b32 v{V_LO}, 0\nv_mov_b32 v{V_C2+1}, 0\nv_mov_b32 v{V_C3+1}, 0")
    set_exec(a, 0x0FF000FF, 0x0FF000FF)
    a.e(f"v_mov_b32 v{V_C3}, s{S_EPS2}\nv_mov_b32 v{V_LO}, s{S_EPS2}")
    set_exec(a, 0x0000FF00, 0x0000FF00)
    a.e(f"v_mov_b32 v{V_C2}, 0xff800000\nv_mov_b32 v{V_LO}, 0xff800000")
    a.e("s_mov_b64 exec, -1")
    a.e(f"s_lshl_b32 s46, s{S_W}, 8\ns_add_u32 s46, s46, {RS_OFF}")
    a.e(f"v_lshlrev_b32 v{x}, 2, v{ln}\nv_add_u32 v{V_RSW}, s46, v{x}\nv_lshlrev_b32 v{x}, 4, v{hf}\nv_add_u32 v{V_RSR}, s46, v{x}")
    a.wait_vm("res")
    for p in range(10):
        a.e(f"v_lshlrev_b32 v{V_RES+2*p}, 16, v{P+p}\nv_and_b32 v{V_RES+2*p+1}, 0xffff0000, v{P+p}")
    a.e("s_nop 4")
    a.e("L_top:")
    a.vmq = [("dma", 0)]
    a.lgq = []
    st0 = (ring.next, ring.freed)
    ring.pub = 0
    ring.cons = 0
    stop = cfg.get("stop", 99)
    phase1(a, ring, cfg)
    if stop == 1:
        a.e("s_endpgm")
    phase2(a, ring, cfg)
    if stop == 2:
        a.e("s_endpgm")
    phase3(a, ring, cfg)
    phase4(a, ring, cfg)
    assert ring.next == TOT + st0[0] and ring.freed == TOT, (ring.next, ring.freed)
    if stop == 4:
        a.e("s_endpgm")
    a.e(f"s_mov_b32 s{S_LAY}, 1\ns_mov_b32 s{S_LOFF}, {L.LBASE + L.LSTR}\ns_mov_b32 s{S_COFF}, {L.CNT_PER_LAYER * L.CNT_STRIDE}")
    a.e(f"s_mov_b32 s{SRD_NX+2}, 0")
    a.e("s_branch L_top")
    a.e("L_final:")
    P = V_TMP
    a.e(f"buffer_store_dwordx4 v[{P}:{P+3}], v{V_OUT1}, s[8:11], s{S_OUT} offen")
    a.e(f"buffer_store_dwordx4 v[{P+4}:{P+7}], v{V_OUT1}, s[8:11], s{S_OUT} offen offset:64")
    a.e(f"buffer_store_dwordx2 v[{P+8}:{P+9}], v{V_OUT2}, s[8:11], s{S_OUT} offen")
    stamp(a, 15, cfg)
    a.e("s_waitcnt vmcnt(0)")
    a.e("L_end:\ns_endpgm")
    return a.text(), kd(name, 512, 96, 256), a


if __name__ == "__main__":
    t, k, a = gen_main()
    print(t)
```

```python
from asmcore import *
import layout as L

N_QKV, N_W13, N_W2, N_WO, N_X = 64, 96, 48, 20, 64
B_QKV = 0
B_W13 = B_QKV + N_QKV
B_W2 = B_W13 + N_W13
B_WO = B_W2 + N_W2
B_X = B_WO + N_WO
PREP_GRID = B_X + N_X
PREP_LDS = 40960
ST_FLAG = "sc1"


def srd(a, d, base, size):
    a.e(f"s_mov_b32 s{d}, s{base}\ns_and_b32 s{d+1}, s{base+1}, 0xffff\ns_mov_b32 s{d+2}, {size}\ns_mov_b32 s{d+3}, 0x20000")


def colsum_tail(a, acc, s_kq, s_meanoff):
    a.e(f"v_mov_b32 v10, v{acc}")
    a.e(f"v_permlane32_swap_b32 v{acc}, v10")
    a.e(f"v_add_f32 v{acc}, v{acc}, v10")
    a.e(f"v_cvt_pk_bf16_f32 v12, v{acc}, v{acc}")
    a.e(f"v_and_b32 v10, 0xffff0000, v12")
    a.e(f"v_sub_f32 v10, v{acc}, v10")
    a.e(f"v_cvt_pk_bf16_f32 v13, v10, v10")
    a.e(f"s_lshr_b32 s40, s{s_kq}, 1\ns_lshl_b32 s40, s40, 9\ns_and_b32 s41, s{s_kq}, 1\ns_lshl_b32 s41, s41, 3")
    a.e(f"s_add_u32 s40, s40, s41\ns_add_u32 s40, s40, s{s_meanoff}")
    a.e("s_mov_b32 exec_hi, 0")
    a.e(f"buffer_store_dwordx2 v[12:13], v2, s[8:11], s40 offen {ST_FLAG}")


def tr_pack32(a, pitch, s_out, s_stride):
    for s in range(10):
        for u in range(2):
            a.ds(f"ds_read_b64_tr_b16 v[{16+4*s+2*u}:{17+4*s+2*u}], v4 offset:{(16*s+4*u)*pitch}", ("t", s))
        if s >= 5:
            pass
    a.e("v_mov_b32 v9, 0\ns_mov_b32 s42, 0x3f803f80")
    a.wait_ds_all()
    for s in range(10):
        a.e(f"buffer_store_dwordx4 v[{16+4*s}:{19+4*s}], v2, s[8:11], s{s_out} offen {ST_FLAG}")
        a.e(f"s_add_u32 s{s_out}, s{s_out}, s{s_stride}")
        for r in range(4):
            a.e(f"v_dot2_f32_bf16 v9, v{16+4*s+r}, s42, v9")


def gen_prep(name="prep_kernel"):
    a = Asm()
    a.e(f".globl {name}\n.p2align 8\n.type {name},@function\n{name}:")
    a.e(f"s_cmp_ge_u32 s2, {PREP_GRID}\ns_cbranch_scc1 LP_end")
    a.e("s_load_dwordx4 s[16:19], s[0:1], 0")
    a.e("s_load_dwordx2 s[20:21], s[0:1], 16")
    a.e("s_load_dwordx4 s[24:27], s[0:1], 32")
    a.e("s_load_dwordx2 s[28:29], s[0:1], 48")
    a.e("s_load_dwordx2 s[30:31], s[0:1], 72")
    a.e("v_and_b32 v1, 63, v0")
    a.e("v_lshlrev_b32 v2, 4, v1")
    a.e("v_lshrrev_b32 v3, 6, v0")
    a.e("v_readfirstlane_b32 s3, v3")
    a.e("s_waitcnt lgkmcnt(0)")
    srd(a, 8, 30, L.WS_USED)
    a.e(f"s_cmp_ge_u32 s2, {B_X}\ns_cbranch_scc1 LP_x")
    a.e(f"s_cmp_ge_u32 s2, {B_W2}\ns_cbranch_scc1 LP_w2")
    a.e(f"s_cmp_ge_u32 s2, {B_W13}\ns_cbranch_scc1 LP_w13")

    srd(a, 12, 18, 640 * 3840)
    a.e("s_and_b32 s32, s2, 15\ns_lshr_b32 s33, s2, 4")
    a.e("v_lshrrev_b32 v5, 4, v1\nv_and_b32 v6, 15, v1")
    a.e("v_mul_u32_u24 v7, 52, v6\nv_lshrrev_b32 v7, 8, v7")
    a.e("v_mul_u32_u24 v8, 5, v7\nv_sub_u32 v8, v6, v8")
    a.e("v_mul_u32_u24 v5, 3840, v5\nv_mul_u32_u24 v9, 1280, v7\nv_add_u32 v5, v5, v9")
    a.e("v_lshlrev_b32 v8, 4, v8\nv_add_u32 v5, v5, v8")
    a.e("v_mov_b32 v9, 0x80000000\nv_cmp_eq_u32 vcc, 15, v6\nv_cndmask_b32 v5, v5, v9, vcc")
    a.e(f"s_mul_i32 s34, s33, {160*3840}\ns_mul_i32 s35, s3, {40*3840}\ns_add_u32 s34, s34, s35")
    a.e("s_mul_i32 s35, s32, 80\ns_add_u32 s34, s34, s35")
    a.e("s_mul_i32 s36, s3, 10240")
    for n in range(10):
        a.e(f"s_add_u32 m0, s36, {n*1024}")
        a.e(f"buffer_load_dwordx4 v5, s[12:15], s34 offen lds")
        a.e(f"s_add_u32 s34, s34, {4*3840}")
    tabs = [[80 + 8 * c for c in range(8)],
            [144, 152, 224, 232, 240, 64, 72, 240],
            [160 + 8 * c for c in range(8)],
            [8 * c for c in range(8)]]
    pk = lambda t: (t[0] | t[1] << 8 | t[2] << 16 | t[3] << 24, t[4] | t[5] << 8 | t[6] << 16 | t[7] << 24)
    lo, hi = pk(tabs[0])
    a.e(f"s_mov_b32 s38, {lo}\ns_mov_b32 s39, {hi}")
    for t in range(1, 4):
        lo, hi = pk(tabs[t])
        a.e(f"s_cmp_eq_u32 s3, {t}\ns_cselect_b32 s38, {lo}, s38\ns_cselect_b32 s39, {hi}, s39")
    a.e("v_mov_b32 v6, s38\nv_mov_b32 v7, s39\nv_and_b32 v8, 16, v1\nv_cmp_ne_u32 vcc, 0, v8\nv_cndmask_b32 v6, v6, v7, vcc")
    a.e("v_and_b32 v8, 3, v1\nv_lshlrev_b32 v8, 3, v8\nv_lshrrev_b32 v6, v8, v6\nv_and_b32 v6, 0xff, v6")
    a.e("v_lshrrev_b32 v7, 5, v1\nv_lshlrev_b32 v7, 3, v7\nv_bfe_u32 v8, v1, 2, 2\nv_add_u32 v7, v7, v8")
    a.e("v_lshlrev_b32 v7, 8, v7\nv_add_u32 v4, v6, v7")
    a.e("s_mov_b32 s44, 1024\ns_cmp_lt_u32 s3, 3\ns_cselect_b32 s43, s3, 123\ns_cselect_b32 s44, 3072, s44")
    a.e(f"s_lshl_b32 s43, s43, 10\ns_mul_i32 s45, s32, {L.WQKV_STR}\ns_add_u32 s43, s43, s45\ns_add_u32 s43, s43, {L.WQKV}")
    a.e("s_mul_i32 s45, s44, 40\ns_add_u32 s46, s43, s45")
    a.e("s_mul_i32 s45, s44, 10\ns_mul_i32 s45, s45, s33\ns_add_u32 s43, s43, s45")
    a.e("s_waitcnt vmcnt(0)\ns_barrier")
    tr_pack32(a, 256, 43, 44)
    colsum_tail(a, 9, 33, 46)
    a.e("s_endpgm")

    a.e("LP_w13:")
    a.e(f"s_sub_u32 s32, s2, {B_W13}")
    a.e("s_mul_i32 s33, s32, 43\ns_lshr_b32 s33, s33, 10")
    a.e("s_mul_i32 s34, s33, 24\ns_sub_u32 s32, s32, s34")
    a.e("s_cmp_lt_u32 s3, 2\ns_cselect_b32 s22, s24, s26\ns_cselect_b32 s23, s25, s27")
    srd(a, 12, 22, 640 * 3072)
    a.e("v_lshrrev_b32 v5, 3, v1\nv_and_b32 v6, 7, v1")
    a.e("v_mul_u32_u24 v5, 3072, v5\nv_lshlrev_b32 v6, 4, v6\nv_add_u32 v5, v5, v6")
    a.e(f"s_mul_i32 s34, s33, {160*3072}\ns_and_b32 s35, s3, 1\ns_mul_i32 s35, s35, {80*3072}\ns_add_u32 s34, s34, s35")
    a.e("s_lshl_b32 s35, s32, 7\ns_add_u32 s34, s34, s35")
    a.e("s_mul_i32 s36, s3, 10240")
    for n in range(10):
        a.e(f"s_add_u32 m0, s36, {n*1024}")
        a.e(f"buffer_load_dwordx4 v5, s[12:15], s34 offen lds")
        a.e(f"s_add_u32 s34, s34, {8*3072}")
    a.e("v_bfe_u32 v6, v1, 4, 1\nv_mul_u32_u24 v6, 20480, v6")
    a.e("v_and_b32 v7, 1, v1\nv_lshlrev_b32 v7, 4, v7\nv_add_u32 v6, v6, v7")
    a.e("v_bfe_u32 v7, v1, 1, 1\nv_lshlrev_b32 v7, 3, v7\nv_add_u32 v6, v6, v7")
    a.e("s_lshl_b32 s35, s3, 5\nv_add_u32 v6, s35, v6")
    a.e("v_lshrrev_b32 v7, 5, v1\nv_lshlrev_b32 v7, 3, v7\nv_bfe_u32 v8, v1, 2, 2\nv_add_u32 v7, v7, v8")
    a.e("v_lshlrev_b32 v7, 7, v7\nv_add_u32 v4, v6, v7")
    a.e("s_lshl_b32 s37, s32, 2\ns_add_u32 s37, s37, s3")
    a.e("s_mul_i32 s38, s37, 43\ns_lshr_b32 s38, s38, 7")
    a.e("s_mul_i32 s39, s38, 3\ns_sub_u32 s39, s37, s39\ns_mov_b32 s44, 3072")
    a.e("s_sub_u32 s40, s37, 48\ns_lshr_b32 s41, s40, 1\ns_and_b32 s40, s40, 1\ns_add_u32 s40, s40, 123")
    a.e("s_cmp_ge_u32 s37, 48\ns_cselect_b32 s38, s41, s38\ns_cselect_b32 s39, s40, s39\ns_cselect_b32 s44, 2048, s44")
    a.e("s_sub_u32 s41, s37, 80")
    a.e("s_cmp_ge_u32 s37, 80\ns_cselect_b32 s38, s41, s38\ns_cselect_b32 s39, 205, s39\ns_cselect_b32 s44, 1024, s44")
    a.e(f"s_lshl_b32 s43, s39, 10\ns_mul_i32 s45, s38, {L.W13_STR}\ns_add_u32 s43, s43, s45\ns_add_u32 s43, s43, {L.W13}")
    a.e("s_mul_i32 s45, s44, 40\ns_add_u32 s46, s43, s45")
    a.e("s_mul_i32 s45, s44, 10\ns_mul_i32 s45, s45, s33\ns_add_u32 s43, s43, s45")
    a.e("s_waitcnt vmcnt(0)\ns_barrier")
    tr_pack32(a, 128, 43, 44)
    colsum_tail(a, 9, 33, 46)
    a.e("s_endpgm")

    a.e("LP_w2:")
    a.e(f"s_sub_u32 s32, s2, {B_W2}\ns_sub_u32 s33, s2, {B_WO}")
    a.e(f"s_cmp_ge_u32 s2, {B_WO}")
    a.e("s_cselect_b32 s32, s33, s32")
    a.e("s_cselect_b32 s22, s20, s28\ns_cselect_b32 s23, s21, s29")
    a.e(f"s_mov_b32 s34, {1536*1280}\ns_mov_b32 s35, {L.W2}\ns_mov_b32 s37, {L.W2_STR}")
    a.e(f"s_cselect_b32 s34, {640*1280}, s34")
    a.e(f"s_cselect_b32 s35, {L.WO}, s35\ns_cselect_b32 s37, {L.WO_STR}, s37")
    a.e("s_mov_b32 s12, s22\ns_and_b32 s13, s23, 0xffff\ns_mov_b32 s14, s34\ns_mov_b32 s15, 0x20000")
    a.e("s_mul_i32 s36, s3, 10240\ns_mul_i32 s34, s32, 40960\ns_add_u32 s34, s34, s36")
    for n in range(10):
        a.e(f"s_add_u32 m0, s36, {n*1024}")
        a.e(f"buffer_load_dwordx4 v2, s[12:15], s34 offen lds")
        a.e(f"s_add_u32 s34, s34, 1024")
    a.e("v_lshrrev_b32 v7, 4, v1\nv_lshlrev_b32 v7, 3, v7\nv_bfe_u32 v8, v1, 2, 2\nv_add_u32 v7, v7, v8")
    a.e("v_mul_u32_u24 v7, 1280, v7\ns_mul_i32 s38, s3, 320\nv_add_u32 v7, s38, v7")
    a.e("v_and_b32 v8, 3, v1\nv_lshl_add_u32 v4, v8, 4, v7\nv_lshl_add_u32 v5, v8, 3, v7")
    a.e("s_lshl_b32 s38, s3, 1\ns_mul_i32 s38, s38, s37\ns_add_u32 s43, s35, s38")
    a.e("s_mul_i32 s38, s32, 5120\ns_add_u32 s43, s43, s38")
    a.e("s_waitcnt vmcnt(0)\ns_barrier")
    for cc in range(2):
        for t in range(5):
            f = cc * 5 + t
            for u in range(2):
                if t < 4:
                    off = cc * 160 + (t >> 1) * 64 + (t & 1) * 8 + u * 4 * 1280
                    a.ds(f"ds_read_b64_tr_b16 v[{16+4*f+2*u}:{17+4*f+2*u}], v4 offset:{off}")
                else:
                    off = cc * 160 + 128 + u * 4 * 1280
                    a.ds(f"ds_read_b64_tr_b16 v[{16+4*f+2*u}:{17+4*f+2*u}], v5 offset:{off}")
    a.wait_ds_all()
    for cc in range(2):
        for t in range(5):
            f = cc * 5 + t
            if t < 4:
                a.e(f"buffer_store_dwordx4 v[{16+4*f}:{19+4*f}], v2, s[8:11], s43 offen offset:{t*1024} {ST_FLAG}")
            else:
                a.e("s_add_u32 s44, s43, 4096")
                a.e(f"buffer_store_dwordx4 v[{16+4*f}:{19+4*f}], v2, s[8:11], s44 offen {ST_FLAG}")
        a.e("s_add_u32 s43, s43, s37")
    a.e("s_endpgm")

    a.e("LP_x:")
    srd(a, 12, 16, 2048 * 1280)
    a.e(f"s_sub_u32 s32, s2, {B_X}")
    a.e("v_and_b32 v5, 7, v1\ns_lshl_b32 s33, s3, 3\nv_add_u32 v5, s33, v5")
    a.e("v_lshrrev_b32 v6, 3, v1")
    a.e("v_mul_u32_u24 v7, 1280, v5\nv_lshl_add_u32 v7, v6, 4, v7")
    a.e("s_mul_i32 s34, s32, 40960")
    for q in range(10):
        a.e(f"buffer_load_dwordx4 v[{16+4*q}:{19+4*q}], v7, s[12:15], s34 offen offset:{q*128}")
    a.e("v_mov_b32 v10, 0\nv_lshlrev_b32 v11, 8, v0\ns_lshl_b32 s35, s32, 12")
    a.e("v_cmp_gt_u32 vcc, 16, v0\ns_and_saveexec_b64 s[36:37], vcc\ns_cbranch_execz LP_nz")
    a.e(f"buffer_store_dword v10, v11, s[8:11], s35 offen {ST_FLAG}")
    a.e("LP_nz:\ns_mov_b64 exec, s[36:37]")
    a.e("v_lshlrev_b32 v8, 9, v6\nv_lshl_add_u32 v8, v5, 4, v8")
    a.e("v_lshlrev_b32 v9, 8, v6\nv_lshl_add_u32 v9, v5, 3, v9")
    a.e(f"s_add_u32 s34, s34, {L.LBASE + L.X}")
    a.e(f"s_lshl_b32 s38, s32, 11\ns_add_u32 s38, s38, {L.LBASE + L.ST}")
    a.e("s_mov_b32 s42, 0x3f803f80\nv_mov_b32 v12, 0")
    a.e("s_waitcnt vmcnt(0)")
    for q in range(10):
        a.e(f"buffer_store_dwordx4 v[{16+4*q}:{19+4*q}], v8, s[8:11], s34 offen {ST_FLAG}")
        a.e("s_add_u32 s34, s34, 4096")
        for r in range(4):
            a.e(f"v_dot2_f32_bf16 v12, v{16+4*q+r}, s42, v12")
    a.e(f"v_mul_f32 v12, {f32bits(1.0/80)}, v12")
    a.e("v_mov_b32 v14, 0\nv_mov_b32 v15, 0")
    for r in range(40):
        t = 60 + 2 * (r & 3)
        a.e(f"v_lshlrev_b32 v{t}, 16, v{16+r}\nv_and_b32 v{t+1}, 0xffff0000, v{16+r}")
        a.e(f"v_pk_add_f32 v[{t}:{t+1}], v[{t}:{t+1}], v[12:13] op_sel_hi:[1,0] neg_lo:[0,1] neg_hi:[0,1]")
        a.e(f"v_pk_fma_f32 v[14:15], v[{t}:{t+1}], v[{t}:{t+1}], v[14:15]")
    a.e("v_add_f32 v13, v14, v15")
    a.e(f"buffer_store_dwordx2 v[12:13], v9, s[8:11], s38 offen {ST_FLAG}")
    a.e("LP_end:\ns_endpgm")
    return a.text(), kd(name, 72, 64, 72)


if __name__ == "__main__":
    t, k = gen_prep()
    print(t)
```

```python
KB = 1024
CNT = 0
CNT_STRIDE = 256
C_X, C_KV, C_O, C_X1, C_H0, C_H1, C_H2 = range(7)
CNT_PER_LAYER = 8 * 64
NCNT = 2 * CNT_PER_LAYER
WQKV = 256 * KB
WQKV_STR = 164 * KB
WO = WQKV + 16 * WQKV_STR
WO_STR = 100 * KB
W13 = WO + 8 * WO_STR
W13_STR = 248 * KB
W2 = W13 + 16 * W13_STR
W2_STR = 240 * KB
LBASE = W2 + 8 * W2_STR
X = 0
ST = X + 2560 * KB
KV = ST + 128 * KB
KV_STR = 3584
O = KV + 896 * KB
X1 = O + 2560 * KB
ST1 = X1 + 2560 * KB
H = ST1 + 128 * KB
LSTR = H + 6144 * KB
WS_USED = LBASE + 2 * LSTR
```

```python
import sys, json
from gen_prep import gen_prep, PREP_GRID, PREP_LDS
from gen_main import gen_main

HDR = open("interleave_layers__linear_attn_block__glu_gated_swiglu__prompt.s.ref").read().split("; Override launch")[0]

def gen_all(cfg=None, only_prep=False):
    pt, pk = gen_prep("prep_kernel", (cfg or {}).get("cpf", True), (cfg or {}).get("tlb"))
    mt, mk, a = gen_main("main_kernel", cfg)
    s = HDR
    s += f"; @launch kernel=prep_kernel grid=({PREP_GRID},1,1) block=(256,1,1) lds={PREP_LDS}\n"
    if not only_prep:
        s += "; @launch kernel=main_kernel grid=(256,1,1) block=(256,1,1) lds=163840\n"
    s += '.amdgcn_target "amdgcn-amd-amdhsa--gfx950"\n.text\n'
    s += pt + mt
    s += '.section .rodata,"a"\n' + pk + mk
    return s

if __name__ == "__main__":
    cfg = json.loads(sys.argv[2]) if len(sys.argv) > 2 else {}
    open(sys.argv[1], "w").write(gen_all(cfg))
```

```python
from asmcore import *
import layout as L

RING = 156
P1S, SCR, P2S, P3S, P4S, TOT = 0, 164, 192, 292, 540, 780
FIX = RING * 1024
SCRB = (SCR % RING) * 1024
GC_OFF, GC_STR = SCRB, 3360
GB_OFF = GC_OFF + 4 * GC_STR
QT_OFF = GB_OFF + 5120
RS_OFF = FIX
Q1_OFF = FIX + 1024
assert QT_OFF + 4 * 2304 <= SCRB + 28 * 1024
LOG2E = 1.4426950408889634
SPIN = 400000

V_LANE, V_L16, V_T16, V_L16B, V_L16C = 1, 2, 3, 4, 5
V_STL, V_OST, V_HST, V_XS1, V_XS2, V_OUT1, V_OUT2 = 6, 7, 8, 9, 10, 11, 12
V_G0, V_G1, V_GBW, V_GBX, V_GBY = 13, 14, 15, 16, 17
V_QW3, V_QW1, V_QR, V_QR2 = 18, 19, 20, 21
V_C2, V_C3, V_LO = 22, 24, 26
V_RSW, V_RSR, V_STS = 27, 28, 29
V_RES = 32
V_MF = 52
V_ST = 56
V_ACC = 64
V_FIFO = 160
V_TMP = 208
S_W, S_I, S_J, S_LAY, S_LOFF, S_COFF, S_W1K = 3, 14, 15, 16, 17, 18, 19
S_SEG = {P1S: 20, P2S: 21, P3S: 22, P4S: 23}
S_TB32, S_TB16, S_TB32P = 24, 25, 26
S_XA, S_STA, S_OA, S_HA, S_XS, S_STS, S_OS = 27, 28, 29, 30, 31, 32, 33
S_HS = (34, 35, 36)
S_KVS, S_KVR, S_OUT, S_KVC = 38, 39, 40, 41
S_T = 44
S_M210 = 60
S_ONE = 62
S_POLL = 63
S_C256 = 42
SRD_WS, SRD_OUT, SRD_NX = 4, 8, 64
S_DBG = 68
S_A = 70
S_EPS2 = 76
S_ONE2 = 78
S_TS = 80


class Ring:
    def __init__(self, a):
        self.a = a
        self.next = 0
        self.pub = 0
        self.freed = 0
        self.cons = 0

    def seg(self, pos):
        p = pos % TOT
        for s, e in ((P1S, SCR), (P2S, P3S), (P3S, P4S), (P4S, TOT)):
            if s <= p < e:
                return s, p - s
        return None

    def can_dma(self):
        n = self.next
        if n % TOT == SCR:
            n += P2S - SCR
        return n + 4 - RING <= self.freed

    def dma(self):
        a = self.a
        if self.next % TOT == SCR:
            self.next += P2S - SCR
        pos = self.next
        assert pos + 4 - RING <= self.freed, (pos, self.freed)
        s, rel = self.seg(pos)
        srd = SRD_NX if pos >= TOT else SRD_WS
        a.e(f"s_add_u32 m0, s{S_W1K}, {(pos % RING) * 1024}")
        a.e(f"s_add_u32 s{S_T+15}, s{S_SEG[s]}, {rel * 1024}")
        a.vm(f"buffer_load_dwordx4 v{V_T16}, s[{srd}:{srd+3}], s{S_T+15} offen lds", ("dma", pos))
        self.next = pos + 4

    def dma_upto(self, limit, maxn=10 ** 9):
        n = 0
        while n < maxn and self.next < limit and self.can_dma():
            self.dma()
            n += 1
        return n

    def barrier(self, need, free_to=None):
        a = self.a
        assert need <= self.next or (self.next % TOT == SCR and need <= self.next + P2S - SCR), (need, self.next)
        a.wait_vm(lambda t: isinstance(t, tuple) and t[0] == "dma" and t[1] < need)
        a.e("s_barrier")
        out = [t[1] for t in a.vmq if isinstance(t, tuple) and t[0] == "dma"]
        self.pub = min(out) if out else self.next
        self.freed = max(self.freed, self.cons if free_to is None else free_to)

    def read(self, pos, reg):
        assert pos < self.pub, (pos, self.pub)
        addr = (pos % RING) * 1024
        base = (V_L16, V_L16B, V_L16C)[addr >> 16]
        self.a.ds(f"ds_read_b128 v[{reg}:{reg+3}], v{base} offset:{addr & 0xffff}", ("frag", pos))


def run_pass(a, ring, mf, fill, bars, depth, group=1, hook=None, fifo=V_FIFO):
    n = len(mf)

    def rd(m):
        if m in bars:
            ring.barrier(bars[m])
        ring.read(mf[m][0], fifo + 4 * (m % depth))

    for m in range(min(depth - 1, n)):
        rd(m)
    if hook:
        hook()
    for m in range(n):
        if m + depth - 1 < n:
            rd(m + depth - 1)
        if m % group == 0:
            last = min(m + group - 1, n - 1)
            a.wait_ds(("frag", mf[last][0]))
            ring.cons = mf[last][0] + 1
        mf[m][1](fifo + 4 * (m % depth))
        for f in fill.get(m, []):
            f()


def spread(fill, items, start, per):
    x = float(start)
    for it in items:
        fill.setdefault(int(x), []).append(it)
        x += 1.0 / per
    return int(x) + 1


def lines(a, text):
    return [(lambda t=t: a.e(t)) for t in text.strip().split("\n") if t.strip()]


def cnt_off(a, dst, kind, sidx, nextlayer=False):
    c = (kind * 64 + (L.CNT_PER_LAYER if nextlayer else 0)) * L.CNT_STRIDE
    a.e(f"s_lshl_b32 s{dst}, s{sidx}, 8\ns_add_u32 s{dst}, s{dst}, s{S_COFF}")
    if c:
        a.e(f"s_add_u32 s{dst}, s{dst}, {c}")


def signal(a, kind, sidx, nextlayer=False, inc=S_ONE):
    cnt_off(a, S_T + 13, kind, sidx, nextlayer)
    a.e(f"s_atomic_add s{inc}, s[12:13], s{S_T+13}")


def poll_issue(a, kind, sidx):
    cnt_off(a, S_T + 12, kind, sidx)
    a.e(f"s_mov_b32 s{S_POLL}, 0")
    a.e(f"s_atomic_add s{S_POLL}, s[12:13], s{S_T+12} glc")


def poll_check(a, shift=0, target=16):
    lp, ok = a.label("Lpoll"), a.label("Lok")
    a.e(f"s_mov_b32 s{S_T+11}, 0")
    a.e(f"{lp}:")
    a.e("s_waitcnt lgkmcnt(0)")
    a.lgq = []
    a.e(f"s_bfe_u32 s{S_POLL}, s{S_POLL}, {(8 << 16) | shift}")
    a.e(f"s_cmp_ge_u32 s{S_POLL}, {target}\ns_cbranch_scc1 {ok}")
    a.e(f"s_mov_b32 s{S_POLL}, 0")
    a.e(f"s_atomic_add s{S_POLL}, s[12:13], s{S_T+12} glc")
    a.e(f"s_add_u32 s{S_T+11}, s{S_T+11}, 1")
    a.e(f"s_cmp_lt_u32 s{S_T+11}, {SPIN}\ns_cbranch_scc1 {lp}")
    a.e("s_waitcnt lgkmcnt(0)")
    a.e(f"{ok}:")


def poll(a, kind, sidx, shift=0):
    poll_issue(a, kind, sidx)
    poll_check(a, shift)


def sched(a, ops, ntrans=1, nplain=2):
    done = {}
    gaps = []
    left = list(range(len(ops)))
    g = 0
    while left:
        t, p, cur = 0, 0, []
        for k in list(left):
            text, deps, tr = ops[k]
            if any(d not in done or done[d] >= g for d in deps):
                continue
            cost_ok = (2 * (t + (1 if tr else 0)) + p + (0 if tr else 1)) <= 2 * ntrans + nplain and (t + (1 if tr else 0)) <= ntrans
            if not cost_ok:
                continue
            cur.append(k)
            left.remove(k)
            if tr:
                t += 1
            else:
                p += 1
        for k in cur:
            done[k] = g
        gaps.append([(ops[k][0] if callable(ops[k][0]) else (lambda x=ops[k][0]: a.e(x))) for k in cur])
        g += 1
    return gaps


def aload(a, s, sbase_setup):
    if s % 4 == 0:
        sbase_setup(s)
    a.vm(f"buffer_load_dwordx4 a[{4*s}:{4*s+3}], v{V_L16}, s[{SRD_WS}:{SRD_WS+3}], s{S_A} offen offset:{(s%4)*1024} sc1", ("A", s))


def a_setup(a, rel_sgpr, const):
    def f(s):
        if s == 0:
            a.e(f"s_add_u32 s{S_A}, s{S_LOFF}, s{rel_sgpr}\ns_add_u32 s{S_A}, s{S_A}, {const}")
        else:
            a.e(f"s_add_u32 s{S_A}, s{S_A}, 4096")
    return f


def stats_load(a, const):
    a.e(f"s_add_u32 s{S_T}, s{S_LOFF}, s{S_STA}\ns_add_u32 s{S_T}, s{S_T}, {const}")
    for n in range(4):
        a.vm(f"buffer_load_dwordx2 v[{V_ST+2*n}:{V_ST+2*n+1}], v{V_STL}, s[{SRD_WS}:{SRD_WS+3}], s{S_T} offen offset:{n*256} sc1", "st")


def stats_math(a, t):
    S = V_ST
    f = [lambda: a.wait_vm("st")]
    f += lines(a, f"""
v_add_f32 v{t}, v{S}, v{S+2}
v_add_f32 v{t+1}, v{S+4}, v{S+6}
v_add_f32 v{t}, v{t}, v{t+1}
v_mov_b32 v{t+1}, v{t}
v_permlane32_swap_b32 v{t}, v{t+1}
v_add_f32 v{t}, v{t}, v{t+1}
v_mul_f32 v{t}, {f32bits(-0.125)}, v{t}
""")
    for n in range(4):
        f += lines(a, f"""
v_add_f32 v{t+1}, v{S+2*n}, v{t}
v_mul_f32 v{t+1}, v{t+1}, v{t+1}
v_fmac_f32 v{S+2*n+1}, {f32bits(80.0)}, v{t+1}
""")
    f += lines(a, f"""
v_add_f32 v{t+1}, v{S+1}, v{S+3}
v_add_f32 v{t+2}, v{S+5}, v{S+7}
v_add_f32 v{t+1}, v{t+1}, v{t+2}
v_mov_b32 v{t+2}, v{t+1}
v_permlane32_swap_b32 v{t+1}, v{t+2}
v_add_f32 v{t+1}, v{t+1}, v{t+2}
v_mov_b32 v{t+2}, {f32bits(1e-5)}
v_fmac_f32 v{t+2}, {f32bits(1.0/640)}, v{t+1}
v_rsq_f32 v{S}, v{t+2}
v_cvt_pk_bf16_f32 v{t+1}, v{t}, v{t}
v_and_b32 v{t+1}, 0xffff0000, v{t+1}
v_sub_f32 v{t+1}, v{t}, v{t+1}
v_cvt_pk_bf16_f32 v{V_MF}, v{t}, v{t+1}
v_mov_b32 v{V_MF+1}, v{V_MF}
v_mov_b32 v{V_MF+2}, v{V_MF}
v_mov_b32 v{V_MF+3}, v{V_MF}
""")
    return f


def stamp(a, n, cfg):
    if not cfg.get("timing"):
        return
    a.e(f"s_memtime s[{S_TS}:{S_TS+1}]")
    a.e("s_waitcnt lgkmcnt(0)")
    a.lgq = []
    a.e(f"s_lshl_b32 s{S_TS+1}, s{S_LAY}, 7\ns_add_u32 s{S_TS+1}, s{S_TS+1}, s{S_TS+2}")
    a.e(f"v_mov_b32 v31, s{S_TS}")
    a.e("s_mov_b64 exec, 1")
    a.vm(f"buffer_store_dword v31, v30, s[72:75], s{S_TS+1} offen offset:{4*n}", "stamp")
    a.e("s_mov_b64 exec, -1")


def phi_tile(a, acc, dst, R, RL, t, mixed):
    f = []
    for p in range(8):
        r = 2 * p
        u, e = t + 4 * (p & 1), t + 4 * (p & 1) + 2
        if mixed:
            f += lines(a, f"""
v_pk_fma_f32 v[{e}:{e+1}], v[{acc+r}:{acc+r+1}], v[{RL+r}:{RL+r+1}], v[{V_C2}:{V_C2+1}] op_sel_hi:[1,1,0]
v_pk_fma_f32 v[{u}:{u+1}], v[{acc+r}:{acc+r+1}], v[{R+r}:{R+r+1}], v[{V_C3}:{V_C3+1}] op_sel_hi:[1,1,0]
v_exp_f32 v{e}, v{e} clamp
v_exp_f32 v{e+1}, v{e+1} clamp
v_max_f32 v{u}, v{V_LO}, v{u}
v_max_f32 v{u+1}, v{V_LO}, v{u+1}
""")
        else:
            f += lines(a, f"""
v_pk_mul_f32 v[{e}:{e+1}], v[{acc+r}:{acc+r+1}], v[{RL+r}:{RL+r+1}]
v_pk_fma_f32 v[{u}:{u+1}], v[{acc+r}:{acc+r+1}], v[{R+r}:{R+r+1}], s[{S_EPS2}:{S_EPS2+1}]
v_exp_f32 v{e}, v{e} clamp
v_exp_f32 v{e+1}, v{e+1} clamp
v_max_f32 v{u}, s{S_EPS2}, v{u}
v_max_f32 v{u+1}, s{S_EPS2}, v{u+1}
""")
        f += lines(a, f"""
v_pk_add_f32 v[{u}:{u+1}], v[{u}:{u+1}], v[{e}:{e+1}]
v_cvt_pk_bf16_f32 v{dst+p}, v{u}, v{u+1}
""")
    return f


def set_exec(a, lo, hi):
    a.e(f"s_mov_b32 exec_lo, {lo:#x}\ns_mov_b32 exec_hi, {hi:#x}")


def lanemask(fn):
    m = 0
    for l in range(64):
        if fn(l):
            m |= 1 << l
    return m & 0xffffffff, m >> 32


INF = 10 ** 9
T32 = [V_ACC + 16 * t for t in range(6)]
P1_R, P1_RL = V_TMP, V_TMP + 16
P1_PT = [144, 152, 240]
P1_TT = 248


def mk32(a, t, s, wfirst):
    def f(b):
        if s < 40:
            a.wait_vm(("A", s))
        x = f"a[{4*s}:{4*s+3}]" if s < 40 else f"v[{V_MF}:{V_MF+3}]"
        c = "0" if s == 0 else f"v[{T32[t]}:{T32[t]+15}]"
        w = f"v[{b}:{b+3}]"
        p, q = (w, x) if wfirst else (x, w)
        a.e(f"v_mfma_f32_32x32x16_bf16 v[{T32[t]}:{T32[t]+15}], {p}, {q}, {c}")
    return f


def stats_fill(a, fill, cfg, kind, const, tail, polled=True):
    if polled:
        fill.setdefault(24, []).append(lambda: poll_issue(a, kind, S_TB32))
        fill.setdefault(48, []).extend([lambda: poll_check(a, 8), lambda: stats_load(a, const)])
    f = stats_math(a, P1_TT) + tail
    spread(fill, f, 84, 2)


def p1a(a, ring, cfg, first):
    AW = cfg.get("aw", 10)
    R, RL, tt = P1_R, P1_RL, P1_TT
    setup = a_setup(a, S_XA, L.X)
    mf = [(P1S + 3 * s + t, mk32(a, t, s, False)) for s in range(41) for t in range(3)]
    fill = {}
    tail = lines(a, f"v_mul_f32 v{tt}, {f32bits(LOG2E)}, v{V_ST}\nv_cmp_gt_u32 vcc, 32, v{V_LANE}\nv_cndmask_b32 v{tt}, v{tt}, v{V_ST}, vcc")
    tail += [lambda: a.ds(f"ds_write_b32 v{V_RSW}, v{tt}", "rs")]
    for i in range(4):
        tail += [lambda i=i: a.ds(f"ds_read_b128 v[{R+4*i}:{R+4*i+3}], v{V_RSR} offset:{32*i}", "rs")]
        tail += [lambda i=i: a.ds(f"ds_read_b128 v[{RL+4*i}:{RL+4*i+3}], v{V_RSR} offset:{128+32*i}", "rs")]
    z = lines(a, f"v_mov_b32 v{tt+4}, 0\nv_mov_b32 v{tt+5}, 0\nv_mov_b32 v{tt+6}, 0\nv_mov_b32 v{tt+7}, 0")
    z += [lambda: a.ds(f"ds_write_b128 v{V_T16}, v[{tt+4}:{tt+7}] offset:{GB_OFF}", "z"),
          lambda: a.ds(f"ds_write_b128 v{V_T16}, v[{tt+4}:{tt+7}] offset:{GB_OFF+1024}", "z")]
    spread(fill, z, 76, 2)
    if first:
        LA = cfg.get("la0", 3)
        items = []
        for blk in range(LA, 11):
            it = [lambda: ring.dma()] * (3 if blk < 10 else 1)
            it += [(lambda s=s: aload(a, s, setup)) for s in range(4 * blk, min(4 * blk + 4, 40))]
            spread(fill, it, 12 * (blk - LA), 7 / 12.0)
        spread(fill, [lambda: ring.dma()] * 10, 12 * (11 - LA), 0.45)
        bars = {12 * k: min(12 * k + 12, 123) for k in range(11)}
        stats_fill(a, fill, cfg, None, L.ST, tail, polled=False)
        hook = None
    else:
        for s in range(AW, 40):
            fill.setdefault(3 * (s - AW), []).append(lambda s=s: aload(a, s, setup))
        spread(fill, [lambda: ring.dma()] * 2, 96, 0.3)
        bars = {0: cfg.get("pub0", 60), 48: 123, 72: 123}
        stats_fill(a, fill, cfg, L.C_X, L.ST, tail)

        def hook():
            poll(a, L.C_X, S_TB32)
            stamp(a, 1, cfg)
            for s in range(AW):
                aload(a, s, setup)
    run_pass(a, ring, mf, fill, bars, cfg.get("d32", 9), 3, hook)
    assert ring.freed >= P2S - RING and ring.next == 164, (ring.freed, ring.next)


def p1rest(a, ring, cfg):
    T, R, RL, PT, tt = T32, P1_R, P1_RL, P1_PT, P1_TT
    stamp(a, 2, cfg)
    a.wait_ds("rs")
    for g in phi_tile(a, T[0], PT[0], R, RL, tt, False):
        g()
    for p in range(8):
        u = tt + 2 * (p & 3)
        a.e(f"v_pk_mul_f32 v[{u}:{u+1}], v[{T[2]+2*p}:{T[2]+2*p+1}], v[{R+2*p}:{R+2*p+1}]")
        a.e(f"v_cvt_pk_bf16_f32 v{PT[2]+p}, v{u}, v{u+1}")
    KVA = [64, 80, 96, 128]
    pairs = [(0, 2), (0, 1), (1, 2), (1, 1)]

    def kvm(b, u):
        x, y = pairs[b]
        c = "0" if u == 0 else f"v[{KVA[b]}:{KVA[b]+15}]"
        a.e(f"v_mfma_f32_32x32x16_bf16 v[{KVA[b]}:{KVA[b]+15}], v[{PT[x]+4*u}:{PT[x]+4*u+3}], v[{PT[y]+4*u}:{PT[y]+4*u+3}], {c}")
    kvm(0, 0)
    kvm(0, 1)
    for g in phi_tile(a, T[1], PT[1], R, RL, tt, True):
        g()
    for u in range(2):
        for b in (1, 2, 3):
            kvm(b, u)
    rho = lambda l, i: 8 * i + 4 * (l >> 5)
    for i in range(4):
        set_exec(a, *lanemask(lambda l: ((l & 31) < 20) == (rho(l, i) < 20)))
        a.ds(f"ds_write_b128 v{V_G0}, v[{KVA[0]+4*i}:{KVA[0]+4*i+3}] offset:{32*i}", "g")
    for i in range(4):
        set_exec(a, *lanemask(lambda l: (l & 31) == 16 or (8 <= (l & 31) < 16 and rho(l, i) >= 20)))
        a.ds(f"ds_write_b128 v{V_G1}, v[{KVA[1]+4*i}:{KVA[1]+4*i+3}] offset:{32*i}", "g")
    set_exec(a, *lanemask(lambda l: (l & 31) >= 20))
    a.ds(f"ds_write_b128 v{V_G0}, v[{KVA[2]}:{KVA[2]+3}] offset:128", "g")
    set_exec(a, *lanemask(lambda l: 8 <= (l & 31) <= 16))
    a.ds(f"ds_write_b128 v{V_G1}, v[{KVA[3]}:{KVA[3]+3}] offset:128", "g")
    a.e("s_mov_b64 exec, -1")
    a.wait_ds_all()
    ring.barrier(P1S + 164)
    for w in range(4):
        a.ds(f"ds_read_b128 v[{64+4*w}:{67+4*w}], v{V_T16} offset:{GC_OFF + w*GC_STR}", "g")
    a.e(f"s_add_u32 s{S_T}, s{S_LOFF}, s{S_KVS}")

    def kvstore():
        a.wait_ds("g")
        a.e("v_pk_add_f32 v[64:65], v[64:65], v[68:69]\nv_pk_add_f32 v[66:67], v[66:67], v[70:71]")
        a.e("v_pk_add_f32 v[72:73], v[72:73], v[76:77]\nv_pk_add_f32 v[74:75], v[74:75], v[78:79]")
        a.e("v_pk_add_f32 v[64:65], v[64:65], v[72:73]\nv_pk_add_f32 v[66:67], v[66:67], v[74:75]")
        a.e(f"s_mov_b64 exec, s[{S_M210}:{S_M210+1}]")
        a.vm(f"buffer_store_dwordx4 v[64:67], v{V_T16}, s[{SRD_WS}:{SRD_WS+3}], s{S_T} offen sc1", "kvst")
        set_exec(a, 0x0FF00000, 0x0FF00000)
        for i in range(4):
            a.ds(f"ds_write_b64 v{V_QW1}, v[{PT[1]+2*i}:{PT[1]+2*i+1}] offset:{16*i}", "q")
        a.e("s_mov_b64 exec, -1")
        stamp(a, 3, cfg)
    mf = [(P1S + 123 + s, mk32(a, 3, s, False)) for s in range(41)]
    fill = {}
    spread(fill, [lambda: ring.dma_upto(INF, 1)] * cfg.get("dma1b", 17), 0, 0.42)
    sigpos = cfg.get("kvsig", 24)
    fill.setdefault(sigpos, []).extend([lambda: a.wait_vm("kvst"), lambda: signal(a, L.C_KV, S_KVC)])
    run_pass(a, ring, mf, fill, {}, cfg.get("d32", 9), 3, kvstore)
    f = phi_tile(a, T[3], PT[0], R, RL, tt, False)
    for k, g in enumerate(f):
        g()
        if k == 8:
            poll_issue(a, L.C_KV, S_KVC)
    for i in range(4):
        a.ds(f"ds_write_b64 v{V_QW3}, v[{PT[0]+2*i}:{PT[0]+2*i+1}] offset:{16*i}", "q")
    stamp(a, 4, cfg)
    poll_check(a)
    stamp(a, 5, cfg)
    a.e(f"s_add_u32 s{S_T}, s{S_LOFF}, s{S_KVR}")
    a.e(f"s_mov_b64 exec, s[{S_M210}:{S_M210+1}]")
    for i in range(16):
        a.vm(f"buffer_load_dwordx4 v[{64+4*i}:{67+4*i}], v{V_T16}, s[{SRD_WS}:{SRD_WS+3}], s{S_T} offen sc1", ("kv", i))
        a.e(f"s_add_u32 s{S_T}, s{S_T}, {L.KV_STR}")
    a.e("s_mov_b64 exec, -1")
    PQ = 144
    for s in range(2):
        for u in range(2):
            a.ds(f"ds_read_b64_tr_b16 v[{PQ+4*s+2*u}:{PQ+4*s+2*u+1}], v{V_QR} offset:{(16*s+4*u)*72}", "pq")
    for u in range(2):
        a.ds(f"ds_read_b64_tr_b16 v[{PQ+8+2*u}:{PQ+8+2*u+1}], v{V_QR2} offset:{4*u*72}", "pq")
    ring.dma_upto(INF, cfg.get("dmakv", 4))
    for i in range(1, 16):
        a.wait_vm(("kv", i))
        a.e(f"v_pk_add_f32 v[64:65], v[64:65], v[{64+4*i}:{65+4*i}]\nv_pk_add_f32 v[66:67], v[66:67], v[{66+4*i}:{67+4*i}]")
    a.e("v_cvt_pk_bf16_f32 v68, v64, v65\nv_cvt_pk_bf16_f32 v69, v66, v67")
    a.e(f"s_mov_b64 exec, s[{S_M210}:{S_M210+1}]")
    a.ds(f"ds_write_b64 v{V_GBW}, v[68:69]", "gb")
    a.e("s_mov_b64 exec, -1")
    a.wait_ds_all()
    stamp(a, 28, cfg)
    ring.barrier(0)
    GX, GY, DX, DY = 208, 220, 64, 80
    for s in range(3):
        a.ds(f"ds_read_b128 v[{GY+4*s}:{GY+4*s+3}], v{V_GBY} offset:{32*s}", ("gy", s))
    for s in range(3):
        a.ds(f"ds_read_b128 v[{GX+4*s}:{GX+4*s+3}], v{V_GBX} offset:{32*s}", ("gx", s))
    for s in range(3):
        a.wait_ds(("gy", s))
        c = "0" if s == 0 else f"v[{DY}:{DY+15}]"
        a.e(f"v_mfma_f32_32x32x16_bf16 v[{DY}:{DY+15}], v[{GY+4*s}:{GY+4*s+3}], v[{PQ+4*s}:{PQ+4*s+3}], {c}")
    for s in range(3):
        a.wait_ds(("gx", s))
        c = "0" if s == 0 else f"v[{DX}:{DX+15}]"
        a.e(f"v_mfma_f32_32x32x16_bf16 v[{DX}:{DX+15}], v[{GX+4*s}:{GX+4*s+3}], v[{PQ+4*s}:{PQ+4*s+3}], {c}")
    a.e(f"s_add_u32 s{S_T}, s{S_LOFF}, s{S_OS}")
    r0, r1 = 232, 234
    a.e(f"v_add_f32 v{r0}, s{S_EPS2}, v{DY+8}\nv_add_f32 v{r1}, s{S_EPS2}, v{DY+9}")
    a.e(f"v_rcp_f32 v{r0}, v{r0}\nv_rcp_f32 v{r1}, v{r1}")
    OP = 236
    for (src, rr, dst, off) in ((DY, (r0, r1), OP + 8, 512), (DX, (r0, r0), OP, 0), (DX + 8, (r1, r1), OP + 4, 768)):
        for p in range(4):
            r = rr[p >> 1]
            a.e(f"v_pk_mul_f32 v[{src+2*p}:{src+2*p+1}], v[{src+2*p}:{src+2*p+1}], v[{r}:{r+1}] op_sel_hi:[1,0]")
        for p in range(4):
            a.e(f"v_cvt_pk_bf16_f32 v{dst+p}, v{src+2*p}, v{src+2*p+1}")
        if off == 512:
            a.e("s_mov_b32 exec_hi, 0")
        a.vm(f"buffer_store_dwordx4 v[{dst}:{dst+3}], v{V_OST}, s[{SRD_WS}:{SRD_WS+3}], s{S_T} offen offset:{off} sc1", "ost")
        if off == 512:
            a.e("s_mov_b64 exec, -1")
    stamp(a, 29, cfg)
    ring.dma_upto(INF, cfg.get("dmao", 8))
    a.wait_vm("ost")
    signal(a, L.C_O, S_TB32)
    ring.dma_upto(INF)
    ring.cons = P2S
    stamp(a, 6, cfg)


def out_epilogue(a, ring, cfg, xconst, stconst, kind, nextlayer, final_branch):
    P = V_TMP
    a.e(f"s_add_u32 s{S_T}, s{S_LOFF}, s{S_XS}\ns_add_u32 s{S_T}, s{S_T}, {xconst}")
    for p in range(10):
        a.e(f"v_cvt_pk_bf16_f32 v{P+p}, v{V_RES+2*p}, v{V_RES+2*p+1}")
    if final_branch:
        a.e(f"s_cmp_eq_u32 s{S_LAY}, 1\ns_cbranch_scc1 L_final")
    a.vm(f"buffer_store_dwordx4 v[{P}:{P+3}], v{V_XS1}, s[{SRD_WS}:{SRD_WS+3}], s{S_T} offen sc1", "xst")
    a.vm(f"buffer_store_dwordx4 v[{P+4}:{P+7}], v{V_XS1}, s[{SRD_WS}:{SRD_WS+3}], s{S_T} offen offset:2048 sc1", "xst")
    a.vm(f"buffer_store_dwordx2 v[{P+8}:{P+9}], v{V_XS2}, s[{SRD_WS}:{SRD_WS+3}], s{S_T} offen sc1", "xst")
    ring.barrier(0)
    f = []
    for p in range(10):
        f += lines(a, f"v_lshlrev_b32 v{V_RES+2*p}, 16, v{P+p}\nv_and_b32 v{V_RES+2*p+1}, 0xffff0000, v{P+p}")
    t = V_TMP + 16
    f += lines(a, f"v_pk_add_f32 v[{t}:{t+1}], v[{V_RES}:{V_RES+1}], v[{V_RES+2}:{V_RES+3}]")
    f += lines(a, f"v_pk_add_f32 v[{t+2}:{t+3}], v[{V_RES+4}:{V_RES+5}], v[{V_RES+6}:{V_RES+7}]")
    for p in range(4, 10):
        d = t + 2 * (p & 1)
        f += lines(a, f"v_pk_add_f32 v[{d}:{d+1}], v[{d}:{d+1}], v[{V_RES+2*p}:{V_RES+2*p+1}]")
    f += lines(a, f"v_pk_add_f32 v[{t}:{t+1}], v[{t}:{t+1}], v[{t+2}:{t+3}]\nv_add_f32 v{t}, v{t}, v{t+1}")

    def red(x, y):
        return lines(a, f"v_mov_b32 v{y}, v{x}\nv_permlane16_swap_b32 v{x}, v{y}\nv_add_f32 v{x}, v{x}, v{y}\n"
                        f"v_mov_b32 v{y}, v{x}\nv_permlane32_swap_b32 v{x}, v{y}\nv_add_f32 v{x}, v{x}, v{y}")
    f += red(t, t + 1)
    f += lines(a, f"v_mul_f32 v{t}, {f32bits(1.0/80)}, v{t}")
    q = t + 4
    for p in range(10):
        d = t + 8 + 2 * (p & 3)
        f += lines(a, f"v_pk_add_f32 v[{d}:{d+1}], v[{V_RES+2*p}:{V_RES+2*p+1}], v[{t}:{t+1}] op_sel_hi:[1,0] neg_lo:[0,1] neg_hi:[0,1]")
        qq = q + 2 * (p & 1)
        if p < 2:
            f += lines(a, f"v_pk_mul_f32 v[{qq}:{qq+1}], v[{d}:{d+1}], v[{d}:{d+1}]")
        else:
            f += lines(a, f"v_pk_fma_f32 v[{qq}:{qq+1}], v[{d}:{d+1}], v[{d}:{d+1}], v[{qq}:{qq+1}]")
    f += lines(a, f"v_pk_add_f32 v[{q}:{q+1}], v[{q}:{q+1}], v[{q+2}:{q+3}]\nv_add_f32 v{t+1}, v{q}, v{q+1}")
    f += red(t + 1, t + 2)
    for k, g in enumerate(f):
        g()
        if k % 12 == 0:
            ring.dma_upto(INF, 1)
    a.e(f"s_add_u32 s{S_T}, s{S_LOFF}, s{S_STS}\ns_add_u32 s{S_T}, s{S_T}, {stconst}")
    a.e("s_mov_b64 exec, 0xffff")
    a.vm(f"buffer_store_dwordx2 v[{t}:{t+1}], v{V_STS}, s[{SRD_WS}:{SRD_WS+3}], s{S_T} offen sc1", "sst")
    a.e("s_mov_b64 exec, -1")
    ring.dma_upto(INF, cfg.get("dma_after_st", 3))
    a.wait_vm("xst")
    signal(a, kind, S_TB32P, nextlayer)
    ring.dma_upto(INF, cfg.get("dma_after_sig", 6))
    a.wait_vm("sst")
    signal(a, kind, S_TB32P, nextlayer, S_C256)
    ring.dma_upto(INF)


def mk16(a, t, s):
    def f(b):
        a.wait_vm(("A", s))
        c = V_RES + 4 * t
        a.e(f"v_mfma_f32_16x16x32_bf16 v[{c}:{c+3}], v[{b}:{b+3}], a[{4*s}:{4*s+3}], v[{c}:{c+3}]")
    return f


def phase2(a, ring, cfg):
    AW = cfg.get("aw2", 12)
    setup = a_setup(a, S_OA, L.O)
    mf = [(P2S + 5 * s + t, mk16(a, t, s)) for s in range(20) for t in range(5)]
    fill = {}
    for s in range(AW, 20):
        fill.setdefault(4 * (s - AW), []).append(lambda s=s: aload(a, s, setup))
    spread(fill, [lambda: ring.dma_upto(INF, 1)] * 7, 45, 0.2)

    def hook():
        poll(a, L.C_O, S_TB32P)
        stamp(a, 7, cfg)
        for s in range(AW):
            aload(a, s, setup)
    run_pass(a, ring, mf, fill, {0: P2S + 100}, cfg.get("d16", 15), 5, hook, V_ACC)
    stamp(a, 8, cfg)
    out_epilogue(a, ring, cfg, L.X1, L.ST1, L.C_X1, False, False)
    stamp(a, 9, cfg)


def silu_ops(a, tiles, inst):
    NRL, VA = V_ST + 2, V_ST + 4
    ops = [(f"s_add_u32 s{S_T+1}, s{S_LOFF}, s{S_HS[inst]}", [], False)]
    last_e = {}
    for n, t in enumerate(tiles):
        acc, dst = T32[t], V_TMP + 4 * t
        hs = []
        for r in range(8):
            g, u = acc + r, acc + 8 + r
            e = V_TMP + 24 + (8 * n + r) % 16
            b = len(ops)
            ops.append((f"v_mul_f32 v{e}, v{g}, v{NRL}", [last_e[e]] if e in last_e else [], False))
            ops.append((f"v_exp_f32 v{e}, v{e}", [b], True))
            ops.append((f"v_mul_f32 v{g}, v{g}, v{u}", [b], False))
            ops.append((f"v_fma_f32 v{e}, v{e}, v{VA}, v{VA}", [b + 1], False))
            ops.append((f"v_rcp_f32 v{e}, v{e}", [b + 3], True))
            ops.append((f"v_mul_f32 v{g}, v{g}, v{e}", [b + 2, b + 4], False))
            last_e[e] = b + 5
            hs.append(b + 5)
            if r & 1:
                ops.append((f"v_cvt_pk_bf16_f32 v{dst + (r >> 1)}, v{g-1}, v{g}", [hs[-2], hs[-1]], False))
                hs.append(len(ops) - 1)
                hs = hs[-1:] + [x for x in hs[:-3]]
        cv = [k for k in range(len(ops)) if isinstance(ops[k][0], str) and ops[k][0].startswith("v_cvt_pk") and dst <= int(ops[k][0].split()[1][1:-1]) < dst + 4]
        ops.append(((lambda d=dst, n=n: a.vm(f"buffer_store_dwordx4 v[{d}:{d+3}], v{V_HST}, s[{SRD_WS}:{SRD_WS+3}], s{S_T+1} offen offset:{512*n} sc1", ("hst", inst))), cv + [0], False))
    return ops


def phase3(a, ring, cfg):
    AW = cfg.get("aw", 10)
    setup = a_setup(a, S_XA, L.X1)
    mf = [(P3S + 3 * s + t, mk32(a, t, s, True)) for s in range(41) for t in range(3)]
    mf += [(P3S + 123 + 2 * s + t, mk32(a, 3 + t, s, True)) for s in range(41) for t in range(2)]
    mf += [(P3S + 205 + s, mk32(a, 5, s, True)) for s in range(41)]
    fill = {}
    for s in range(AW, 40):
        fill.setdefault(3 * (s - AW), []).append(lambda s=s: aload(a, s, setup))
    tail = lines(a, f"v_mul_f32 v{V_ST+2}, {f32bits(-LOG2E)}, v{V_ST}\nv_mov_b32 v{V_ST+4}, v{P1_TT+2}")
    stats_fill(a, fill, cfg, L.C_X1, L.ST1, tail)
    nt, npl = cfg.get("epi", (1, 2))
    g0 = sched(a, silu_ops(a, [0, 1, 2], 0), nt, npl)
    for k, g in enumerate(g0):
        fill.setdefault(125 + k, []).extend(g)
    e0 = 125 + len(g0)
    assert e0 <= 206, e0
    g1 = sched(a, silu_ops(a, [3, 4], 1), nt, npl)
    for k, g in enumerate(g1):
        fill.setdefault(min(207 + k, 245), []).extend(g)
    fill.setdefault(min(e0 + 30, 222), []).extend([lambda: a.wait_vm(("hst", 0)), lambda: signal(a, L.C_H0, S_TB32)])
    bars = {0: P3S + cfg.get("pub0", 60)}
    for b in range(48, 246, 24):
        bars[b] = min(P3S + b + 24, P3S + 246)
    dm = [lambda: ring.dma_upto(INF, 1)]
    spread(fill, dm * 4, 50, 0.1)
    spread(fill, dm * 70, 90, cfg.get("dma3", 0.42))
    if cfg.get("fine"):
        for n, idx in enumerate((0, 40, 80, 122, 163, 204)):
            fill.setdefault(idx, []).append(lambda n=n: stamp(a, 16 + n, cfg))

    def hook():
        poll(a, L.C_X1, S_TB32)
        stamp(a, 10, cfg)
        for s in range(AW):
            aload(a, s, setup)
    run_pass(a, ring, mf, fill, bars, cfg.get("d32", 9), 3, hook)
    stamp(a, 11, cfg)
    poll_issue(a, L.C_H0, S_TB32P)
    for g in sched(a, silu_ops(a, [5], 2), 2, 3):
        for x in g:
            x()
    ring.cons = P4S
    stamp(a, 12, cfg)


def phase4(a, ring, cfg):
    AW = cfg.get("aw4", 12)
    setup = a_setup(a, S_HA, L.H)
    mf = [(P4S + 5 * s + t, mk16(a, t, s)) for s in range(48) for t in range(5)]
    fill = {}
    for s in range(AW, 48):
        k = 5 * (s - AW)
        if s in (24, 40):
            kind = L.C_H1 if s == 24 else L.C_H2
            fill.setdefault(max(k - 35, 1), []).append(lambda kind=kind: poll_issue(a, kind, S_TB32P))
            fill.setdefault(k, []).append(lambda: poll_check(a))
        fill.setdefault(k, []).append(lambda s=s: aload(a, s, setup))
    bars = {}
    for b in range(0, 240, 30):
        bars[b] = min(P4S + b + 30, P4S + 240)
    dm = [lambda: ring.dma_upto(INF, 1)] * 60
    spread(fill, dm, 2, cfg.get("dma4", 0.25))
    if cfg.get("fine"):
        for n, idx in enumerate((0, 40, 80, 120, 160, 200)):
            fill.setdefault(idx, []).append(lambda n=n: stamp(a, 22 + n, cfg))

    def hook():
        poll_check(a)
        stamp(a, 13, cfg)
        for s in range(AW):
            aload(a, s, setup)
        a.wait_vm(("hst", 1))
        signal(a, L.C_H1, S_TB32)
        a.wait_vm(("hst", 2))
        signal(a, L.C_H2, S_TB32)
    run_pass(a, ring, mf, fill, bars, cfg.get("d16", 15), 5, hook, V_ACC)
    stamp(a, 14, cfg)
    out_epilogue(a, ring, cfg, L.LSTR + L.X, L.LSTR + L.ST, L.C_X, True, True)
    stamp(a, 15, cfg)

def gen_main(name="main_kernel", cfg=None):
    cfg = cfg or {}
    a = Asm()
    ring = Ring(a)
    a.e(f".globl {name}\n.p2align 8\n.type {name},@function\n{name}:")
    a.e("s_cmp_ge_u32 s2, 256\ns_cbranch_scc1 L_end")
    a.e("s_load_dwordx2 s[44:45], s[0:1], 56\ns_load_dwordx2 s[12:13], s[0:1], 72")
    a.e(f"v_and_b32 v{V_LANE}, 63, v0\nv_lshlrev_b32 v{V_L16}, 4, v{V_LANE}\nv_lshlrev_b32 v{V_T16}, 4, v0")
    a.e(f"v_lshrrev_b32 v30, 6, v0\nv_readfirstlane_b32 s{S_W}, v30")
    a.e(f"s_and_b32 s46, s2, 6\ns_lshl_b32 s46, s46, 1\ns_lshr_b32 s47, s2, 3\ns_and_b32 s47, s47, 3\ns_add_u32 s{S_I}, s46, s47")
    a.e(f"s_and_b32 s46, s2, 1\ns_lshl_b32 s46, s46, 3\ns_lshr_b32 s47, s2, 5\ns_add_u32 s{S_J}, s46, s47")
    a.e(f"s_lshl_b32 s{S_W1K}, s{S_W}, 10")
    a.e(f"s_lshr_b32 s48, s{S_J}, 1\ns_and_b32 s49, s{S_J}, 1")
    a.e(f"s_mul_i32 s20, s{S_J}, {L.WQKV_STR}\ns_add_u32 s20, s20, {L.WQKV}")
    a.e(f"s_mul_i32 s21, s48, {L.WO_STR}\ns_add_u32 s21, s21, {L.WO}")
    a.e(f"s_mul_i32 s22, s{S_J}, {L.W13_STR}\ns_add_u32 s22, s22, {L.W13}")
    a.e(f"s_mul_i32 s23, s48, {L.W2_STR}\ns_add_u32 s23, s23, {L.W2}")
    a.e("s_waitcnt lgkmcnt(0)")
    for d in (SRD_WS, SRD_NX):
        a.e(f"s_mov_b32 s{d}, s12\ns_and_b32 s{d+1}, s13, 0xffff\ns_mov_b32 s{d+2}, {L.WS_USED}\ns_mov_b32 s{d+3}, 0x20000")
    a.e(f"s_mov_b32 s8, s44\ns_and_b32 s9, s45, 0xffff\ns_mov_b32 s10, {2048*1280}\ns_mov_b32 s11, 0x20000")
    a.e(f"s_mov_b32 s{S_LAY}, 0\ns_mov_b32 s{S_LOFF}, {L.LBASE}\ns_mov_b32 s{S_COFF}, 0")
    if cfg.get("timing"):
        a.e(f"s_add_u32 s72, s12, {cfg['timing']}\ns_addc_u32 s73, s13, 0\ns_and_b32 s73, s73, 0xffff\ns_mov_b32 s74, {1024*256}\ns_mov_b32 s75, 0x20000")
        a.e(f"s_lshl_b32 s{S_TS+2}, s2, 2\ns_add_u32 s{S_TS+2}, s{S_TS+2}, s{S_W}\ns_lshl_b32 s{S_TS+2}, s{S_TS+2}, 8\nv_mov_b32 v30, 0")
    stamp(a, 0, cfg)
    ring.freed = 0
    a.e(f"s_lshl_b32 s{S_TB32}, s{S_I}, 2\ns_add_u32 s{S_TB32}, s{S_TB32}, s{S_W}")
    a.e(f"s_mul_i32 s{S_XA}, s{S_TB32}, 40960\ns_lshl_b32 s{S_STA}, s{S_TB32}, 11")
    setup0 = a_setup(a, S_XA, L.X)
    for blk in range(cfg.get("la0", 3)):
        for k in range(3):
            ring.dma()
        for s_ in range(4 * blk, 4 * blk + 4):
            aload(a, s_, setup0)
    a.e(f"s_lshl_b32 s{S_TB16}, s{S_I}, 3\ns_lshl_b32 s46, s49, 2\ns_add_u32 s{S_TB16}, s{S_TB16}, s46\ns_add_u32 s{S_TB16}, s{S_TB16}, s{S_W}")
    a.e(f"s_lshr_b32 s{S_TB32P}, s{S_TB16}, 1")
    a.e(f"s_mul_i32 s{S_OA}, s{S_TB16}, 20480\ns_mul_i32 s{S_HA}, s{S_TB16}, 49152")
    a.e(f"s_and_b32 s50, s{S_TB16}, 1")
    a.e(f"s_mul_i32 s{S_XS}, s{S_TB32P}, 40960\ns_mul_i32 s46, s48, 5120\ns_add_u32 s{S_XS}, s{S_XS}, s46\ns_lshl_b32 s46, s50, 8\ns_add_u32 s{S_XS}, s{S_XS}, s46")
    a.e(f"s_lshl_b32 s{S_STS}, s{S_TB32P}, 11\ns_lshl_b32 s46, s48, 8\ns_add_u32 s{S_STS}, s{S_STS}, s46\ns_lshl_b32 s46, s50, 7\ns_add_u32 s{S_STS}, s{S_STS}, s46")
    a.e(f"s_mul_i32 s{S_OS}, s{S_TB32}, 40960\ns_mul_i32 s46, s{S_J}, 1280\ns_add_u32 s{S_OS}, s{S_OS}, s46\ns_add_u32 s{S_OS}, s{S_OS}, {L.O}")
    a.e(f"s_mul_i32 s47, s{S_TB32}, {2*49152}\ns_add_u32 s47, s47, {L.H}")
    a.e(f"s_mul_i32 s46, s{S_J}, 1536\ns_add_u32 s{S_HS[0]}, s47, s46")
    a.e(f"s_lshl_b32 s46, s{S_J}, 10\ns_add_u32 s46, s46, {48*512}\ns_add_u32 s{S_HS[1]}, s47, s46")
    a.e(f"s_lshl_b32 s46, s{S_J}, 9\ns_add_u32 s46, s46, {80*512}\ns_add_u32 s{S_HS[2]}, s47, s46")
    a.e(f"s_mul_i32 s{S_KVR}, s{S_J}, {16*L.KV_STR}\ns_add_u32 s{S_KVR}, s{S_KVR}, {L.KV}")
    a.e(f"s_mul_i32 s46, s{S_I}, {L.KV_STR}\ns_add_u32 s{S_KVS}, s{S_KVR}, s46")
    a.e(f"s_mul_i32 s{S_OUT}, s{S_TB16}, {16*1280}\ns_mul_i32 s46, s48, 160\ns_add_u32 s{S_OUT}, s{S_OUT}, s46")
    a.e(f"s_lshl_b32 s{S_KVC}, s{S_J}, 2\ns_add_u32 s{S_KVC}, s{S_KVC}, s{S_W}")
    a.e(f"s_mov_b32 s{S_ONE}, 1\ns_mov_b32 s{S_C256}, 256")
    a.e(f"s_mov_b32 s{S_EPS2}, {f32bits(1e-6)}\ns_mov_b32 s{S_EPS2+1}, {f32bits(1e-6)}\ns_mov_b32 s{S_ONE2}, 1.0\ns_mov_b32 s{S_ONE2+1}, 1.0")
    a.e(f"v_mov_b32 v31, 210\nv_cmp_gt_u32 s[{S_M210}:{S_M210+1}], v31, v0")
    tok, hf, t16, g, x, y, z = 208, 209, 210, 211, 212, 213, 214
    ln = V_LANE
    a.e(f"v_add_u32 v{V_L16B}, 0x10000, v{V_L16}\nv_add_u32 v{V_L16C}, 0x20000, v{V_L16}")
    a.e(f"v_and_b32 v{tok}, 31, v{ln}\nv_lshrrev_b32 v{hf}, 5, v{ln}\nv_and_b32 v{t16}, 15, v{ln}\nv_lshrrev_b32 v{g}, 4, v{ln}")
    a.e(f"v_lshlrev_b32 v{x}, 10, v{hf}\nv_lshl_add_u32 v{V_STL}, v{tok}, 3, v{x}")
    a.e(f"v_lshlrev_b32 v{x}, 8, v{hf}\nv_lshl_add_u32 v{x}, v{t16}, 4, v{x}\nv_bfe_u32 v{y}, v{ln}, 4, 1")
    a.e(f"v_mul_u32_u24 v{z}, 20480, v{y}\nv_add_u32 v{V_OST}, v{x}, v{z}")
    a.e(f"v_mul_u32_u24 v{z}, 49152, v{y}\nv_add_u32 v{V_HST}, v{x}, v{z}")
    a.e(f"v_lshlrev_b32 v{x}, 9, v{g}\nv_lshl_add_u32 v{V_XS1}, v{t16}, 4, v{x}")
    a.e(f"v_lshlrev_b32 v{x}, 9, v{hf}\nv_lshl_add_u32 v{x}, v{t16}, 4, v{x}\nv_lshl_add_u32 v{x}, v{y}, 3, v{x}\nv_add_u32 v{V_XS2}, 4096, v{x}")
    a.e(f"v_mul_u32_u24 v{x}, 1280, v{t16}\nv_lshl_add_u32 v{V_OUT1}, v{g}, 4, v{x}\nv_lshl_add_u32 v{x}, v{g}, 3, v{x}\nv_add_u32 v{V_OUT2}, 128, v{x}")
    a.e(f"v_lshlrev_b32 v{V_STS}, 3, v{ln}")
    a.e(f"s_add_u32 s{S_T}, s{S_XS}, {L.LBASE + L.X}")
    P = 128
    a.vm(f"buffer_load_dwordx4 v[{P}:{P+3}], v{V_XS1}, s[{SRD_WS}:{SRD_WS+3}], s{S_T} offen", "res")
    a.vm(f"buffer_load_dwordx4 v[{P+4}:{P+7}], v{V_XS1}, s[{SRD_WS}:{SRD_WS+3}], s{S_T} offen offset:2048", "res")
    a.vm(f"buffer_load_dwordx2 v[{P+8}:{P+9}], v{V_XS2}, s[{SRD_WS}:{SRD_WS+3}], s{S_T} offen", "res")
    stats_load(a, L.ST)
    a.e(f"s_mul_i32 s46, s{S_W}, {GC_STR}\ns_add_u32 s46, s46, {GC_OFF}")
    a.e(f"v_mul_u32_u24 v{x}, 80, v{tok}\nv_lshl_add_u32 v{x}, v{hf}, 4, v{x}\nv_add_u32 v{x}, s46, v{x}")
    a.e(f"v_subrev_u32 v{y}, 80, v{x}\nv_cmp_le_u32 vcc, 20, v{tok}\nv_cndmask_b32 v{V_G0}, v{x}, v{y}, vcc")
    a.e(f"v_add_u32 v{x}, {24*80}, v{x}\nv_subrev_u32 v{y}, 80, v{x}\nv_cmp_gt_u32 vcc, 16, v{tok}\nv_cndmask_b32 v{V_G1}, v{x}, v{y}, vcc")
    a.e(f"v_mul_u32_u24 v{x}, 205, v0\nv_lshrrev_b32 v{x}, 10, v{x}\nv_mul_u32_u24 v{y}, 5, v{x}\nv_sub_u32 v{y}, v0, v{y}")
    a.e(f"v_mul_u32_u24 v{z}, 112, v{x}\nv_lshl_add_u32 v{z}, v{y}, 3, v{z}\nv_add_u32 v{z}, {GB_OFF}, v{z}\nv_add_u32 v{y}, 40, v{z}")
    a.e(f"v_cmp_le_u32 vcc, 20, v{x}\nv_cndmask_b32 v{y}, v{z}, v{y}, vcc\nv_cmp_eq_u32 vcc, 40, v{x}\nv_cndmask_b32 v{V_GBW}, v{y}, v{z}, vcc")
    a.e(f"v_lshrrev_b32 v{x}, 4, v{tok}\nv_mul_u32_u24 v{x}, 24, v{x}\nv_bfe_u32 v{y}, v{tok}, 2, 1\nv_lshl_add_u32 v{x}, v{y}, 3, v{x}")
    a.e(f"v_bfe_u32 v{y}, v{tok}, 3, 1\nv_lshl_add_u32 v{x}, v{y}, 2, v{x}\nv_and_b32 v{z}, 3, v{tok}\nv_add_u32 v{x}, v{x}, v{z}")
    a.e(f"v_mul_u32_u24 v{x}, 112, v{x}\nv_lshl_add_u32 v{x}, v{hf}, 4, v{x}\nv_add_u32 v{V_GBX}, {GB_OFF}, v{x}")
    a.e(f"v_lshl_add_u32 v{x}, v{y}, 2, v{z}\nv_add_u32 v{x}, 16, v{x}\nv_mov_b32 v{y}, 42")
    a.e(f"v_and_b32 v215, 0x14, v{tok}\nv_cmp_eq_u32 vcc, 0, v215\nv_cndmask_b32 v{y}, v{y}, v{x}, vcc")
    a.e(f"v_add_u32 v{x}, 40, v{z}\nv_and_b32 v215, 0x1a, v{tok}\nv_cmp_eq_u32 vcc, 16, v215\nv_cndmask_b32 v{y}, v{y}, v{x}, vcc")
    a.e(f"v_mul_u32_u24 v{x}, 112, v{y}\nv_lshl_add_u32 v{x}, v{hf}, 4, v{x}\nv_add_u32 v{V_GBY}, {GB_OFF}, v{x}")
    a.e(f"s_mul_i32 s46, s{S_W}, 2304\ns_add_u32 s46, s46, {QT_OFF}\ns_mul_i32 s47, s{S_W}, 576\ns_add_u32 s47, s47, {Q1_OFF}")
    a.e(f"v_mul_u32_u24 v{x}, 72, v{tok}\nv_lshl_add_u32 v{x}, v{hf}, 3, v{x}\nv_add_u32 v{V_QW3}, s46, v{x}")
    a.e(f"v_add_u32 v{x}, s47, v{x}\nv_subrev_u32 v{V_QW1}, {20*72}, v{x}")
    a.e(f"v_bfe_u32 v{x}, v{ln}, 2, 2\nv_mul_u32_u24 v{x}, 72, v{x}\nv_bfe_u32 v{y}, v{ln}, 4, 1\nv_lshl_add_u32 v{x}, v{y}, 5, v{x}")
    a.e(f"v_and_b32 v{y}, 3, v{ln}\nv_lshl_add_u32 v{x}, v{y}, 3, v{x}\nv_add_u32 v{V_QR2}, s47, v{x}")
    a.e(f"v_mul_u32_u24 v{y}, {8*72}, v{hf}\nv_add_u32 v{x}, v{x}, v{y}\nv_add_u32 v{V_QR}, s46, v{x}")
    a.e(f"v_mov_b32 v{V_C2}, 0\nv_mov_b32 v{V_C3}, 0\nv_mov_b32 v{V_LO}, 0\nv_mov_b32 v{V_C2+1}, 0\nv_mov_b32 v{V_C3+1}, 0")
    set_exec(a, 0x0FF000FF, 0x0FF000FF)
    a.e(f"v_mov_b32 v{V_C3}, s{S_EPS2}\nv_mov_b32 v{V_LO}, s{S_EPS2}")
    set_exec(a, 0x0000FF00, 0x0000FF00)
    a.e(f"v_mov_b32 v{V_C2}, 0xff800000\nv_mov_b32 v{V_LO}, 0xff800000")
    a.e("s_mov_b64 exec, -1")
    a.e(f"s_lshl_b32 s46, s{S_W}, 8\ns_add_u32 s46, s46, {RS_OFF}")
    a.e(f"v_lshlrev_b32 v{x}, 2, v{ln}\nv_add_u32 v{V_RSW}, s46, v{x}\nv_lshlrev_b32 v{x}, 4, v{hf}\nv_add_u32 v{V_RSR}, s46, v{x}")
    stamp(a, 1, cfg)
    p1a(a, ring, cfg, True)
    a.wait_vm("res")
    for p in range(10):
        a.e(f"v_lshlrev_b32 v{V_RES+2*p}, 16, v{P+p}\nv_and_b32 v{V_RES+2*p+1}, 0xffff0000, v{P+p}")
    a.e("s_branch L_join")
    j0 = (ring.next, ring.cons, list(a.lgq))
    fr0 = ring.freed
    a.e("L_top:")
    a.vmq = list(cfg["_vmq_top"]) if "_vmq_top" in cfg else [("dma", p_) for p_ in range(0, RING, 4)]
    a.lgq = []
    ring.next, ring.pub, ring.cons, ring.freed = RING, 0, 0, 0
    p1a(a, ring, cfg, False)
    assert j0 == (ring.next, ring.cons, list(a.lgq)), (j0, ring.next, ring.cons, a.lgq)
    ring.freed = min(ring.freed, fr0)
    ring.pub = 123
    a.e("L_join:")
    a.e("s_nop 7\ns_nop 3")
    a.vmq = [("dma", 160)]
    stop = cfg.get("stop", 99)
    p1rest(a, ring, cfg)
    if stop == 1:
        a.e("s_endpgm")
    phase2(a, ring, cfg)
    if stop == 2:
        a.e("s_endpgm")
    phase3(a, ring, cfg)
    phase4(a, ring, cfg)
    assert ring.next == TOT + RING and ring.freed == TOT, (ring.next, ring.freed)
    bottom = [((t[0], t[1] - TOT) if isinstance(t, tuple) and t[0] == "dma" else "old") for t in a.vmq]
    if cfg.get("_vmq_top") != bottom:
        cfg = dict(cfg)
        cfg["_vmq_top"] = bottom
        return gen_main(name, cfg)
    if stop == 4:
        a.e("s_endpgm")
    a.e(f"s_mov_b32 s{S_LAY}, 1\ns_mov_b32 s{S_LOFF}, {L.LBASE + L.LSTR}\ns_mov_b32 s{S_COFF}, {L.CNT_PER_LAYER * L.CNT_STRIDE}")
    a.e(f"s_mov_b32 s{SRD_NX+2}, 0")
    a.e("s_branch L_top")
    a.e("L_final:")
    P = V_TMP
    a.e(f"buffer_store_dwordx4 v[{P}:{P+3}], v{V_OUT1}, s[8:11], s{S_OUT} offen")
    a.e(f"buffer_store_dwordx4 v[{P+4}:{P+7}], v{V_OUT1}, s[8:11], s{S_OUT} offen offset:64")
    a.e(f"buffer_store_dwordx2 v[{P+8}:{P+9}], v{V_OUT2}, s[8:11], s{S_OUT} offen")
    stamp(a, 15, cfg)
    a.e("s_waitcnt vmcnt(0)")
    a.e("L_end:\ns_endpgm")
    return a.text(), kd(name, 512, 96, 256), a


if __name__ == "__main__":
    t, k, a = gen_main()
    print(t)
```

```python
from asmcore import *
import layout as L

N_QKV, N_W13, N_W2, N_WO, N_X = 64, 96, 48, 20, 64
B_QKV = 0
B_W13 = B_QKV + N_QKV
B_W2 = B_W13 + N_W13
B_WO = B_W2 + N_W2
B_X = B_WO + N_WO
PREP_GRID = B_X + N_X
PREP_LDS = 40960
ST_FLAG = "sc1"


def srd(a, d, base, size):
    a.e(f"s_mov_b32 s{d}, s{base}\ns_and_b32 s{d+1}, s{base+1}, 0xffff\ns_mov_b32 s{d+2}, {size}\ns_mov_b32 s{d+3}, 0x20000")


def colsum_tail(a, acc, s_kq, s_meanoff):
    a.e(f"v_mov_b32 v10, v{acc}")
    a.e(f"v_permlane32_swap_b32 v{acc}, v10")
    a.e(f"v_add_f32 v{acc}, v{acc}, v10")
    a.e(f"v_cvt_pk_bf16_f32 v12, v{acc}, v{acc}")
    a.e(f"v_and_b32 v10, 0xffff0000, v12")
    a.e(f"v_sub_f32 v10, v{acc}, v10")
    a.e(f"v_cvt_pk_bf16_f32 v13, v10, v10")
    a.e(f"s_lshr_b32 s40, s{s_kq}, 1\ns_lshl_b32 s40, s40, 9\ns_and_b32 s41, s{s_kq}, 1\ns_lshl_b32 s41, s41, 3")
    a.e(f"s_add_u32 s40, s40, s41\ns_add_u32 s40, s40, s{s_meanoff}")
    a.e("s_mov_b32 exec_hi, 0")
    a.e(f"buffer_store_dwordx2 v[12:13], v2, s[8:11], s40 offen {ST_FLAG}")


def tr_pack32(a, pitch, s_out, s_stride):
    for s in range(10):
        for u in range(2):
            a.ds(f"ds_read_b64_tr_b16 v[{16+4*s+2*u}:{17+4*s+2*u}], v4 offset:{(16*s+4*u)*pitch}", ("t", s))
        if s >= 5:
            pass
    a.e("v_mov_b32 v9, 0\ns_mov_b32 s42, 0x3f803f80")
    a.wait_ds_all()
    for s in range(10):
        a.e(f"buffer_store_dwordx4 v[{16+4*s}:{19+4*s}], v2, s[8:11], s{s_out} offen {ST_FLAG}")
        a.e(f"s_add_u32 s{s_out}, s{s_out}, s{s_stride}")
        for r in range(4):
            a.e(f"v_dot2_f32_bf16 v9, v{16+4*s+r}, s42, v9")


def gen_prep(name="prep_kernel", code_prefetch=True):
    a = Asm()
    a.e(f".globl {name}\n.p2align 8\n.type {name},@function\n{name}:")
    a.e(f"s_cmp_ge_u32 s2, {PREP_GRID}\ns_cbranch_scc1 LP_end")
    a.e("s_load_dwordx4 s[16:19], s[0:1], 0")
    a.e("s_load_dwordx2 s[20:21], s[0:1], 16")
    a.e("s_load_dwordx4 s[24:27], s[0:1], 32")
    a.e("s_load_dwordx2 s[28:29], s[0:1], 48")
    a.e("s_load_dwordx2 s[30:31], s[0:1], 72")
    a.e("v_and_b32 v1, 63, v0")
    a.e("v_lshlrev_b32 v2, 4, v1")
    a.e("v_lshrrev_b32 v3, 6, v0")
    a.e("v_readfirstlane_b32 s3, v3")
    if code_prefetch:
        a.e("s_getpc_b64 s[50:51]\nLP_pc:")
        a.e("s_add_u32 s50, s50, main_kernel-LP_pc\ns_addc_u32 s51, s51, 0")
        a.e("s_lshr_b32 s52, s2, 3\ns_lshl_b32 s52, s52, 12")
        a.e("v_lshlrev_b32 v68, 4, v0\nv_add_u32 v68, s52, v68")
        a.e("v_cmp_gt_u32 vcc, L_end-main_kernel-16, v68")
        a.e("v_mov_b32 v71, s51\nv_add_co_u32 v70, s[54:55], s50, v68\nv_addc_co_u32 v71, s[54:55], 0, v71, s[54:55]")
        a.e("s_and_saveexec_b64 s[56:57], vcc\ns_cbranch_execz LP_nopf")
        a.e("global_load_dwordx4 v[72:75], v[70:71], off")
        a.e("LP_nopf:\ns_mov_b64 exec, s[56:57]")
    a.e("s_waitcnt lgkmcnt(0)")
    srd(a, 8, 30, L.WS_USED)
    a.e(f"s_cmp_ge_u32 s2, {B_X}\ns_cbranch_scc1 LP_x")
    a.e(f"s_cmp_ge_u32 s2, {B_W2}\ns_cbranch_scc1 LP_w2")
    a.e(f"s_cmp_ge_u32 s2, {B_W13}\ns_cbranch_scc1 LP_w13")

    srd(a, 12, 18, 640 * 3840)
    a.e("s_and_b32 s32, s2, 15\ns_lshr_b32 s33, s2, 4")
    a.e("v_lshrrev_b32 v5, 4, v1\nv_and_b32 v6, 15, v1")
    a.e("v_mul_u32_u24 v7, 52, v6\nv_lshrrev_b32 v7, 8, v7")
    a.e("v_mul_u32_u24 v8, 5, v7\nv_sub_u32 v8, v6, v8")
    a.e("v_mul_u32_u24 v5, 3840, v5\nv_mul_u32_u24 v9, 1280, v7\nv_add_u32 v5, v5, v9")
    a.e("v_lshlrev_b32 v8, 4, v8\nv_add_u32 v5, v5, v8")
    a.e("v_mov_b32 v9, 0x80000000\nv_cmp_eq_u32 vcc, 15, v6\nv_cndmask_b32 v5, v5, v9, vcc")
    a.e(f"s_mul_i32 s34, s33, {160*3840}\ns_mul_i32 s35, s3, {40*3840}\ns_add_u32 s34, s34, s35")
    a.e("s_mul_i32 s35, s32, 80\ns_add_u32 s34, s34, s35")
    a.e("s_mul_i32 s36, s3, 10240")
    for n in range(10):
        a.e(f"s_add_u32 m0, s36, {n*1024}")
        a.e(f"buffer_load_dwordx4 v5, s[12:15], s34 offen lds")
        a.e(f"s_add_u32 s34, s34, {4*3840}")
    tabs = [[80 + 8 * c for c in range(8)],
            [144, 152, 224, 232, 240, 64, 72, 240],
            [160 + 8 * c for c in range(8)],
            [8 * c for c in range(8)]]
    pk = lambda t: (t[0] | t[1] << 8 | t[2] << 16 | t[3] << 24, t[4] | t[5] << 8 | t[6] << 16 | t[7] << 24)
    lo, hi = pk(tabs[0])
    a.e(f"s_mov_b32 s38, {lo}\ns_mov_b32 s39, {hi}")
    for t in range(1, 4):
        lo, hi = pk(tabs[t])
        a.e(f"s_cmp_eq_u32 s3, {t}\ns_cselect_b32 s38, {lo}, s38\ns_cselect_b32 s39, {hi}, s39")
    a.e("v_mov_b32 v6, s38\nv_mov_b32 v7, s39\nv_and_b32 v8, 16, v1\nv_cmp_ne_u32 vcc, 0, v8\nv_cndmask_b32 v6, v6, v7, vcc")
    a.e("v_and_b32 v8, 3, v1\nv_lshlrev_b32 v8, 3, v8\nv_lshrrev_b32 v6, v8, v6\nv_and_b32 v6, 0xff, v6")
    a.e("v_lshrrev_b32 v7, 5, v1\nv_lshlrev_b32 v7, 3, v7\nv_bfe_u32 v8, v1, 2, 2\nv_add_u32 v7, v7, v8")
    a.e("v_lshlrev_b32 v7, 8, v7\nv_add_u32 v4, v6, v7")
    a.e("s_mov_b32 s44, 1024\ns_cmp_lt_u32 s3, 3\ns_cselect_b32 s43, s3, 123\ns_cselect_b32 s44, 3072, s44")
    a.e(f"s_lshl_b32 s43, s43, 10\ns_mul_i32 s45, s32, {L.WQKV_STR}\ns_add_u32 s43, s43, s45\ns_add_u32 s43, s43, {L.WQKV}")
    a.e("s_mul_i32 s45, s44, 40\ns_add_u32 s46, s43, s45")
    a.e("s_mul_i32 s45, s44, 10\ns_mul_i32 s45, s45, s33\ns_add_u32 s43, s43, s45")
    a.e("s_waitcnt vmcnt(0)\ns_barrier")
    tr_pack32(a, 256, 43, 44)
    colsum_tail(a, 9, 33, 46)
    a.e("s_endpgm")

    a.e("LP_w13:")
    a.e(f"s_sub_u32 s32, s2, {B_W13}")
    a.e("s_mul_i32 s33, s32, 43\ns_lshr_b32 s33, s33, 10")
    a.e("s_mul_i32 s34, s33, 24\ns_sub_u32 s32, s32, s34")
    a.e("s_cmp_lt_u32 s3, 2\ns_cselect_b32 s22, s24, s26\ns_cselect_b32 s23, s25, s27")
    srd(a, 12, 22, 640 * 3072)
    a.e("v_lshrrev_b32 v5, 3, v1\nv_and_b32 v6, 7, v1")
    a.e("v_mul_u32_u24 v5, 3072, v5\nv_lshlrev_b32 v6, 4, v6\nv_add_u32 v5, v5, v6")
    a.e(f"s_mul_i32 s34, s33, {160*3072}\ns_and_b32 s35, s3, 1\ns_mul_i32 s35, s35, {80*3072}\ns_add_u32 s34, s34, s35")
    a.e("s_lshl_b32 s35, s32, 7\ns_add_u32 s34, s34, s35")
    a.e("s_mul_i32 s36, s3, 10240")
    for n in range(10):
        a.e(f"s_add_u32 m0, s36, {n*1024}")
        a.e(f"buffer_load_dwordx4 v5, s[12:15], s34 offen lds")
        a.e(f"s_add_u32 s34, s34, {8*3072}")
    a.e("v_bfe_u32 v6, v1, 4, 1\nv_mul_u32_u24 v6, 20480, v6")
    a.e("v_and_b32 v7, 1, v1\nv_lshlrev_b32 v7, 4, v7\nv_add_u32 v6, v6, v7")
    a.e("v_bfe_u32 v7, v1, 1, 1\nv_lshlrev_b32 v7, 3, v7\nv_add_u32 v6, v6, v7")
    a.e("s_lshl_b32 s35, s3, 5\nv_add_u32 v6, s35, v6")
    a.e("v_lshrrev_b32 v7, 5, v1\nv_lshlrev_b32 v7, 3, v7\nv_bfe_u32 v8, v1, 2, 2\nv_add_u32 v7, v7, v8")
    a.e("v_lshlrev_b32 v7, 7, v7\nv_add_u32 v4, v6, v7")
    a.e("s_lshl_b32 s37, s32, 2\ns_add_u32 s37, s37, s3")
    a.e("s_mul_i32 s38, s37, 43\ns_lshr_b32 s38, s38, 7")
    a.e("s_mul_i32 s39, s38, 3\ns_sub_u32 s39, s37, s39\ns_mov_b32 s44, 3072")
    a.e("s_sub_u32 s40, s37, 48\ns_lshr_b32 s41, s40, 1\ns_and_b32 s40, s40, 1\ns_add_u32 s40, s40, 123")
    a.e("s_cmp_ge_u32 s37, 48\ns_cselect_b32 s38, s41, s38\ns_cselect_b32 s39, s40, s39\ns_cselect_b32 s44, 2048, s44")
    a.e("s_sub_u32 s41, s37, 80")
    a.e("s_cmp_ge_u32 s37, 80\ns_cselect_b32 s38, s41, s38\ns_cselect_b32 s39, 205, s39\ns_cselect_b32 s44, 1024, s44")
    a.e(f"s_lshl_b32 s43, s39, 10\ns_mul_i32 s45, s38, {L.W13_STR}\ns_add_u32 s43, s43, s45\ns_add_u32 s43, s43, {L.W13}")
    a.e("s_mul_i32 s45, s44, 40\ns_add_u32 s46, s43, s45")
    a.e("s_mul_i32 s45, s44, 10\ns_mul_i32 s45, s45, s33\ns_add_u32 s43, s43, s45")
    a.e("s_waitcnt vmcnt(0)\ns_barrier")
    tr_pack32(a, 128, 43, 44)
    colsum_tail(a, 9, 33, 46)
    a.e("s_endpgm")

    a.e("LP_w2:")
    a.e(f"s_sub_u32 s32, s2, {B_W2}\ns_sub_u32 s33, s2, {B_WO}")
    a.e(f"s_cmp_ge_u32 s2, {B_WO}")
    a.e("s_cselect_b32 s32, s33, s32")
    a.e("s_cselect_b32 s22, s20, s28\ns_cselect_b32 s23, s21, s29")
    a.e(f"s_mov_b32 s34, {1536*1280}\ns_mov_b32 s35, {L.W2}\ns_mov_b32 s37, {L.W2_STR}")
    a.e(f"s_cselect_b32 s34, {640*1280}, s34")
    a.e(f"s_cselect_b32 s35, {L.WO}, s35\ns_cselect_b32 s37, {L.WO_STR}, s37")
    a.e("s_mov_b32 s12, s22\ns_and_b32 s13, s23, 0xffff\ns_mov_b32 s14, s34\ns_mov_b32 s15, 0x20000")
    a.e("s_mul_i32 s36, s3, 10240\ns_mul_i32 s34, s32, 40960\ns_add_u32 s34, s34, s36")
    for n in range(10):
        a.e(f"s_add_u32 m0, s36, {n*1024}")
        a.e(f"buffer_load_dwordx4 v2, s[12:15], s34 offen lds")
        a.e(f"s_add_u32 s34, s34, 1024")
    a.e("v_lshrrev_b32 v7, 4, v1\nv_lshlrev_b32 v7, 3, v7\nv_bfe_u32 v8, v1, 2, 2\nv_add_u32 v7, v7, v8")
    a.e("v_mul_u32_u24 v7, 1280, v7\ns_mul_i32 s38, s3, 320\nv_add_u32 v7, s38, v7")
    a.e("v_and_b32 v8, 3, v1\nv_lshl_add_u32 v4, v8, 4, v7\nv_lshl_add_u32 v5, v8, 3, v7")
    a.e("s_lshl_b32 s38, s3, 1\ns_mul_i32 s38, s38, s37\ns_add_u32 s43, s35, s38")
    a.e("s_mul_i32 s38, s32, 5120\ns_add_u32 s43, s43, s38")
    a.e("s_waitcnt vmcnt(0)\ns_barrier")
    for cc in range(2):
        for t in range(5):
            f = cc * 5 + t
            for u in range(2):
                if t < 4:
                    off = cc * 160 + (t >> 1) * 64 + (t & 1) * 8 + u * 4 * 1280
                    a.ds(f"ds_read_b64_tr_b16 v[{16+4*f+2*u}:{17+4*f+2*u}], v4 offset:{off}")
                else:
                    off = cc * 160 + 128 + u * 4 * 1280
                    a.ds(f"ds_read_b64_tr_b16 v[{16+4*f+2*u}:{17+4*f+2*u}], v5 offset:{off}")
    a.wait_ds_all()
    for cc in range(2):
        for t in range(5):
            f = cc * 5 + t
            if t < 4:
                a.e(f"buffer_store_dwordx4 v[{16+4*f}:{19+4*f}], v2, s[8:11], s43 offen offset:{t*1024} {ST_FLAG}")
            else:
                a.e("s_add_u32 s44, s43, 4096")
                a.e(f"buffer_store_dwordx4 v[{16+4*f}:{19+4*f}], v2, s[8:11], s44 offen {ST_FLAG}")
        a.e("s_add_u32 s43, s43, s37")
    a.e("s_endpgm")

    a.e("LP_x:")
    srd(a, 12, 16, 2048 * 1280)
    a.e(f"s_sub_u32 s32, s2, {B_X}")
    a.e("v_and_b32 v5, 7, v1\ns_lshl_b32 s33, s3, 3\nv_add_u32 v5, s33, v5")
    a.e("v_lshrrev_b32 v6, 3, v1")
    a.e("v_mul_u32_u24 v7, 1280, v5\nv_lshl_add_u32 v7, v6, 4, v7")
    a.e("s_mul_i32 s34, s32, 40960")
    for q in range(10):
        a.e(f"buffer_load_dwordx4 v[{16+4*q}:{19+4*q}], v7, s[12:15], s34 offen offset:{q*128}")
    a.e("v_mov_b32 v10, 0\nv_lshlrev_b32 v11, 8, v0\ns_lshl_b32 s35, s32, 12")
    a.e("v_cmp_gt_u32 vcc, 16, v0\ns_and_saveexec_b64 s[36:37], vcc\ns_cbranch_execz LP_nz")
    a.e(f"buffer_store_dword v10, v11, s[8:11], s35 offen {ST_FLAG}")
    a.e("LP_nz:\ns_mov_b64 exec, s[36:37]")
    a.e("v_lshlrev_b32 v8, 9, v6\nv_lshl_add_u32 v8, v5, 4, v8")
    a.e("v_lshlrev_b32 v9, 8, v6\nv_lshl_add_u32 v9, v5, 3, v9")
    a.e(f"s_add_u32 s34, s34, {L.LBASE + L.X}")
    a.e(f"s_lshl_b32 s38, s32, 11\ns_add_u32 s38, s38, {L.LBASE + L.ST}")
    a.e("s_mov_b32 s42, 0x3f803f80\nv_mov_b32 v12, 0")
    a.e("s_waitcnt vmcnt(0)")
    for q in range(10):
        a.e(f"buffer_store_dwordx4 v[{16+4*q}:{19+4*q}], v8, s[8:11], s34 offen {ST_FLAG}")
        a.e("s_add_u32 s34, s34, 4096")
        for r in range(4):
            a.e(f"v_dot2_f32_bf16 v12, v{16+4*q+r}, s42, v12")
    a.e(f"v_mul_f32 v12, {f32bits(1.0/80)}, v12")
    a.e("v_mov_b32 v14, 0\nv_mov_b32 v15, 0")
    for r in range(40):
        t = 60 + 2 * (r & 3)
        a.e(f"v_lshlrev_b32 v{t}, 16, v{16+r}\nv_and_b32 v{t+1}, 0xffff0000, v{16+r}")
        a.e(f"v_pk_add_f32 v[{t}:{t+1}], v[{t}:{t+1}], v[12:13] op_sel_hi:[1,0] neg_lo:[0,1] neg_hi:[0,1]")
        a.e(f"v_pk_fma_f32 v[14:15], v[{t}:{t+1}], v[{t}:{t+1}], v[14:15]")
    a.e("v_add_f32 v13, v14, v15")
    a.e(f"buffer_store_dwordx2 v[12:13], v9, s[8:11], s38 offen {ST_FLAG}")
    a.e("LP_end:\ns_endpgm")
    return a.text(), kd(name, 76, 64, 76)


if __name__ == "__main__":
    t, k = gen_prep()
    print(t)
```

```python
from asmcore import *
import layout as L

RING = 156
P1S, SCR, P2S, P3S, P4S, TOT = 0, 164, 192, 292, 540, 780
FIX = RING * 1024
SCRB = (SCR % RING) * 1024
GC_OFF, GC_STR = SCRB, 3360
GB_OFF = GC_OFF + 4 * GC_STR
QT_OFF = GB_OFF + 5120
RS_OFF = FIX
Q1_OFF = FIX + 1024
assert QT_OFF + 4 * 2304 <= SCRB + 28 * 1024
LOG2E = 1.4426950408889634
SPIN = 400000

V_LANE, V_L16, V_T16, V_L16B, V_L16C = 1, 2, 3, 4, 5
V_STL, V_OST, V_HST, V_XS1, V_XS2, V_OUT1, V_OUT2 = 6, 7, 8, 9, 10, 11, 12
V_G0, V_G1, V_GBW, V_GBX, V_GBY = 13, 14, 15, 16, 17
V_QW3, V_QW1, V_QR, V_QR2 = 18, 19, 20, 21
V_C2, V_C3, V_LO = 22, 24, 26
V_RSW, V_RSR, V_STS = 27, 28, 29
V_RES = 32
V_MF = 52
V_ST = 56
V_ACC = 64
V_FIFO = 160
V_TMP = 208
S_W, S_I, S_J, S_LAY, S_LOFF, S_COFF, S_W1K = 3, 14, 15, 16, 17, 18, 19
S_SEG = {P1S: 20, P2S: 21, P3S: 22, P4S: 23}
S_TB32, S_TB16, S_TB32P = 24, 25, 26
S_XA, S_STA, S_OA, S_HA, S_XS, S_STS, S_OS = 27, 28, 29, 30, 31, 32, 33
S_HS = (34, 35, 36)
S_KVS, S_KVR, S_OUT, S_KVC = 38, 39, 40, 41
S_T = 44
S_M210 = 60
S_ONE = 62
S_POLL = 63
S_C256 = 42
SRD_WS, SRD_OUT, SRD_NX = 4, 8, 64
S_DBG = 68
S_A = 70
S_EPS2 = 76
S_ONE2 = 78
S_TS = 80


class Ring:
    def __init__(self, a):
        self.a = a
        self.next = 0
        self.pub = 0
        self.freed = 0
        self.cons = 0

    def seg(self, pos):
        p = pos % TOT
        for s, e in ((P1S, SCR), (P2S, P3S), (P3S, P4S), (P4S, TOT)):
            if s <= p < e:
                return s, p - s
        return None

    def can_dma(self):
        n = self.next
        if n % TOT == SCR:
            n += P2S - SCR
        return n + 4 - RING <= self.freed

    def dma(self):
        a = self.a
        if self.next % TOT == SCR:
            self.next += P2S - SCR
        pos = self.next
        assert pos + 4 - RING <= self.freed, (pos, self.freed)
        s, rel = self.seg(pos)
        srd = SRD_NX if pos >= TOT else SRD_WS
        a.e(f"s_add_u32 m0, s{S_W1K}, {(pos % RING) * 1024}")
        a.e(f"s_add_u32 s{S_T+15}, s{S_SEG[s]}, {rel * 1024}")
        a.vm(f"buffer_load_dwordx4 v{V_T16}, s[{srd}:{srd+3}], s{S_T+15} offen lds", ("dma", pos))
        self.next = pos + 4

    def dma_upto(self, limit, maxn=10 ** 9):
        n = 0
        while n < maxn and self.next < limit and self.can_dma():
            self.dma()
            n += 1
        return n

    def barrier(self, need, free_to=None):
        a = self.a
        assert need <= self.next or (self.next % TOT == SCR and need <= self.next + P2S - SCR), (need, self.next)
        a.wait_vm(lambda t: isinstance(t, tuple) and t[0] == "dma" and t[1] < need)
        a.e("s_barrier")
        out = [t[1] for t in a.vmq if isinstance(t, tuple) and t[0] == "dma"]
        self.pub = min(out) if out else self.next
        self.freed = max(self.freed, self.cons if free_to is None else free_to)

    def read(self, pos, reg):
        assert pos < self.pub, (pos, self.pub)
        addr = (pos % RING) * 1024
        base = (V_L16, V_L16B, V_L16C)[addr >> 16]
        self.a.ds(f"ds_read_b128 v[{reg}:{reg+3}], v{base} offset:{addr & 0xffff}", ("frag", pos))


def run_pass(a, ring, mf, fill, bars, depth, group=1, hook=None, fifo=V_FIFO):
    n = len(mf)

    def rd(m):
        if m in bars:
            ring.barrier(bars[m])
        ring.read(mf[m][0], fifo + 4 * (m % depth))

    for m in range(min(depth - 1, n)):
        rd(m)
    if hook:
        hook()
    for m in range(n):
        if m + depth - 1 < n:
            rd(m + depth - 1)
        if m % group == 0:
            last = min(m + group - 1, n - 1)
            a.wait_ds(("frag", mf[last][0]))
            ring.cons = mf[last][0] + 1
        mf[m][1](fifo + 4 * (m % depth))
        for f in fill.get(m, []):
            f()


def spread(fill, items, start, per):
    x = float(start)
    for it in items:
        fill.setdefault(int(x), []).append(it)
        x += 1.0 / per
    return int(x) + 1


def lines(a, text):
    return [(lambda t=t: a.e(t)) for t in text.strip().split("\n") if t.strip()]


def cnt_off(a, dst, kind, sidx, nextlayer=False):
    c = (kind * 64 + (L.CNT_PER_LAYER if nextlayer else 0)) * L.CNT_STRIDE
    a.e(f"s_lshl_b32 s{dst}, s{sidx}, 8\ns_add_u32 s{dst}, s{dst}, s{S_COFF}")
    if c:
        a.e(f"s_add_u32 s{dst}, s{dst}, {c}")


def signal(a, kind, sidx, nextlayer=False, inc=S_ONE):
    cnt_off(a, S_T + 13, kind, sidx, nextlayer)
    a.e(f"s_atomic_add s{inc}, s[12:13], s{S_T+13}")


def poll_issue(a, kind, sidx):
    cnt_off(a, S_T + 12, kind, sidx)
    a.e(f"s_mov_b32 s{S_POLL}, 0")
    a.e(f"s_atomic_add s{S_POLL}, s[12:13], s{S_T+12} glc")


def poll_check(a, shift=0, target=16):
    lp, ok = a.label("Lpoll"), a.label("Lok")
    a.e(f"s_mov_b32 s{S_T+11}, 0")
    a.e(f"{lp}:")
    a.e("s_waitcnt lgkmcnt(0)")
    a.lgq = []
    a.e(f"s_bfe_u32 s{S_POLL}, s{S_POLL}, {(8 << 16) | shift}")
    a.e(f"s_cmp_ge_u32 s{S_POLL}, {target}\ns_cbranch_scc1 {ok}")
    a.e(f"s_mov_b32 s{S_POLL}, 0")
    a.e(f"s_atomic_add s{S_POLL}, s[12:13], s{S_T+12} glc")
    a.e(f"s_add_u32 s{S_T+11}, s{S_T+11}, 1")
    a.e(f"s_cmp_lt_u32 s{S_T+11}, {SPIN}\ns_cbranch_scc1 {lp}")
    a.e("s_waitcnt lgkmcnt(0)")
    a.e(f"{ok}:")


def poll(a, kind, sidx, shift=0):
    poll_issue(a, kind, sidx)
    poll_check(a, shift)


def sched(a, ops, ntrans=1, nplain=2):
    done = {}
    gaps = []
    left = list(range(len(ops)))
    g = 0
    while left:
        t, p, cur = 0, 0, []
        for k in list(left):
            text, deps, tr = ops[k]
            if any(d not in done or done[d] >= g for d in deps):
                continue
            cost_ok = (2 * (t + (1 if tr else 0)) + p + (0 if tr else 1)) <= 2 * ntrans + nplain and (t + (1 if tr else 0)) <= ntrans
            if not cost_ok:
                continue
            cur.append(k)
            left.remove(k)
            if tr:
                t += 1
            else:
                p += 1
        for k in cur:
            done[k] = g
        gaps.append([(ops[k][0] if callable(ops[k][0]) else (lambda x=ops[k][0]: a.e(x))) for k in cur])
        g += 1
    return gaps


def aload(a, s, sbase_setup):
    if s % 4 == 0:
        sbase_setup(s)
    a.vm(f"buffer_load_dwordx4 a[{4*s}:{4*s+3}], v{V_L16}, s[{SRD_WS}:{SRD_WS+3}], s{S_A} offen offset:{(s%4)*1024} sc1", ("A", s))


def a_setup(a, rel_sgpr, const):
    def f(s):
        if s == 0:
            a.e(f"s_add_u32 s{S_A}, s{S_LOFF}, s{rel_sgpr}\ns_add_u32 s{S_A}, s{S_A}, {const}")
        else:
            a.e(f"s_add_u32 s{S_A}, s{S_A}, 4096")
    return f


def stats_load(a, const):
    a.e(f"s_add_u32 s{S_T}, s{S_LOFF}, s{S_STA}\ns_add_u32 s{S_T}, s{S_T}, {const}")
    for n in range(4):
        a.vm(f"buffer_load_dwordx2 v[{V_ST+2*n}:{V_ST+2*n+1}], v{V_STL}, s[{SRD_WS}:{SRD_WS+3}], s{S_T} offen offset:{n*256} sc1", "st")


def stats_math(a, t):
    S = V_ST
    f = [lambda: a.wait_vm("st")]
    f += lines(a, f"""
v_add_f32 v{t}, v{S}, v{S+2}
v_add_f32 v{t+1}, v{S+4}, v{S+6}
v_add_f32 v{t}, v{t}, v{t+1}
v_mov_b32 v{t+1}, v{t}
v_permlane32_swap_b32 v{t}, v{t+1}
v_add_f32 v{t}, v{t}, v{t+1}
v_mul_f32 v{t}, {f32bits(-0.125)}, v{t}
""")
    for n in range(4):
        f += lines(a, f"""
v_add_f32 v{t+1}, v{S+2*n}, v{t}
v_mul_f32 v{t+1}, v{t+1}, v{t+1}
v_fmac_f32 v{S+2*n+1}, {f32bits(80.0)}, v{t+1}
""")
    f += lines(a, f"""
v_add_f32 v{t+1}, v{S+1}, v{S+3}
v_add_f32 v{t+2}, v{S+5}, v{S+7}
v_add_f32 v{t+1}, v{t+1}, v{t+2}
v_mov_b32 v{t+2}, v{t+1}
v_permlane32_swap_b32 v{t+1}, v{t+2}
v_add_f32 v{t+1}, v{t+1}, v{t+2}
v_mov_b32 v{t+2}, {f32bits(1e-5)}
v_fmac_f32 v{t+2}, {f32bits(1.0/640)}, v{t+1}
v_rsq_f32 v{S}, v{t+2}
v_cvt_pk_bf16_f32 v{t+1}, v{t}, v{t}
v_and_b32 v{t+1}, 0xffff0000, v{t+1}
v_sub_f32 v{t+1}, v{t}, v{t+1}
v_cvt_pk_bf16_f32 v{V_MF}, v{t}, v{t+1}
v_mov_b32 v{V_MF+1}, v{V_MF}
v_mov_b32 v{V_MF+2}, v{V_MF}
v_mov_b32 v{V_MF+3}, v{V_MF}
""")
    return f


def stamp(a, n, cfg, real=False):
    if not cfg.get("timing"):
        return
    if cfg.get("coarse") and n not in (0, 15, 30, 31):
        return
    if n in (0, 15) and not real:
        stamp(a, 30 if n == 0 else 31, cfg, True)
    a.e(f"{'s_memrealtime' if real else 's_memtime'} s[{S_TS}:{S_TS+1}]")
    a.e("s_waitcnt lgkmcnt(0)")
    a.lgq = []
    a.e(f"s_lshl_b32 s{S_TS+1}, s{S_LAY}, 7\ns_add_u32 s{S_TS+1}, s{S_TS+1}, s{S_TS+2}")
    a.e(f"v_mov_b32 v31, s{S_TS}")
    a.e("s_mov_b64 exec, 1")
    a.vm(f"buffer_store_dword v31, v30, s[72:75], s{S_TS+1} offen offset:{4*n}", "stamp")
    a.e("s_mov_b64 exec, -1")


def phi_tile(a, acc, dst, R, RL, t, mixed):
    f = []
    for p in range(8):
        r = 2 * p
        u, e = t + 4 * (p & 1), t + 4 * (p & 1) + 2
        if mixed:
            f += lines(a, f"""
v_pk_fma_f32 v[{e}:{e+1}], v[{acc+r}:{acc+r+1}], v[{RL+r}:{RL+r+1}], v[{V_C2}:{V_C2+1}] op_sel_hi:[1,1,0]
v_pk_fma_f32 v[{u}:{u+1}], v[{acc+r}:{acc+r+1}], v[{R+r}:{R+r+1}], v[{V_C3}:{V_C3+1}] op_sel_hi:[1,1,0]
v_exp_f32 v{e}, v{e} clamp
v_exp_f32 v{e+1}, v{e+1} clamp
v_max_f32 v{u}, v{V_LO}, v{u}
v_max_f32 v{u+1}, v{V_LO}, v{u+1}
""")
        else:
            f += lines(a, f"""
v_pk_mul_f32 v[{e}:{e+1}], v[{acc+r}:{acc+r+1}], v[{RL+r}:{RL+r+1}]
v_pk_fma_f32 v[{u}:{u+1}], v[{acc+r}:{acc+r+1}], v[{R+r}:{R+r+1}], s[{S_EPS2}:{S_EPS2+1}]
v_exp_f32 v{e}, v{e} clamp
v_exp_f32 v{e+1}, v{e+1} clamp
v_max_f32 v{u}, s{S_EPS2}, v{u}
v_max_f32 v{u+1}, s{S_EPS2}, v{u+1}
""")
        f += lines(a, f"""
v_pk_add_f32 v[{u}:{u+1}], v[{u}:{u+1}], v[{e}:{e+1}]
v_cvt_pk_bf16_f32 v{dst+p}, v{u}, v{u+1}
""")
    return f


def set_exec(a, lo, hi):
    a.e(f"s_mov_b32 exec_lo, {lo:#x}\ns_mov_b32 exec_hi, {hi:#x}")


def lanemask(fn):
    m = 0
    for l in range(64):
        if fn(l):
            m |= 1 << l
    return m & 0xffffffff, m >> 32


INF = 10 ** 9
T32 = [V_ACC + 16 * t for t in range(6)]
P1_R, P1_RL = V_TMP, V_TMP + 16
P1_PT = [144, 152, 240]
P1_TT = 248


def mk32(a, t, s, wfirst):
    def f(b):
        if s < 40:
            a.wait_vm(("A", s))
        x = f"a[{4*s}:{4*s+3}]" if s < 40 else f"v[{V_MF}:{V_MF+3}]"
        c = "0" if s == 0 else f"v[{T32[t]}:{T32[t]+15}]"
        w = f"v[{b}:{b+3}]"
        p, q = (w, x) if wfirst else (x, w)
        a.e(f"v_mfma_f32_32x32x16_bf16 v[{T32[t]}:{T32[t]+15}], {p}, {q}, {c}")
    return f


def stats_fill(a, fill, cfg, kind, const, tail, polled=True):
    if polled:
        fill.setdefault(24, []).append(lambda: poll_issue(a, kind, S_TB32))
        fill.setdefault(48, []).extend([lambda: poll_check(a, 8), lambda: stats_load(a, const)])
    f = stats_math(a, P1_TT) + tail
    spread(fill, f, 84, 2)


def p1a(a, ring, cfg, first):
    AW = cfg.get("aw", 10)
    R, RL, tt = P1_R, P1_RL, P1_TT
    setup = a_setup(a, S_XA, L.X)
    mf = [(P1S + 3 * s + t, mk32(a, t, s, False)) for s in range(41) for t in range(3)]
    fill = {}
    tail = lines(a, f"v_mul_f32 v{tt}, {f32bits(LOG2E)}, v{V_ST}\nv_cmp_gt_u32 vcc, 32, v{V_LANE}\nv_cndmask_b32 v{tt}, v{tt}, v{V_ST}, vcc")
    tail += [lambda: a.ds(f"ds_write_b32 v{V_RSW}, v{tt}", "rs")]
    for i in range(4):
        tail += [lambda i=i: a.ds(f"ds_read_b128 v[{R+4*i}:{R+4*i+3}], v{V_RSR} offset:{32*i}", "rs")]
        tail += [lambda i=i: a.ds(f"ds_read_b128 v[{RL+4*i}:{RL+4*i+3}], v{V_RSR} offset:{128+32*i}", "rs")]
    z = lines(a, f"v_mov_b32 v{tt+4}, 0\nv_mov_b32 v{tt+5}, 0\nv_mov_b32 v{tt+6}, 0\nv_mov_b32 v{tt+7}, 0")
    z += [lambda: a.ds(f"ds_write_b128 v{V_T16}, v[{tt+4}:{tt+7}] offset:{GB_OFF}", "z"),
          lambda: a.ds(f"ds_write_b128 v{V_T16}, v[{tt+4}:{tt+7}] offset:{GB_OFF+1024}", "z")]
    spread(fill, z, 76, 2)
    if first:
        LA = cfg.get("la0", 3)
        items = []
        for blk in range(LA, 11):
            it = [lambda: ring.dma()] * (3 if blk < 10 else 1)
            it += [(lambda s=s: aload(a, s, setup)) for s in range(4 * blk, min(4 * blk + 4, 40))]
            spread(fill, it, 12 * (blk - LA), 7 / 12.0)
        spread(fill, [lambda: ring.dma()] * 10, 12 * (11 - LA), 0.45)
        bars = {12 * k: min(12 * k + 12, 123) for k in range(11)}
        stats_fill(a, fill, cfg, None, L.ST, tail, polled=False)
        hook = None
    else:
        for s in range(AW, 40):
            fill.setdefault(3 * (s - AW), []).append(lambda s=s: aload(a, s, setup))
        spread(fill, [lambda: ring.dma()] * 2, 96, 0.3)
        bars = {0: cfg.get("pub0", 60), 48: 123, 72: 123}
        stats_fill(a, fill, cfg, L.C_X, L.ST, tail)

        def hook():
            poll(a, L.C_X, S_TB32)
            stamp(a, 1, cfg)
            for s in range(AW):
                aload(a, s, setup)
    run_pass(a, ring, mf, fill, bars, cfg.get("d32", 9), 3, hook)
    assert ring.freed >= P2S - RING and ring.next == 164, (ring.freed, ring.next)


def p1rest(a, ring, cfg):
    T, R, RL, PT, tt = T32, P1_R, P1_RL, P1_PT, P1_TT
    stamp(a, 2, cfg)
    a.wait_ds("rs")
    for g in phi_tile(a, T[0], PT[0], R, RL, tt, False):
        g()
    for p in range(8):
        u = tt + 2 * (p & 3)
        a.e(f"v_pk_mul_f32 v[{u}:{u+1}], v[{T[2]+2*p}:{T[2]+2*p+1}], v[{R+2*p}:{R+2*p+1}]")
        a.e(f"v_cvt_pk_bf16_f32 v{PT[2]+p}, v{u}, v{u+1}")
    KVA = [64, 80, 96, 128]
    pairs = [(0, 2), (0, 1), (1, 2), (1, 1)]

    def kvm(b, u):
        x, y = pairs[b]
        c = "0" if u == 0 else f"v[{KVA[b]}:{KVA[b]+15}]"
        a.e(f"v_mfma_f32_32x32x16_bf16 v[{KVA[b]}:{KVA[b]+15}], v[{PT[x]+4*u}:{PT[x]+4*u+3}], v[{PT[y]+4*u}:{PT[y]+4*u+3}], {c}")
    kvm(0, 0)
    kvm(0, 1)
    for g in phi_tile(a, T[1], PT[1], R, RL, tt, True):
        g()
    for u in range(2):
        for b in (1, 2, 3):
            kvm(b, u)
    rho = lambda l, i: 8 * i + 4 * (l >> 5)
    for i in range(4):
        set_exec(a, *lanemask(lambda l: ((l & 31) < 20) == (rho(l, i) < 20)))
        a.ds(f"ds_write_b128 v{V_G0}, v[{KVA[0]+4*i}:{KVA[0]+4*i+3}] offset:{32*i}", "g")
    for i in range(4):
        set_exec(a, *lanemask(lambda l: (l & 31) == 16 or (8 <= (l & 31) < 16 and rho(l, i) >= 20)))
        a.ds(f"ds_write_b128 v{V_G1}, v[{KVA[1]+4*i}:{KVA[1]+4*i+3}] offset:{32*i}", "g")
    set_exec(a, *lanemask(lambda l: (l & 31) >= 20))
    a.ds(f"ds_write_b128 v{V_G0}, v[{KVA[2]}:{KVA[2]+3}] offset:128", "g")
    set_exec(a, *lanemask(lambda l: 8 <= (l & 31) <= 16))
    a.ds(f"ds_write_b128 v{V_G1}, v[{KVA[3]}:{KVA[3]+3}] offset:128", "g")
    a.e("s_mov_b64 exec, -1")
    a.wait_ds_all()
    ring.barrier(P1S + 164)
    for w in range(4):
        a.ds(f"ds_read_b128 v[{64+4*w}:{67+4*w}], v{V_T16} offset:{GC_OFF + w*GC_STR}", "g")
    a.e(f"s_add_u32 s{S_T}, s{S_LOFF}, s{S_KVS}")

    def kvstore():
        a.wait_ds("g")
        a.e("v_pk_add_f32 v[64:65], v[64:65], v[68:69]\nv_pk_add_f32 v[66:67], v[66:67], v[70:71]")
        a.e("v_pk_add_f32 v[72:73], v[72:73], v[76:77]\nv_pk_add_f32 v[74:75], v[74:75], v[78:79]")
        a.e("v_pk_add_f32 v[64:65], v[64:65], v[72:73]\nv_pk_add_f32 v[66:67], v[66:67], v[74:75]")
        a.e(f"s_mov_b64 exec, s[{S_M210}:{S_M210+1}]")
        a.vm(f"buffer_store_dwordx4 v[64:67], v{V_T16}, s[{SRD_WS}:{SRD_WS+3}], s{S_T} offen sc1", "kvst")
        set_exec(a, 0x0FF00000, 0x0FF00000)
        for i in range(4):
            a.ds(f"ds_write_b64 v{V_QW1}, v[{PT[1]+2*i}:{PT[1]+2*i+1}] offset:{16*i}", "q")
        a.e("s_mov_b64 exec, -1")
        stamp(a, 3, cfg)
    mf = [(P1S + 123 + s, mk32(a, 3, s, False)) for s in range(41)]
    fill = {}
    spread(fill, [lambda: ring.dma_upto(INF, 1)] * cfg.get("dma1b", 17), 0, 0.42)
    sigpos = cfg.get("kvsig", 24)
    fill.setdefault(sigpos, []).extend([lambda: a.wait_vm("kvst"), lambda: signal(a, L.C_KV, S_KVC)])
    run_pass(a, ring, mf, fill, {}, cfg.get("d32", 9), 3, kvstore)
    f = phi_tile(a, T[3], PT[0], R, RL, tt, False)
    for k, g in enumerate(f):
        g()
        if k == 8:
            poll_issue(a, L.C_KV, S_KVC)
    for i in range(4):
        a.ds(f"ds_write_b64 v{V_QW3}, v[{PT[0]+2*i}:{PT[0]+2*i+1}] offset:{16*i}", "q")
    stamp(a, 4, cfg)
    poll_check(a)
    stamp(a, 5, cfg)
    a.e(f"s_add_u32 s{S_T}, s{S_LOFF}, s{S_KVR}")
    a.e(f"s_mov_b64 exec, s[{S_M210}:{S_M210+1}]")
    for i in range(16):
        a.vm(f"buffer_load_dwordx4 v[{64+4*i}:{67+4*i}], v{V_T16}, s[{SRD_WS}:{SRD_WS+3}], s{S_T} offen sc1", ("kv", i))
        a.e(f"s_add_u32 s{S_T}, s{S_T}, {L.KV_STR}")
    a.e("s_mov_b64 exec, -1")
    PQ = 144
    for s in range(2):
        for u in range(2):
            a.ds(f"ds_read_b64_tr_b16 v[{PQ+4*s+2*u}:{PQ+4*s+2*u+1}], v{V_QR} offset:{(16*s+4*u)*72}", "pq")
    for u in range(2):
        a.ds(f"ds_read_b64_tr_b16 v[{PQ+8+2*u}:{PQ+8+2*u+1}], v{V_QR2} offset:{4*u*72}", "pq")
    ring.dma_upto(INF, cfg.get("dmakv", 4))
    for i in range(1, 16):
        a.wait_vm(("kv", i))
        a.e(f"v_pk_add_f32 v[64:65], v[64:65], v[{64+4*i}:{65+4*i}]\nv_pk_add_f32 v[66:67], v[66:67], v[{66+4*i}:{67+4*i}]")
    a.e("v_cvt_pk_bf16_f32 v68, v64, v65\nv_cvt_pk_bf16_f32 v69, v66, v67")
    a.e(f"s_mov_b64 exec, s[{S_M210}:{S_M210+1}]")
    a.ds(f"ds_write_b64 v{V_GBW}, v[68:69]", "gb")
    a.e("s_mov_b64 exec, -1")
    a.wait_ds_all()
    stamp(a, 28, cfg)
    ring.barrier(0)
    GX, GY, DX, DY = 208, 220, 64, 80
    for s in range(3):
        a.ds(f"ds_read_b128 v[{GY+4*s}:{GY+4*s+3}], v{V_GBY} offset:{32*s}", ("gy", s))
    for s in range(3):
        a.ds(f"ds_read_b128 v[{GX+4*s}:{GX+4*s+3}], v{V_GBX} offset:{32*s}", ("gx", s))
    for s in range(3):
        a.wait_ds(("gy", s))
        c = "0" if s == 0 else f"v[{DY}:{DY+15}]"
        a.e(f"v_mfma_f32_32x32x16_bf16 v[{DY}:{DY+15}], v[{GY+4*s}:{GY+4*s+3}], v[{PQ+4*s}:{PQ+4*s+3}], {c}")
    for s in range(3):
        a.wait_ds(("gx", s))
        c = "0" if s == 0 else f"v[{DX}:{DX+15}]"
        a.e(f"v_mfma_f32_32x32x16_bf16 v[{DX}:{DX+15}], v[{GX+4*s}:{GX+4*s+3}], v[{PQ+4*s}:{PQ+4*s+3}], {c}")
    a.e(f"s_add_u32 s{S_T}, s{S_LOFF}, s{S_OS}")
    r0, r1 = 232, 234
    a.e(f"v_add_f32 v{r0}, s{S_EPS2}, v{DY+8}\nv_add_f32 v{r1}, s{S_EPS2}, v{DY+9}")
    a.e(f"v_rcp_f32 v{r0}, v{r0}\nv_rcp_f32 v{r1}, v{r1}")
    OP = 236
    for (src, rr, dst, off) in ((DY, (r0, r1), OP + 8, 512), (DX, (r0, r0), OP, 0), (DX + 8, (r1, r1), OP + 4, 768)):
        for p in range(4):
            r = rr[p >> 1]
            a.e(f"v_pk_mul_f32 v[{src+2*p}:{src+2*p+1}], v[{src+2*p}:{src+2*p+1}], v[{r}:{r+1}] op_sel_hi:[1,0]")
        for p in range(4):
            a.e(f"v_cvt_pk_bf16_f32 v{dst+p}, v{src+2*p}, v{src+2*p+1}")
        if off == 512:
            a.e("s_mov_b32 exec_hi, 0")
        a.vm(f"buffer_store_dwordx4 v[{dst}:{dst+3}], v{V_OST}, s[{SRD_WS}:{SRD_WS+3}], s{S_T} offen offset:{off} sc1", "ost")
        if off == 512:
            a.e("s_mov_b64 exec, -1")
    stamp(a, 29, cfg)
    ring.dma_upto(INF, cfg.get("dmao", 8))
    a.wait_vm("ost")
    signal(a, L.C_O, S_TB32)
    ring.dma_upto(INF)
    ring.cons = P2S
    stamp(a, 6, cfg)


def out_epilogue(a, ring, cfg, xconst, stconst, kind, nextlayer, final_branch):
    P = V_TMP
    a.e(f"s_add_u32 s{S_T}, s{S_LOFF}, s{S_XS}\ns_add_u32 s{S_T}, s{S_T}, {xconst}")
    for p in range(10):
        a.e(f"v_cvt_pk_bf16_f32 v{P+p}, v{V_RES+2*p}, v{V_RES+2*p+1}")
    if final_branch:
        a.e(f"s_cmp_eq_u32 s{S_LAY}, 1\ns_cbranch_scc1 L_final")
    a.vm(f"buffer_store_dwordx4 v[{P}:{P+3}], v{V_XS1}, s[{SRD_WS}:{SRD_WS+3}], s{S_T} offen sc1", "xst")
    a.vm(f"buffer_store_dwordx4 v[{P+4}:{P+7}], v{V_XS1}, s[{SRD_WS}:{SRD_WS+3}], s{S_T} offen offset:2048 sc1", "xst")
    a.vm(f"buffer_store_dwordx2 v[{P+8}:{P+9}], v{V_XS2}, s[{SRD_WS}:{SRD_WS+3}], s{S_T} offen sc1", "xst")
    ring.barrier(0)
    f = []
    for p in range(10):
        f += lines(a, f"v_lshlrev_b32 v{V_RES+2*p}, 16, v{P+p}\nv_and_b32 v{V_RES+2*p+1}, 0xffff0000, v{P+p}")
    t = V_TMP + 16
    f += lines(a, f"v_pk_add_f32 v[{t}:{t+1}], v[{V_RES}:{V_RES+1}], v[{V_RES+2}:{V_RES+3}]")
    f += lines(a, f"v_pk_add_f32 v[{t+2}:{t+3}], v[{V_RES+4}:{V_RES+5}], v[{V_RES+6}:{V_RES+7}]")
    for p in range(4, 10):
        d = t + 2 * (p & 1)
        f += lines(a, f"v_pk_add_f32 v[{d}:{d+1}], v[{d}:{d+1}], v[{V_RES+2*p}:{V_RES+2*p+1}]")
    f += lines(a, f"v_pk_add_f32 v[{t}:{t+1}], v[{t}:{t+1}], v[{t+2}:{t+3}]\nv_add_f32 v{t}, v{t}, v{t+1}")

    def red(x, y):
        return lines(a, f"v_mov_b32 v{y}, v{x}\nv_permlane16_swap_b32 v{x}, v{y}\nv_add_f32 v{x}, v{x}, v{y}\n"
                        f"v_mov_b32 v{y}, v{x}\nv_permlane32_swap_b32 v{x}, v{y}\nv_add_f32 v{x}, v{x}, v{y}")
    f += red(t, t + 1)
    f += lines(a, f"v_mul_f32 v{t}, {f32bits(1.0/80)}, v{t}")
    q = t + 4
    for p in range(10):
        d = t + 8 + 2 * (p & 3)
        f += lines(a, f"v_pk_add_f32 v[{d}:{d+1}], v[{V_RES+2*p}:{V_RES+2*p+1}], v[{t}:{t+1}] op_sel_hi:[1,0] neg_lo:[0,1] neg_hi:[0,1]")
        qq = q + 2 * (p & 1)
        if p < 2:
            f += lines(a, f"v_pk_mul_f32 v[{qq}:{qq+1}], v[{d}:{d+1}], v[{d}:{d+1}]")
        else:
            f += lines(a, f"v_pk_fma_f32 v[{qq}:{qq+1}], v[{d}:{d+1}], v[{d}:{d+1}], v[{qq}:{qq+1}]")
    f += lines(a, f"v_pk_add_f32 v[{q}:{q+1}], v[{q}:{q+1}], v[{q+2}:{q+3}]\nv_add_f32 v{t+1}, v{q}, v{q+1}")
    f += red(t + 1, t + 2)
    for k, g in enumerate(f):
        g()
        if k % 12 == 0:
            ring.dma_upto(INF, 1)
    a.e(f"s_add_u32 s{S_T}, s{S_LOFF}, s{S_STS}\ns_add_u32 s{S_T}, s{S_T}, {stconst}")
    a.e("s_mov_b64 exec, 0xffff")
    a.vm(f"buffer_store_dwordx2 v[{t}:{t+1}], v{V_STS}, s[{SRD_WS}:{SRD_WS+3}], s{S_T} offen sc1", "sst")
    a.e("s_mov_b64 exec, -1")
    ring.dma_upto(INF, cfg.get("dma_after_st", 3))
    a.wait_vm("xst")
    signal(a, kind, S_TB32P, nextlayer)
    ring.dma_upto(INF, cfg.get("dma_after_sig", 6))
    a.wait_vm("sst")
    signal(a, kind, S_TB32P, nextlayer, S_C256)
    ring.dma_upto(INF)


def mk16(a, t, s):
    def f(b):
        a.wait_vm(("A", s))
        c = V_RES + 4 * t
        a.e(f"v_mfma_f32_16x16x32_bf16 v[{c}:{c+3}], v[{b}:{b+3}], a[{4*s}:{4*s+3}], v[{c}:{c+3}]")
    return f


def phase2(a, ring, cfg):
    AW = cfg.get("aw2", 12)
    setup = a_setup(a, S_OA, L.O)
    mf = [(P2S + 5 * s + t, mk16(a, t, s)) for s in range(20) for t in range(5)]
    fill = {}
    for s in range(AW, 20):
        fill.setdefault(4 * (s - AW), []).append(lambda s=s: aload(a, s, setup))
    spread(fill, [lambda: ring.dma_upto(INF, 1)] * 7, 45, 0.2)

    def hook():
        poll(a, L.C_O, S_TB32P)
        stamp(a, 7, cfg)
        for s in range(AW):
            aload(a, s, setup)
    run_pass(a, ring, mf, fill, {0: P2S + 100}, cfg.get("d16", 15), 5, hook, V_ACC)
    stamp(a, 8, cfg)
    out_epilogue(a, ring, cfg, L.X1, L.ST1, L.C_X1, False, False)
    stamp(a, 9, cfg)


def silu_ops(a, tiles, inst):
    NRL, VA = V_ST + 2, V_ST + 4
    ops = [(f"s_add_u32 s{S_T+1}, s{S_LOFF}, s{S_HS[inst]}", [], False)]
    last_e = {}
    for n, t in enumerate(tiles):
        acc, dst = T32[t], V_TMP + 4 * t
        hs = []
        for r in range(8):
            g, u = acc + r, acc + 8 + r
            e = V_TMP + 24 + (8 * n + r) % 16
            b = len(ops)
            ops.append((f"v_mul_f32 v{e}, v{g}, v{NRL}", [last_e[e]] if e in last_e else [], False))
            ops.append((f"v_exp_f32 v{e}, v{e}", [b], True))
            ops.append((f"v_mul_f32 v{g}, v{g}, v{u}", [b], False))
            ops.append((f"v_fma_f32 v{e}, v{e}, v{VA}, v{VA}", [b + 1], False))
            ops.append((f"v_rcp_f32 v{e}, v{e}", [b + 3], True))
            ops.append((f"v_mul_f32 v{g}, v{g}, v{e}", [b + 2, b + 4], False))
            last_e[e] = b + 5
            hs.append(b + 5)
            if r & 1:
                ops.append((f"v_cvt_pk_bf16_f32 v{dst + (r >> 1)}, v{g-1}, v{g}", [hs[-2], hs[-1]], False))
                hs.append(len(ops) - 1)
                hs = hs[-1:] + [x for x in hs[:-3]]
        cv = [k for k in range(len(ops)) if isinstance(ops[k][0], str) and ops[k][0].startswith("v_cvt_pk") and dst <= int(ops[k][0].split()[1][1:-1]) < dst + 4]
        ops.append(((lambda d=dst, n=n: a.vm(f"buffer_store_dwordx4 v[{d}:{d+3}], v{V_HST}, s[{SRD_WS}:{SRD_WS+3}], s{S_T+1} offen offset:{512*n} sc1", ("hst", inst))), cv + [0], False))
    return ops


def phase3(a, ring, cfg):
    AW = cfg.get("aw", 10)
    setup = a_setup(a, S_XA, L.X1)
    mf = [(P3S + 3 * s + t, mk32(a, t, s, True)) for s in range(41) for t in range(3)]
    mf += [(P3S + 123 + 2 * s + t, mk32(a, 3 + t, s, True)) for s in range(41) for t in range(2)]
    mf += [(P3S + 205 + s, mk32(a, 5, s, True)) for s in range(41)]
    fill = {}
    for s in range(AW, 40):
        fill.setdefault(3 * (s - AW), []).append(lambda s=s: aload(a, s, setup))
    tail = lines(a, f"v_mul_f32 v{V_ST+2}, {f32bits(-LOG2E)}, v{V_ST}\nv_mov_b32 v{V_ST+4}, v{P1_TT+2}")
    stats_fill(a, fill, cfg, L.C_X1, L.ST1, tail)
    nt, npl = cfg.get("epi", (1, 2))
    g0 = sched(a, silu_ops(a, [0, 1, 2], 0), nt, npl)
    for k, g in enumerate(g0):
        fill.setdefault(125 + k, []).extend(g)
    e0 = 125 + len(g0)
    assert e0 <= 206, e0
    g1 = sched(a, silu_ops(a, [3, 4], 1), nt, npl)
    for k, g in enumerate(g1):
        fill.setdefault(min(207 + k, 245), []).extend(g)
    fill.setdefault(min(e0 + 30, 222), []).extend([lambda: a.wait_vm(("hst", 0)), lambda: signal(a, L.C_H0, S_TB32)])
    bars = {0: P3S + cfg.get("pub0", 60)}
    for b in range(48, 246, 24):
        bars[b] = min(P3S + b + 24, P3S + 246)
    dm = [lambda: ring.dma_upto(INF, 1)]
    spread(fill, dm * 4, 50, 0.1)
    spread(fill, dm * 70, 90, cfg.get("dma3", 0.42))
    if cfg.get("fine"):
        for n, idx in enumerate((0, 40, 80, 122, 163, 204)):
            fill.setdefault(idx, []).append(lambda n=n: stamp(a, 16 + n, cfg))

    def hook():
        poll(a, L.C_X1, S_TB32)
        stamp(a, 10, cfg)
        for s in range(AW):
            aload(a, s, setup)
    run_pass(a, ring, mf, fill, bars, cfg.get("d32", 9), 3, hook)
    stamp(a, 11, cfg)
    poll_issue(a, L.C_H0, S_TB32P)
    for g in sched(a, silu_ops(a, [5], 2), 2, 3):
        for x in g:
            x()
    ring.cons = P4S
    stamp(a, 12, cfg)


def phase4(a, ring, cfg):
    AW = cfg.get("aw4", 12)
    setup = a_setup(a, S_HA, L.H)
    mf = [(P4S + 5 * s + t, mk16(a, t, s)) for s in range(48) for t in range(5)]
    fill = {}
    for s in range(AW, 48):
        k = 5 * (s - AW)
        if s in (24, 40):
            kind = L.C_H1 if s == 24 else L.C_H2
            fill.setdefault(max(k - 35, 1), []).append(lambda kind=kind: poll_issue(a, kind, S_TB32P))
            fill.setdefault(k, []).append(lambda: poll_check(a))
        fill.setdefault(k, []).append(lambda s=s: aload(a, s, setup))
    bars = {}
    for b in range(0, 240, 30):
        bars[b] = min(P4S + b + 30, P4S + 240)
    dm = [lambda: ring.dma_upto(INF, 1)] * 60
    spread(fill, dm, 2, cfg.get("dma4", 0.25))
    if cfg.get("fine"):
        for n, idx in enumerate((0, 40, 80, 120, 160, 200)):
            fill.setdefault(idx, []).append(lambda n=n: stamp(a, 22 + n, cfg))

    def hook():
        poll_check(a)
        stamp(a, 13, cfg)
        for s in range(AW):
            aload(a, s, setup)
        a.wait_vm(("hst", 1))
        signal(a, L.C_H1, S_TB32)
        a.wait_vm(("hst", 2))
        signal(a, L.C_H2, S_TB32)
    run_pass(a, ring, mf, fill, bars, cfg.get("d16", 15), 5, hook, V_ACC)
    stamp(a, 14, cfg)
    out_epilogue(a, ring, cfg, L.LSTR + L.X, L.LSTR + L.ST, L.C_X, True, True)
    stamp(a, 15, cfg)

def gen_main(name="main_kernel", cfg=None):
    cfg = cfg or {}
    a = Asm()
    ring = Ring(a)
    a.e(f".globl {name}\n.p2align 8\n.type {name},@function\n{name}:")
    a.e("s_cmp_ge_u32 s2, 256\ns_cbranch_scc1 L_end")
    a.e("s_load_dwordx2 s[44:45], s[0:1], 56\ns_load_dwordx2 s[12:13], s[0:1], 72")
    a.e(f"v_and_b32 v{V_LANE}, 63, v0\nv_lshlrev_b32 v{V_L16}, 4, v{V_LANE}\nv_lshlrev_b32 v{V_T16}, 4, v0")
    a.e(f"v_lshrrev_b32 v30, 6, v0\nv_readfirstlane_b32 s{S_W}, v30")
    a.e(f"s_and_b32 s46, s2, 6\ns_lshl_b32 s46, s46, 1\ns_lshr_b32 s47, s2, 3\ns_and_b32 s47, s47, 3\ns_add_u32 s{S_I}, s46, s47")
    a.e(f"s_and_b32 s46, s2, 1\ns_lshl_b32 s46, s46, 3\ns_lshr_b32 s47, s2, 5\ns_add_u32 s{S_J}, s46, s47")
    a.e(f"s_lshl_b32 s{S_W1K}, s{S_W}, 10")
    a.e(f"s_lshr_b32 s48, s{S_J}, 1\ns_and_b32 s49, s{S_J}, 1")
    a.e(f"s_mul_i32 s20, s{S_J}, {L.WQKV_STR}\ns_add_u32 s20, s20, {L.WQKV}")
    a.e(f"s_mul_i32 s21, s48, {L.WO_STR}\ns_add_u32 s21, s21, {L.WO}")
    a.e(f"s_mul_i32 s22, s{S_J}, {L.W13_STR}\ns_add_u32 s22, s22, {L.W13}")
    a.e(f"s_mul_i32 s23, s48, {L.W2_STR}\ns_add_u32 s23, s23, {L.W2}")
    a.e("s_waitcnt lgkmcnt(0)")
    for d in (SRD_WS, SRD_NX):
        a.e(f"s_mov_b32 s{d}, s12\ns_and_b32 s{d+1}, s13, 0xffff\ns_mov_b32 s{d+2}, {L.WS_USED}\ns_mov_b32 s{d+3}, 0x20000")
    a.e(f"s_mov_b32 s8, s44\ns_and_b32 s9, s45, 0xffff\ns_mov_b32 s10, {2048*1280}\ns_mov_b32 s11, 0x20000")
    a.e(f"s_mov_b32 s{S_LAY}, 0\ns_mov_b32 s{S_LOFF}, {L.LBASE}\ns_mov_b32 s{S_COFF}, 0")
    if cfg.get("timing"):
        a.e(f"s_add_u32 s72, s12, {cfg['timing']}\ns_addc_u32 s73, s13, 0\ns_and_b32 s73, s73, 0xffff\ns_mov_b32 s74, {1024*256}\ns_mov_b32 s75, 0x20000")
        a.e(f"s_lshl_b32 s{S_TS+2}, s2, 2\ns_add_u32 s{S_TS+2}, s{S_TS+2}, s{S_W}\ns_lshl_b32 s{S_TS+2}, s{S_TS+2}, 8\nv_mov_b32 v30, 0")
    stamp(a, 0, cfg)
    ring.freed = 0
    a.e(f"s_lshl_b32 s{S_TB32}, s{S_I}, 2\ns_add_u32 s{S_TB32}, s{S_TB32}, s{S_W}")
    a.e(f"s_mul_i32 s{S_XA}, s{S_TB32}, 40960\ns_lshl_b32 s{S_STA}, s{S_TB32}, 11")
    setup0 = a_setup(a, S_XA, L.X)
    for blk in range(cfg.get("la0", 3)):
        for k in range(3):
            ring.dma()
        for s_ in range(4 * blk, 4 * blk + 4):
            aload(a, s_, setup0)
    a.e(f"s_lshl_b32 s{S_TB16}, s{S_I}, 3\ns_lshl_b32 s46, s49, 2\ns_add_u32 s{S_TB16}, s{S_TB16}, s46\ns_add_u32 s{S_TB16}, s{S_TB16}, s{S_W}")
    a.e(f"s_lshr_b32 s{S_TB32P}, s{S_TB16}, 1")
    a.e(f"s_mul_i32 s{S_OA}, s{S_TB16}, 20480\ns_mul_i32 s{S_HA}, s{S_TB16}, 49152")
    a.e(f"s_and_b32 s50, s{S_TB16}, 1")
    a.e(f"s_mul_i32 s{S_XS}, s{S_TB32P}, 40960\ns_mul_i32 s46, s48, 5120\ns_add_u32 s{S_XS}, s{S_XS}, s46\ns_lshl_b32 s46, s50, 8\ns_add_u32 s{S_XS}, s{S_XS}, s46")
    a.e(f"s_lshl_b32 s{S_STS}, s{S_TB32P}, 11\ns_lshl_b32 s46, s48, 8\ns_add_u32 s{S_STS}, s{S_STS}, s46\ns_lshl_b32 s46, s50, 7\ns_add_u32 s{S_STS}, s{S_STS}, s46")
    a.e(f"s_mul_i32 s{S_OS}, s{S_TB32}, 40960\ns_mul_i32 s46, s{S_J}, 1280\ns_add_u32 s{S_OS}, s{S_OS}, s46\ns_add_u32 s{S_OS}, s{S_OS}, {L.O}")
    a.e(f"s_mul_i32 s47, s{S_TB32}, {2*49152}\ns_add_u32 s47, s47, {L.H}")
    a.e(f"s_mul_i32 s46, s{S_J}, 1536\ns_add_u32 s{S_HS[0]}, s47, s46")
    a.e(f"s_lshl_b32 s46, s{S_J}, 10\ns_add_u32 s46, s46, {48*512}\ns_add_u32 s{S_HS[1]}, s47, s46")
    a.e(f"s_lshl_b32 s46, s{S_J}, 9\ns_add_u32 s46, s46, {80*512}\ns_add_u32 s{S_HS[2]}, s47, s46")
    a.e(f"s_mul_i32 s{S_KVR}, s{S_J}, {16*L.KV_STR}\ns_add_u32 s{S_KVR}, s{S_KVR}, {L.KV}")
    a.e(f"s_mul_i32 s46, s{S_I}, {L.KV_STR}\ns_add_u32 s{S_KVS}, s{S_KVR}, s46")
    a.e(f"s_mul_i32 s{S_OUT}, s{S_TB16}, {16*1280}\ns_mul_i32 s46, s48, 160\ns_add_u32 s{S_OUT}, s{S_OUT}, s46")
    a.e(f"s_lshl_b32 s{S_KVC}, s{S_J}, 2\ns_add_u32 s{S_KVC}, s{S_KVC}, s{S_W}")
    a.e(f"s_mov_b32 s{S_ONE}, 1\ns_mov_b32 s{S_C256}, 256")
    a.e(f"s_mov_b32 s{S_EPS2}, {f32bits(1e-6)}\ns_mov_b32 s{S_EPS2+1}, {f32bits(1e-6)}\ns_mov_b32 s{S_ONE2}, 1.0\ns_mov_b32 s{S_ONE2+1}, 1.0")
    a.e(f"v_mov_b32 v31, 210\nv_cmp_gt_u32 s[{S_M210}:{S_M210+1}], v31, v0")
    tok, hf, t16, g, x, y, z = 208, 209, 210, 211, 212, 213, 214
    ln = V_LANE
    a.e(f"v_add_u32 v{V_L16B}, 0x10000, v{V_L16}\nv_add_u32 v{V_L16C}, 0x20000, v{V_L16}")
    a.e(f"v_and_b32 v{tok}, 31, v{ln}\nv_lshrrev_b32 v{hf}, 5, v{ln}\nv_and_b32 v{t16}, 15, v{ln}\nv_lshrrev_b32 v{g}, 4, v{ln}")
    a.e(f"v_lshlrev_b32 v{x}, 10, v{hf}\nv_lshl_add_u32 v{V_STL}, v{tok}, 3, v{x}")
    a.e(f"v_lshlrev_b32 v{x}, 8, v{hf}\nv_lshl_add_u32 v{x}, v{t16}, 4, v{x}\nv_bfe_u32 v{y}, v{ln}, 4, 1")
    a.e(f"v_mul_u32_u24 v{z}, 20480, v{y}\nv_add_u32 v{V_OST}, v{x}, v{z}")
    a.e(f"v_mul_u32_u24 v{z}, 49152, v{y}\nv_add_u32 v{V_HST}, v{x}, v{z}")
    a.e(f"v_lshlrev_b32 v{x}, 9, v{g}\nv_lshl_add_u32 v{V_XS1}, v{t16}, 4, v{x}")
    a.e(f"v_lshlrev_b32 v{x}, 9, v{hf}\nv_lshl_add_u32 v{x}, v{t16}, 4, v{x}\nv_lshl_add_u32 v{x}, v{y}, 3, v{x}\nv_add_u32 v{V_XS2}, 4096, v{x}")
    a.e(f"v_mul_u32_u24 v{x}, 1280, v{t16}\nv_lshl_add_u32 v{V_OUT1}, v{g}, 4, v{x}\nv_lshl_add_u32 v{x}, v{g}, 3, v{x}\nv_add_u32 v{V_OUT2}, 128, v{x}")
    a.e(f"v_lshlrev_b32 v{V_STS}, 3, v{ln}")
    a.e(f"s_add_u32 s{S_T}, s{S_XS}, {L.LBASE + L.X}")
    P = 128
    a.vm(f"buffer_load_dwordx4 v[{P}:{P+3}], v{V_XS1}, s[{SRD_WS}:{SRD_WS+3}], s{S_T} offen", "res")
    a.vm(f"buffer_load_dwordx4 v[{P+4}:{P+7}], v{V_XS1}, s[{SRD_WS}:{SRD_WS+3}], s{S_T} offen offset:2048", "res")
    a.vm(f"buffer_load_dwordx2 v[{P+8}:{P+9}], v{V_XS2}, s[{SRD_WS}:{SRD_WS+3}], s{S_T} offen", "res")
    stats_load(a, L.ST)
    a.e(f"s_mul_i32 s46, s{S_W}, {GC_STR}\ns_add_u32 s46, s46, {GC_OFF}")
    a.e(f"v_mul_u32_u24 v{x}, 80, v{tok}\nv_lshl_add_u32 v{x}, v{hf}, 4, v{x}\nv_add_u32 v{x}, s46, v{x}")
    a.e(f"v_subrev_u32 v{y}, 80, v{x}\nv_cmp_le_u32 vcc, 20, v{tok}\nv_cndmask_b32 v{V_G0}, v{x}, v{y}, vcc")
    a.e(f"v_add_u32 v{x}, {24*80}, v{x}\nv_subrev_u32 v{y}, 80, v{x}\nv_cmp_gt_u32 vcc, 16, v{tok}\nv_cndmask_b32 v{V_G1}, v{x}, v{y}, vcc")
    a.e(f"v_mul_u32_u24 v{x}, 205, v0\nv_lshrrev_b32 v{x}, 10, v{x}\nv_mul_u32_u24 v{y}, 5, v{x}\nv_sub_u32 v{y}, v0, v{y}")
    a.e(f"v_mul_u32_u24 v{z}, 112, v{x}\nv_lshl_add_u32 v{z}, v{y}, 3, v{z}\nv_add_u32 v{z}, {GB_OFF}, v{z}\nv_add_u32 v{y}, 40, v{z}")
    a.e(f"v_cmp_le_u32 vcc, 20, v{x}\nv_cndmask_b32 v{y}, v{z}, v{y}, vcc\nv_cmp_eq_u32 vcc, 40, v{x}\nv_cndmask_b32 v{V_GBW}, v{y}, v{z}, vcc")
    a.e(f"v_lshrrev_b32 v{x}, 4, v{tok}\nv_mul_u32_u24 v{x}, 24, v{x}\nv_bfe_u32 v{y}, v{tok}, 2, 1\nv_lshl_add_u32 v{x}, v{y}, 3, v{x}")
    a.e(f"v_bfe_u32 v{y}, v{tok}, 3, 1\nv_lshl_add_u32 v{x}, v{y}, 2, v{x}\nv_and_b32 v{z}, 3, v{tok}\nv_add_u32 v{x}, v{x}, v{z}")
    a.e(f"v_mul_u32_u24 v{x}, 112, v{x}\nv_lshl_add_u32 v{x}, v{hf}, 4, v{x}\nv_add_u32 v{V_GBX}, {GB_OFF}, v{x}")
    a.e(f"v_lshl_add_u32 v{x}, v{y}, 2, v{z}\nv_add_u32 v{x}, 16, v{x}\nv_mov_b32 v{y}, 42")
    a.e(f"v_and_b32 v215, 0x14, v{tok}\nv_cmp_eq_u32 vcc, 0, v215\nv_cndmask_b32 v{y}, v{y}, v{x}, vcc")
    a.e(f"v_add_u32 v{x}, 40, v{z}\nv_and_b32 v215, 0x1a, v{tok}\nv_cmp_eq_u32 vcc, 16, v215\nv_cndmask_b32 v{y}, v{y}, v{x}, vcc")
    a.e(f"v_mul_u32_u24 v{x}, 112, v{y}\nv_lshl_add_u32 v{x}, v{hf}, 4, v{x}\nv_add_u32 v{V_GBY}, {GB_OFF}, v{x}")
    a.e(f"s_mul_i32 s46, s{S_W}, 2304\ns_add_u32 s46, s46, {QT_OFF}\ns_mul_i32 s47, s{S_W}, 576\ns_add_u32 s47, s47, {Q1_OFF}")
    a.e(f"v_mul_u32_u24 v{x}, 72, v{tok}\nv_lshl_add_u32 v{x}, v{hf}, 3, v{x}\nv_add_u32 v{V_QW3}, s46, v{x}")
    a.e(f"v_add_u32 v{x}, s47, v{x}\nv_subrev_u32 v{V_QW1}, {20*72}, v{x}")
    a.e(f"v_bfe_u32 v{x}, v{ln}, 2, 2\nv_mul_u32_u24 v{x}, 72, v{x}\nv_bfe_u32 v{y}, v{ln}, 4, 1\nv_lshl_add_u32 v{x}, v{y}, 5, v{x}")
    a.e(f"v_and_b32 v{y}, 3, v{ln}\nv_lshl_add_u32 v{x}, v{y}, 3, v{x}\nv_add_u32 v{V_QR2}, s47, v{x}")
    a.e(f"v_mul_u32_u24 v{y}, {8*72}, v{hf}\nv_add_u32 v{x}, v{x}, v{y}\nv_add_u32 v{V_QR}, s46, v{x}")
    a.e(f"v_mov_b32 v{V_C2}, 0\nv_mov_b32 v{V_C3}, 0\nv_mov_b32 v{V_LO}, 0\nv_mov_b32 v{V_C2+1}, 0\nv_mov_b32 v{V_C3+1}, 0")
    set_exec(a, 0x0FF000FF, 0x0FF000FF)
    a.e(f"v_mov_b32 v{V_C3}, s{S_EPS2}\nv_mov_b32 v{V_LO}, s{S_EPS2}")
    set_exec(a, 0x0000FF00, 0x0000FF00)
    a.e(f"v_mov_b32 v{V_C2}, 0xff800000\nv_mov_b32 v{V_LO}, 0xff800000")
    a.e("s_mov_b64 exec, -1")
    a.e(f"s_lshl_b32 s46, s{S_W}, 8\ns_add_u32 s46, s46, {RS_OFF}")
    a.e(f"v_lshlrev_b32 v{x}, 2, v{ln}\nv_add_u32 v{V_RSW}, s46, v{x}\nv_lshlrev_b32 v{x}, 4, v{hf}\nv_add_u32 v{V_RSR}, s46, v{x}")
    stamp(a, 1, cfg)
    p1a(a, ring, cfg, True)
    a.wait_vm("res")
    for p in range(10):
        a.e(f"v_lshlrev_b32 v{V_RES+2*p}, 16, v{P+p}\nv_and_b32 v{V_RES+2*p+1}, 0xffff0000, v{P+p}")
    a.e("s_branch L_join")
    j0 = (ring.next, ring.cons, list(a.lgq))
    fr0 = ring.freed
    a.e("L_top:")
    a.vmq = list(cfg["_vmq_top"]) if "_vmq_top" in cfg else [("dma", p_) for p_ in range(0, RING, 4)]
    a.lgq = []
    ring.next, ring.pub, ring.cons, ring.freed = RING, 0, 0, 0
    p1a(a, ring, cfg, False)
    assert j0 == (ring.next, ring.cons, list(a.lgq)), (j0, ring.next, ring.cons, a.lgq)
    ring.freed = min(ring.freed, fr0)
    ring.pub = 123
    a.e("L_join:")
    a.e("s_nop 7\ns_nop 3")
    a.vmq = [("dma", 160)]
    stop = cfg.get("stop", 99)
    p1rest(a, ring, cfg)
    if stop == 1:
        a.e("s_endpgm")
    phase2(a, ring, cfg)
    if stop == 2:
        a.e("s_endpgm")
    phase3(a, ring, cfg)
    phase4(a, ring, cfg)
    assert ring.next == TOT + RING and ring.freed == TOT, (ring.next, ring.freed)
    bottom = [((t[0], t[1] - TOT) if isinstance(t, tuple) and t[0] == "dma" else "old") for t in a.vmq]
    if cfg.get("_vmq_top") != bottom:
        cfg = dict(cfg)
        cfg["_vmq_top"] = bottom
        return gen_main(name, cfg)
    if stop == 4:
        a.e("s_endpgm")
    a.e(f"s_mov_b32 s{S_LAY}, 1\ns_mov_b32 s{S_LOFF}, {L.LBASE + L.LSTR}\ns_mov_b32 s{S_COFF}, {L.CNT_PER_LAYER * L.CNT_STRIDE}")
    a.e(f"s_mov_b32 s{SRD_NX+2}, 0")
    a.e("s_branch L_top")
    a.e("L_final:")
    P = V_TMP
    a.e(f"buffer_store_dwordx4 v[{P}:{P+3}], v{V_OUT1}, s[8:11], s{S_OUT} offen")
    a.e(f"buffer_store_dwordx4 v[{P+4}:{P+7}], v{V_OUT1}, s[8:11], s{S_OUT} offen offset:64")
    a.e(f"buffer_store_dwordx2 v[{P+8}:{P+9}], v{V_OUT2}, s[8:11], s{S_OUT} offen")
    stamp(a, 15, cfg)
    a.e("s_waitcnt vmcnt(0)")
    a.e("L_end:\ns_endpgm")
    return a.text(), kd(name, 512, 96, 256), a


if __name__ == "__main__":
    t, k, a = gen_main()
    print(t)
```

```python
from asmcore import *
import layout as L

N_QKV, N_W13, N_W2, N_WO, N_X = 64, 96, 48, 20, 64
B_QKV = 0
B_W13 = B_QKV + N_QKV
B_W2 = B_W13 + N_W13
B_WO = B_W2 + N_W2
B_X = B_WO + N_WO
PREP_GRID = B_X + N_X
PREP_LDS = 40960
ST_FLAG = "sc1"


def srd(a, d, base, size):
    a.e(f"s_mov_b32 s{d}, s{base}\ns_and_b32 s{d+1}, s{base+1}, 0xffff\ns_mov_b32 s{d+2}, {size}\ns_mov_b32 s{d+3}, 0x20000")


def colsum_tail(a, acc, s_kq, s_meanoff):
    a.e(f"v_mov_b32 v10, v{acc}")
    a.e(f"v_permlane32_swap_b32 v{acc}, v10")
    a.e(f"v_add_f32 v{acc}, v{acc}, v10")
    a.e(f"v_cvt_pk_bf16_f32 v12, v{acc}, v{acc}")
    a.e(f"v_and_b32 v10, 0xffff0000, v12")
    a.e(f"v_sub_f32 v10, v{acc}, v10")
    a.e(f"v_cvt_pk_bf16_f32 v13, v10, v10")
    a.e(f"s_lshr_b32 s40, s{s_kq}, 1\ns_lshl_b32 s40, s40, 9\ns_and_b32 s41, s{s_kq}, 1\ns_lshl_b32 s41, s41, 3")
    a.e(f"s_add_u32 s40, s40, s41\ns_add_u32 s40, s40, s{s_meanoff}")
    a.e("s_mov_b32 exec_hi, 0")
    a.e(f"buffer_store_dwordx2 v[12:13], v2, s[8:11], s40 offen {ST_FLAG}")


def tr_pack32(a, pitch, s_out, s_stride):
    for s in range(10):
        for u in range(2):
            a.ds(f"ds_read_b64_tr_b16 v[{16+4*s+2*u}:{17+4*s+2*u}], v4 offset:{(16*s+4*u)*pitch}", ("t", s))
        if s >= 5:
            pass
    a.e("v_mov_b32 v9, 0\ns_mov_b32 s42, 0x3f803f80")
    a.wait_ds_all()
    for s in range(10):
        a.e(f"buffer_store_dwordx4 v[{16+4*s}:{19+4*s}], v2, s[8:11], s{s_out} offen {ST_FLAG}")
        a.e(f"s_add_u32 s{s_out}, s{s_out}, s{s_stride}")
        for r in range(4):
            a.e(f"v_dot2_f32_bf16 v9, v{16+4*s+r}, s42, v9")


def gen_prep(name="prep_kernel", code_prefetch=True, tlb=None):
    a = Asm()
    a.e(f".globl {name}\n.p2align 8\n.type {name},@function\n{name}:")
    a.e(f"s_cmp_ge_u32 s2, {PREP_GRID}\ns_cbranch_scc1 LP_end")
    a.e("s_load_dwordx4 s[16:19], s[0:1], 0")
    a.e("s_load_dwordx2 s[20:21], s[0:1], 16")
    a.e("s_load_dwordx4 s[24:27], s[0:1], 32")
    a.e("s_load_dwordx2 s[28:29], s[0:1], 48")
    a.e("s_load_dwordx2 s[30:31], s[0:1], 72")
    a.e("v_and_b32 v1, 63, v0")
    a.e("v_lshlrev_b32 v2, 4, v1")
    a.e("v_lshrrev_b32 v3, 6, v0")
    a.e("v_readfirstlane_b32 s3, v3")
    if code_prefetch:
        a.e("s_getpc_b64 s[50:51]\nLP_pc:")
        a.e("s_add_u32 s50, s50, main_kernel-LP_pc\ns_addc_u32 s51, s51, 0")
        a.e("s_lshr_b32 s52, s2, 3\ns_lshl_b32 s52, s52, 12")
        a.e("v_lshlrev_b32 v68, 4, v0\nv_add_u32 v68, s52, v68")
        a.e("v_cmp_gt_u32 vcc, L_end-main_kernel-16, v68")
        a.e("v_mov_b32 v71, s51\nv_add_co_u32 v70, s[54:55], s50, v68\nv_addc_co_u32 v71, s[54:55], 0, v71, s[54:55]")
        a.e("s_and_saveexec_b64 s[56:57], vcc\ns_cbranch_execz LP_nopf")
        a.e("global_load_dwordx4 v[72:75], v[70:71], off")
        a.e("LP_nopf:\ns_mov_b64 exec, s[56:57]")
    a.e("s_waitcnt lgkmcnt(0)")
    srd(a, 8, 30, L.WS_USED)
    if tlb:
        sh, n = tlb
        a.e(f"v_lshlrev_b32 v69, {sh}, v0")
        for k in range(n):
            a.e(f"s_mov_b32 s53, {(k * 256) << sh}")
            a.e(f"buffer_load_dword v76, v69, s[8:11], s53 offen")
    a.e(f"s_cmp_ge_u32 s2, {B_X}\ns_cbranch_scc1 LP_x")
    a.e(f"s_cmp_ge_u32 s2, {B_W2}\ns_cbranch_scc1 LP_w2")
    a.e(f"s_cmp_ge_u32 s2, {B_W13}\ns_cbranch_scc1 LP_w13")

    srd(a, 12, 18, 640 * 3840)
    a.e("s_and_b32 s32, s2, 15\ns_lshr_b32 s33, s2, 4")
    a.e("v_lshrrev_b32 v5, 4, v1\nv_and_b32 v6, 15, v1")
    a.e("v_mul_u32_u24 v7, 52, v6\nv_lshrrev_b32 v7, 8, v7")
    a.e("v_mul_u32_u24 v8, 5, v7\nv_sub_u32 v8, v6, v8")
    a.e("v_mul_u32_u24 v5, 3840, v5\nv_mul_u32_u24 v9, 1280, v7\nv_add_u32 v5, v5, v9")
    a.e("v_lshlrev_b32 v8, 4, v8\nv_add_u32 v5, v5, v8")
    a.e("v_mov_b32 v9, 0x80000000\nv_cmp_eq_u32 vcc, 15, v6\nv_cndmask_b32 v5, v5, v9, vcc")
    a.e(f"s_mul_i32 s34, s33, {160*3840}\ns_mul_i32 s35, s3, {40*3840}\ns_add_u32 s34, s34, s35")
    a.e("s_mul_i32 s35, s32, 80\ns_add_u32 s34, s34, s35")
    a.e("s_mul_i32 s36, s3, 10240")
    for n in range(10):
        a.e(f"s_add_u32 m0, s36, {n*1024}")
        a.e(f"buffer_load_dwordx4 v5, s[12:15], s34 offen lds")
        a.e(f"s_add_u32 s34, s34, {4*3840}")
    tabs = [[80 + 8 * c for c in range(8)],
            [144, 152, 224, 232, 240, 64, 72, 240],
            [160 + 8 * c for c in range(8)],
            [8 * c for c in range(8)]]
    pk = lambda t: (t[0] | t[1] << 8 | t[2] << 16 | t[3] << 24, t[4] | t[5] << 8 | t[6] << 16 | t[7] << 24)
    lo, hi = pk(tabs[0])
    a.e(f"s_mov_b32 s38, {lo}\ns_mov_b32 s39, {hi}")
    for t in range(1, 4):
        lo, hi = pk(tabs[t])
        a.e(f"s_cmp_eq_u32 s3, {t}\ns_cselect_b32 s38, {lo}, s38\ns_cselect_b32 s39, {hi}, s39")
    a.e("v_mov_b32 v6, s38\nv_mov_b32 v7, s39\nv_and_b32 v8, 16, v1\nv_cmp_ne_u32 vcc, 0, v8\nv_cndmask_b32 v6, v6, v7, vcc")
    a.e("v_and_b32 v8, 3, v1\nv_lshlrev_b32 v8, 3, v8\nv_lshrrev_b32 v6, v8, v6\nv_and_b32 v6, 0xff, v6")
    a.e("v_lshrrev_b32 v7, 5, v1\nv_lshlrev_b32 v7, 3, v7\nv_bfe_u32 v8, v1, 2, 2\nv_add_u32 v7, v7, v8")
    a.e("v_lshlrev_b32 v7, 8, v7\nv_add_u32 v4, v6, v7")
    a.e("s_mov_b32 s44, 1024\ns_cmp_lt_u32 s3, 3\ns_cselect_b32 s43, s3, 123\ns_cselect_b32 s44, 3072, s44")
    a.e(f"s_lshl_b32 s43, s43, 10\ns_mul_i32 s45, s32, {L.WQKV_STR}\ns_add_u32 s43, s43, s45\ns_add_u32 s43, s43, {L.WQKV}")
    a.e("s_mul_i32 s45, s44, 40\ns_add_u32 s46, s43, s45")
    a.e("s_mul_i32 s45, s44, 10\ns_mul_i32 s45, s45, s33\ns_add_u32 s43, s43, s45")
    a.e("s_waitcnt vmcnt(0)\ns_barrier")
    tr_pack32(a, 256, 43, 44)
    colsum_tail(a, 9, 33, 46)
    a.e("s_endpgm")

    a.e("LP_w13:")
    a.e(f"s_sub_u32 s32, s2, {B_W13}")
    a.e("s_mul_i32 s33, s32, 43\ns_lshr_b32 s33, s33, 10")
    a.e("s_mul_i32 s34, s33, 24\ns_sub_u32 s32, s32, s34")
    a.e("s_cmp_lt_u32 s3, 2\ns_cselect_b32 s22, s24, s26\ns_cselect_b32 s23, s25, s27")
    srd(a, 12, 22, 640 * 3072)
    a.e("v_lshrrev_b32 v5, 3, v1\nv_and_b32 v6, 7, v1")
    a.e("v_mul_u32_u24 v5, 3072, v5\nv_lshlrev_b32 v6, 4, v6\nv_add_u32 v5, v5, v6")
    a.e(f"s_mul_i32 s34, s33, {160*3072}\ns_and_b32 s35, s3, 1\ns_mul_i32 s35, s35, {80*3072}\ns_add_u32 s34, s34, s35")
    a.e("s_lshl_b32 s35, s32, 7\ns_add_u32 s34, s34, s35")
    a.e("s_mul_i32 s36, s3, 10240")
    for n in range(10):
        a.e(f"s_add_u32 m0, s36, {n*1024}")
        a.e(f"buffer_load_dwordx4 v5, s[12:15], s34 offen lds")
        a.e(f"s_add_u32 s34, s34, {8*3072}")
    a.e("v_bfe_u32 v6, v1, 4, 1\nv_mul_u32_u24 v6, 20480, v6")
    a.e("v_and_b32 v7, 1, v1\nv_lshlrev_b32 v7, 4, v7\nv_add_u32 v6, v6, v7")
    a.e("v_bfe_u32 v7, v1, 1, 1\nv_lshlrev_b32 v7, 3, v7\nv_add_u32 v6, v6, v7")
    a.e("s_lshl_b32 s35, s3, 5\nv_add_u32 v6, s35, v6")
    a.e("v_lshrrev_b32 v7, 5, v1\nv_lshlrev_b32 v7, 3, v7\nv_bfe_u32 v8, v1, 2, 2\nv_add_u32 v7, v7, v8")
    a.e("v_lshlrev_b32 v7, 7, v7\nv_add_u32 v4, v6, v7")
    a.e("s_lshl_b32 s37, s32, 2\ns_add_u32 s37, s37, s3")
    a.e("s_mul_i32 s38, s37, 43\ns_lshr_b32 s38, s38, 7")
    a.e("s_mul_i32 s39, s38, 3\ns_sub_u32 s39, s37, s39\ns_mov_b32 s44, 3072")
    a.e("s_sub_u32 s40, s37, 48\ns_lshr_b32 s41, s40, 1\ns_and_b32 s40, s40, 1\ns_add_u32 s40, s40, 123")
    a.e("s_cmp_ge_u32 s37, 48\ns_cselect_b32 s38, s41, s38\ns_cselect_b32 s39, s40, s39\ns_cselect_b32 s44, 2048, s44")
    a.e("s_sub_u32 s41, s37, 80")
    a.e("s_cmp_ge_u32 s37, 80\ns_cselect_b32 s38, s41, s38\ns_cselect_b32 s39, 205, s39\ns_cselect_b32 s44, 1024, s44")
    a.e(f"s_lshl_b32 s43, s39, 10\ns_mul_i32 s45, s38, {L.W13_STR}\ns_add_u32 s43, s43, s45\ns_add_u32 s43, s43, {L.W13}")
    a.e("s_mul_i32 s45, s44, 40\ns_add_u32 s46, s43, s45")
    a.e("s_mul_i32 s45, s44, 10\ns_mul_i32 s45, s45, s33\ns_add_u32 s43, s43, s45")
    a.e("s_waitcnt vmcnt(0)\ns_barrier")
    tr_pack32(a, 128, 43, 44)
    colsum_tail(a, 9, 33, 46)
    a.e("s_endpgm")

    a.e("LP_w2:")
    a.e(f"s_sub_u32 s32, s2, {B_W2}\ns_sub_u32 s33, s2, {B_WO}")
    a.e(f"s_cmp_ge_u32 s2, {B_WO}")
    a.e("s_cselect_b32 s32, s33, s32")
    a.e("s_cselect_b32 s22, s20, s28\ns_cselect_b32 s23, s21, s29")
    a.e(f"s_mov_b32 s34, {1536*1280}\ns_mov_b32 s35, {L.W2}\ns_mov_b32 s37, {L.W2_STR}")
    a.e(f"s_cselect_b32 s34, {640*1280}, s34")
    a.e(f"s_cselect_b32 s35, {L.WO}, s35\ns_cselect_b32 s37, {L.WO_STR}, s37")
    a.e("s_mov_b32 s12, s22\ns_and_b32 s13, s23, 0xffff\ns_mov_b32 s14, s34\ns_mov_b32 s15, 0x20000")
    a.e("s_mul_i32 s36, s3, 10240\ns_mul_i32 s34, s32, 40960\ns_add_u32 s34, s34, s36")
    for n in range(10):
        a.e(f"s_add_u32 m0, s36, {n*1024}")
        a.e(f"buffer_load_dwordx4 v2, s[12:15], s34 offen lds")
        a.e(f"s_add_u32 s34, s34, 1024")
    a.e("v_lshrrev_b32 v7, 4, v1\nv_lshlrev_b32 v7, 3, v7\nv_bfe_u32 v8, v1, 2, 2\nv_add_u32 v7, v7, v8")
    a.e("v_mul_u32_u24 v7, 1280, v7\ns_mul_i32 s38, s3, 320\nv_add_u32 v7, s38, v7")
    a.e("v_and_b32 v8, 3, v1\nv_lshl_add_u32 v4, v8, 4, v7\nv_lshl_add_u32 v5, v8, 3, v7")
    a.e("s_lshl_b32 s38, s3, 1\ns_mul_i32 s38, s38, s37\ns_add_u32 s43, s35, s38")
    a.e("s_mul_i32 s38, s32, 5120\ns_add_u32 s43, s43, s38")
    a.e("s_waitcnt vmcnt(0)\ns_barrier")
    for cc in range(2):
        for t in range(5):
            f = cc * 5 + t
            for u in range(2):
                if t < 4:
                    off = cc * 160 + (t >> 1) * 64 + (t & 1) * 8 + u * 4 * 1280
                    a.ds(f"ds_read_b64_tr_b16 v[{16+4*f+2*u}:{17+4*f+2*u}], v4 offset:{off}")
                else:
                    off = cc * 160 + 128 + u * 4 * 1280
                    a.ds(f"ds_read_b64_tr_b16 v[{16+4*f+2*u}:{17+4*f+2*u}], v5 offset:{off}")
    a.wait_ds_all()
    for cc in range(2):
        for t in range(5):
            f = cc * 5 + t
            if t < 4:
                a.e(f"buffer_store_dwordx4 v[{16+4*f}:{19+4*f}], v2, s[8:11], s43 offen offset:{t*1024} {ST_FLAG}")
            else:
                a.e("s_add_u32 s44, s43, 4096")
                a.e(f"buffer_store_dwordx4 v[{16+4*f}:{19+4*f}], v2, s[8:11], s44 offen {ST_FLAG}")
        a.e("s_add_u32 s43, s43, s37")
    a.e("s_endpgm")

    a.e("LP_x:")
    srd(a, 12, 16, 2048 * 1280)
    a.e(f"s_sub_u32 s32, s2, {B_X}")
    a.e("v_and_b32 v5, 7, v1\ns_lshl_b32 s33, s3, 3\nv_add_u32 v5, s33, v5")
    a.e("v_lshrrev_b32 v6, 3, v1")
    a.e("v_mul_u32_u24 v7, 1280, v5\nv_lshl_add_u32 v7, v6, 4, v7")
    a.e("s_mul_i32 s34, s32, 40960")
    for q in range(10):
        a.e(f"buffer_load_dwordx4 v[{16+4*q}:{19+4*q}], v7, s[12:15], s34 offen offset:{q*128}")
    a.e("v_mov_b32 v10, 0\nv_lshlrev_b32 v11, 8, v0\ns_lshl_b32 s35, s32, 12")
    a.e("v_cmp_gt_u32 vcc, 16, v0\ns_and_saveexec_b64 s[36:37], vcc\ns_cbranch_execz LP_nz")
    a.e(f"buffer_store_dword v10, v11, s[8:11], s35 offen {ST_FLAG}")
    a.e("LP_nz:\ns_mov_b64 exec, s[36:37]")
    a.e("v_lshlrev_b32 v8, 9, v6\nv_lshl_add_u32 v8, v5, 4, v8")
    a.e("v_lshlrev_b32 v9, 8, v6\nv_lshl_add_u32 v9, v5, 3, v9")
    a.e(f"s_add_u32 s34, s34, {L.LBASE + L.X}")
    a.e(f"s_lshl_b32 s38, s32, 11\ns_add_u32 s38, s38, {L.LBASE + L.ST}")
    a.e("s_mov_b32 s42, 0x3f803f80\nv_mov_b32 v12, 0")
    a.e("s_waitcnt vmcnt(0)")
    for q in range(10):
        a.e(f"buffer_store_dwordx4 v[{16+4*q}:{19+4*q}], v8, s[8:11], s34 offen {ST_FLAG}")
        a.e("s_add_u32 s34, s34, 4096")
        for r in range(4):
            a.e(f"v_dot2_f32_bf16 v12, v{16+4*q+r}, s42, v12")
    a.e(f"v_mul_f32 v12, {f32bits(1.0/80)}, v12")
    a.e("v_mov_b32 v14, 0\nv_mov_b32 v15, 0")
    for r in range(40):
        t = 60 + 2 * (r & 3)
        a.e(f"v_lshlrev_b32 v{t}, 16, v{16+r}\nv_and_b32 v{t+1}, 0xffff0000, v{16+r}")
        a.e(f"v_pk_add_f32 v[{t}:{t+1}], v[{t}:{t+1}], v[12:13] op_sel_hi:[1,0] neg_lo:[0,1] neg_hi:[0,1]")
        a.e(f"v_pk_fma_f32 v[14:15], v[{t}:{t+1}], v[{t}:{t+1}], v[14:15]")
    a.e("v_add_f32 v13, v14, v15")
    a.e(f"buffer_store_dwordx2 v[12:13], v9, s[8:11], s38 offen {ST_FLAG}")
    a.e("LP_end:\ns_endpgm")
    return a.text(), kd(name, 80, 64, 80)


if __name__ == "__main__":
    t, k = gen_prep()
    print(t)
```

```python
import re

TRANS = ("v_exp_f32", "v_log_f32", "v_rcp_f32", "v_rsq_f32", "v_sqrt_f32", "v_sin_f32", "v_cos_f32")


def _regs(tok):
    tok = tok.strip()
    tok = tok.lstrip("-")
    if tok.startswith("abs(") or tok.startswith("|"):
        tok = tok.replace("abs(", "").replace(")", "").replace("|", "")
    m = re.fullmatch(r"([vas])(\d+)", tok)
    if m:
        return {(m.group(1), int(m.group(2)))}
    m = re.fullmatch(r"([vas])\[(\d+):(\d+)\]", tok)
    if m:
        return {(m.group(1), n) for n in range(int(m.group(2)), int(m.group(3)) + 1)}
    if tok == "vcc":
        return {("s", 106), ("s", 107)}
    if tok == "vcc_lo":
        return {("s", 106)}
    if tok == "vcc_hi":
        return {("s", 107)}
    if tok == "exec":
        return {("s", 126), ("s", 127)}
    if tok == "exec_lo":
        return {("s", 126)}
    if tok == "exec_hi":
        return {("s", 127)}
    if tok == "m0":
        return {("s", 124)}
    return set()


class Ins:
    __slots__ = ("text", "op", "kind", "wr", "rd", "passes", "srcC", "srcAB", "states", "wide_store", "lds_dma", "sdata")

    def __init__(self, text):
        self.text = text
        t = text.split(";")[0].strip()
        parts = t.split(None, 1)
        self.op = parts[0] if parts else ""
        rest = parts[1] if len(parts) > 1 else ""
        ops = [o.strip() for o in rest.split(",")] if rest else []
        if ops:
            last = ops[-1].split()
            mods = last[1:]
            ops[-1] = last[0] if last else ""
        else:
            mods = []
        ops2 = []
        for o in ops:
            ops2.append(o.split()[0] if o else o)
        ops = ops2
        op = self.op
        self.kind = "other"
        self.wr = set()
        self.rd = set()
        self.passes = 0
        self.srcC = set()
        self.srcAB = set()
        self.states = 1
        self.wide_store = False
        self.lds_dma = False
        self.sdata = set()
        R = [_regs(o) for o in ops]
        if op.endswith(":") or op.startswith("."):
            self.kind = "label"
            self.states = 0
        elif op == "s_nop":
            self.kind = "nop"
            self.states = int(ops[0], 0) + 1
        elif op.startswith("v_mfma"):
            self.kind = "mfma"
            self.passes = 8 if "32x32" in op else 4
            self.wr = R[0]
            self.srcAB = R[1] | R[2]
            self.srcC = R[3]
            self.rd = self.srcAB | self.srcC
        elif op.startswith("v_"):
            self.kind = "trans" if op.replace("_e32", "").replace("_e64", "") in TRANS else "valu"
            if op.startswith("v_permlane") and "swap" in op:
                self.wr = R[0] | R[1]
                self.rd = R[0] | R[1]
            elif op.startswith(("v_add_co", "v_sub_co", "v_addc_co", "v_subb_co")):
                self.wr = R[0] | R[1]
                self.rd = set().union(*R[2:])
            else:
                self.wr = R[0]
                self.rd = set().union(*R[1:]) if len(R) > 1 else set()
                if op.startswith(("v_fmac", "v_dot2c", "v_pk_fmac")):
                    self.rd |= R[0]
        elif op.startswith("ds_"):
            self.kind = "ds"
            if op.startswith("ds_read"):
                self.wr = R[0]
                self.rd = set().union(*R[1:])
            else:
                self.rd = set().union(*R)
        elif op.startswith(("buffer_", "global_")):
            self.kind = "vmem"
            if " lds" in t or "load_lds" in op:
                self.lds_dma = True
                self.rd = set().union(*R)
            elif "load" in op:
                self.wr = R[0]
                self.rd = set().union(*R[1:])
            else:
                self.rd = set().union(*R)
                if op.endswith(("x3", "x4")):
                    self.wide_store = True
                    self.sdata = R[0] if op.startswith("buffer_") else R[1]
                if "atomic" in op and "sc0" in t:
                    self.wr = R[0]
        elif op.startswith("s_"):
            self.kind = "salu"
            if op.startswith(("s_cmp", "s_cbranch", "s_branch", "s_barrier", "s_waitcnt", "s_endpgm", "s_sleep", "s_setprio")):
                self.rd = set().union(*R) if R else set()
            else:
                self.wr = R[0] if R else set()
                self.rd = set().union(*R[1:]) if len(R) > 1 else set()
                if "saveexec" in op:
                    self.wr = self.wr | _regs("exec")


def isv(s):
    return {r for r in s if r[0] in ("v", "a")}


def iss(s):
    return {r for r in s if r[0] == "s"}


def need_states(p, c):
    n = 0
    pv = p.kind in ("valu", "trans")
    cv = c.kind in ("valu", "trans")
    if pv:
        wv = isv(p.wr)
        ws = iss(p.wr)
        if c.kind == "mfma" and wv & c.rd:
            n = max(n, 2)
        if cv and c.op.startswith("v_permlane") and wv & c.rd:
            n = max(n, 2)
        if cv and c.op.startswith(("v_readfirstlane", "v_readlane")) and wv & c.rd:
            n = max(n, 1)
        if cv and "dpp" in c.text and wv & c.rd:
            n = max(n, 2)
        if p.kind == "trans" and cv and wv & c.rd:
            n = max(n, 1)
        if p.kind == "trans" and c.kind in ("ds", "vmem") and wv & c.rd:
            n = max(n, 1)
        if ws:
            if cv and (ws & c.rd or (c.op.startswith("v_cndmask") and ("s", 106) in ws)):
                n = max(n, 2)
            if c.kind == "vmem" and ws & c.rd:
                n = max(n, 5)
            if c.kind == "salu" and ws & c.rd:
                n = max(n, 2)
            if c.op.startswith("s_cbranch_vcc") and ("s", 106) in ws:
                n = max(n, 2)
        if p.op.startswith("v_dot"):
            if (cv or c.kind in ("ds", "vmem", "mfma")) and (wv & (c.rd | c.wr)):
                same = c.op == p.op
                n = max(n, 0 if same else 3)
    if p.kind == "mfma":
        d = p.wr
        big = {4: 8, 8: 12}[p.passes]
        if c.kind == "mfma":
            if d & c.srcAB:
                n = max(n, big)
            if d & c.srcC:
                if not (d == c.srcC and p.passes == c.passes):
                    n = max(n, {4: 6, 8: 10}[p.passes])
            elif d & c.wr:
                n = max(n, big)
        elif cv or c.kind in ("ds", "vmem"):
            if d & (c.rd | c.wr):
                n = max(n, big)
        if cv and p.srcC & c.wr:
            n = max(n, {4: 3, 8: 7}[p.passes])
    if p.kind == "salu" and ("s", 124) in p.wr and c.lds_dma:
        n = max(n, 1)
    if p.wide_store and (cv or c.kind in ("ds", "vmem", "mfma")) and p.sdata & c.wr:
        n = max(n, 2)
    return n


def _m(pred, tg):
    if isinstance(tg, frozenset):
        return any(pred(x) for x in tg)
    return pred(tg)


class Asm:
    def vm_tags(self):
        for t in self.vmq:
            if isinstance(t, frozenset):
                yield from t
            else:
                yield t

    def __init__(self):
        self.out = []
        self.vmq = []
        self.lgq = []
        self.nlabel = 0
        self.nops_added = 0

    def e(self, text):
        for line in text.split("\n"):
            line = line.strip()
            if not line:
                continue
            if line.startswith(";"):
                i = Ins("s_nop 0")
                i.text = line
                i.kind = "label"
                i.states = 0
                self.out.append(i)
                continue
            ins = Ins(line)
            if ins.kind not in ("label", "nop"):
                need = 0
                dist = 0
                for p in reversed(self.out):
                    if dist > 20:
                        break
                    k = need_states(p, ins)
                    if k > dist:
                        need = max(need, k - dist)
                    dist += p.states
                while need > 0:
                    n = min(need, 16)
                    self.out.append(Ins(f"s_nop {n-1}"))
                    self.nops_added += 1
                    need -= n
            self.out.append(ins)

    def label(self, base="L"):
        self.nlabel += 1
        return f"{base}_{self.nlabel}"

    def vm(self, text, tag=None):
        self.e(text)
        self.vmq.append(tag)

    def wait_vm(self, pred):
        if not callable(pred):
            t = pred
            pred = lambda x: x == t
        idx = -1
        for k, tg in enumerate(self.vmq):
            if _m(pred, tg):
                idx = k
        if idx < 0:
            return
        n = len(self.vmq) - 1 - idx
        n = min(n, 63)
        self.e(f"s_waitcnt vmcnt({n})")
        self.vmq = self.vmq[len(self.vmq) - n:] if n > 0 else []

    def wait_vm_all(self):
        self.e("s_waitcnt vmcnt(0)")
        self.vmq = []

    def ds(self, text, tag=None):
        self.e(text)
        self.lgq.append(tag)

    def wait_ds(self, pred):
        if not callable(pred):
            t = pred
            pred = lambda x: x == t
        idx = -1
        for k, tg in enumerate(self.lgq):
            if _m(pred, tg):
                idx = k
        if idx < 0:
            return
        n = len(self.lgq) - 1 - idx
        n = min(n, 15)
        self.e(f"s_waitcnt lgkmcnt({n})")
        self.lgq = self.lgq[len(self.lgq) - n:] if n > 0 else []

    def wait_both(self, vpred, dpred):
        def cnt(q, pred, mx):
            if pred is None:
                return None
            if not callable(pred):
                t = pred
                pred = lambda x: x == t
            idx = -1
            for k, tg in enumerate(q):
                if _m(pred, tg):
                    idx = k
            if idx < 0:
                return None
            return min(len(q) - 1 - idx, mx)
        v, d = cnt(self.vmq, vpred, 63), cnt(self.lgq, dpred, 15)
        parts = []
        if v is not None:
            parts.append(f"vmcnt({v})")
            self.vmq = self.vmq[len(self.vmq) - v:] if v > 0 else []
        if d is not None:
            parts.append(f"lgkmcnt({d})")
            self.lgq = self.lgq[len(self.lgq) - d:] if d > 0 else []
        if parts:
            self.e("s_waitcnt " + " ".join(parts))

    def wait_ds_all(self):
        self.e("s_waitcnt lgkmcnt(0)")
        self.lgq = []

    def text(self):
        o = []
        for i in self.out:
            if i.kind == "label" and not i.text.startswith(";"):
                o.append(i.text)
            else:
                o.append("    " + i.text)
        return "\n".join(o) + "\n"


def f32bits(x):
    import struct
    return struct.unpack("<I", struct.pack("<f", x))[0]


def kd(name, vgpr, sgpr, accum):
    return f""".p2align 6
.amdhsa_kernel {name}
  .amdhsa_next_free_vgpr {vgpr}
  .amdhsa_next_free_sgpr {sgpr}
  .amdhsa_accum_offset {accum}
  .amdhsa_group_segment_fixed_size 0
  .amdhsa_kernarg_size 80
  .amdhsa_user_sgpr_count 2
  .amdhsa_user_sgpr_kernarg_segment_ptr 1
  .amdhsa_system_sgpr_workgroup_id_x 1
.end_amdhsa_kernel
"""
```

```python
from asmcore import *
import layout as L

RING = 156
P1S, SCR, P2S, P3S, P4S, TOT = 0, 164, 192, 292, 540, 780
FIX = RING * 1024
SCRB = (SCR % RING) * 1024
GC_OFF, GC_STR = SCRB, 3360
GB_OFF = GC_OFF + 4 * GC_STR
QT_OFF = GB_OFF + 5120
RS_OFF = FIX
Q1_OFF = FIX + 1024
assert QT_OFF + 4 * 2304 <= SCRB + 28 * 1024
LOG2E = 1.4426950408889634
SPIN = 400000

V_LANE, V_L16, V_T16, V_L16B, V_L16C = 1, 2, 3, 4, 5
V_STL, V_OST, V_HST, V_XS1, V_XS2, V_OUT1, V_OUT2 = 6, 7, 8, 9, 10, 11, 12
V_G0, V_G1, V_GBW, V_GBX, V_GBY = 13, 14, 15, 16, 17
V_QW3, V_QW1, V_QR, V_QR2 = 18, 19, 20, 21
V_C2, V_C3, V_LO = 22, 24, 26
V_RSW, V_RSR, V_STS = 27, 28, 29
V_RES = 32
V_MF = 52
V_ST = 56
V_ACC = 64
V_FIFO = 160
V_TMP = 208
S_W, S_I, S_J, S_LAY, S_LOFF, S_COFF, S_W1K = 3, 14, 15, 16, 17, 18, 19
S_SEG = {P1S: 20, P2S: 21, P3S: 22, P4S: 23}
S_TB32, S_TB16, S_TB32P = 24, 25, 26
S_XA, S_STA, S_OA, S_HA, S_XS, S_STS, S_OS = 27, 28, 29, 30, 31, 32, 33
S_HS = (34, 35, 36)
S_KVS, S_KVR, S_OUT, S_KVC = 38, 39, 40, 41
S_T = 44
S_M210 = 60
S_ONE = 62
S_POLL = 63
S_C256 = 42
SRD_WS, SRD_OUT, SRD_NX = 4, 8, 64
S_DBG = 68
S_A = 70
S_EPS2 = 76
S_ONE2 = 78
S_TS = 80


V_TG = {4: V_T16, 8: 196, 12: 197, 16: 198}
S_WG = {4: S_W1K, 8: 84, 12: 85, 16: 86}
V_T16B, V_T16C, V_T8, V_KVL = 199, 200, 201, 202
S_MKV = 88
A_PARK = 160
INF = 10 ** 9
isdma = lambda t: isinstance(t, tuple) and t[0] == "dma"
isfl = lambda t: isinstance(t, tuple) and t[0] == "flush"


class Ring:
    def __init__(self, a, parks):
        self.a = a
        self.next = 0
        self.pub = 0
        self.freed = 0
        self.cons = 0
        self.open = None
        self.parks = parks
        self.parked = {}
        self.maxg = 16

    def seg(self, pos):
        p = pos % TOT
        for s, e in ((P1S, SCR), (P2S, P3S), (P3S, P4S), (P4S, TOT)):
            if s <= p < e:
                return s, p - s, e - p
        return None

    def skip(self):
        if self.next % TOT == SCR:
            self.next += P2S - SCR

    def park_of(self, pos):
        for s, e in self.parks:
            if s <= pos < e:
                return s
        return None

    def plan(self, limit=INF):
        if self.open:
            return ("dma", 3)
        n = self.next + (P2S - SCR if self.next % TOT == SCR else 0)
        if n >= limit or n + 4 - RING > self.freed:
            return None
        pk = self.park_of(n)
        if pk is not None:
            if self.parked.get(pk, 0) <= (n - pk) // 4:
                return None
            return ("flush", 5)
        return ("dma", 5)

    def step(self, limit=INF):
        a = self.a
        p = self.plan(limit)
        assert p is not None
        if not self.open:
            self.skip()
        pos = self.next
        if p[0] == "flush":
            pk = self.park_of(pos)
            q = (pos - pk) // 4
            a.wait_vm(("park", pos))
            addr = (pos % RING) * 1024
            base = (V_T16, V_T16B, V_T16C)[addr >> 16]
            a.ds(f"ds_write_b128 v{base}, a[{A_PARK+4*q}:{A_PARK+4*q+3}] offset:{addr & 0xffff}", ("flush", pos))
            self.next = pos + 4
            return
        if not self.open:
            s, rel, left = self.seg(pos)
            g = min(self.maxg, left, RING - pos % RING, (self.freed + RING - pos) // 4 * 4, max(4, (limit - pos + 3) // 4 * 4))
            for ps, pe in self.parks:
                if pos < ps:
                    g = min(g, ps - pos)
            assert g >= 4 and g % 4 == 0
            a.e(f"s_add_u32 m0, s{S_WG[g]}, {(pos % RING) * 1024}")
            a.e(f"s_add_u32 s{S_T+15}, s{S_SEG[s]}, {rel * 1024}")
            self.open = [pos, g, 0]
        st, g, k = self.open
        srd = SRD_NX if st >= TOT else SRD_WS
        a.vm(f"buffer_load_dwordx4 v{V_TG[g]}, s[{srd}:{srd+3}], s{S_T+15} offen offset:{k*1024} lds", ("dma", st))
        self.open[2] += 1
        if self.open[2] == g // 4:
            self.next = st + g
            self.open = None

    def steps(self, maxn=INF, limit=INF):
        n = 0
        while n < maxn and self.plan(limit):
            self.step(limit)
            n += 1
        while self.open and maxn == INF:
            self.step(limit)
        return n

    def park_ready(self, pk):
        q = self.parked.get(pk, 0)
        e = dict(self.parks)[pk]
        if pk + 4 * q >= e:
            return False
        for s2, e2 in self.parks:
            if s2 < pk:
                p2 = s2 + 4 * q
                if p2 < e2 and (self.next <= p2 or ("flush", p2) in self.a.lgq):
                    return False
        return True

    def park(self, pk):
        a = self.a
        q = self.parked.get(pk, 0)
        pos = pk + 4 * q
        s, rel, left = self.seg(pos)
        a.e(f"s_add_u32 s{S_T+14}, s{S_SEG[s]}, {rel * 1024}")
        a.vm(f"buffer_load_dwordx4 a[{A_PARK+4*q}:{A_PARK+4*q+3}], v{V_T16}, s[{SRD_WS}:{SRD_WS+3}], s{S_T+14} offen", ("park", pos))
        self.parked[pk] = q + 1

    def barrier(self, need):
        a = self.a
        while need > self.next and not (self.next % TOT == SCR and not self.open and need <= self.next + P2S - SCR):
            self.step()
            self.late = getattr(self, "late", 0) + 1
        a.wait_both(lambda t: isdma(t) and t[1] < need, lambda t: isfl(t) and t[1] < need)
        a.e("s_barrier")
        out = [t[1] for t in a.vm_tags() if isdma(t)] + [t[1] for t in a.lgq if isfl(t)] + [self.next]
        self.pub = min(out)
        if self.pub % TOT == SCR:
            self.pub += P2S - SCR
        self.freed = max(self.freed, self.cons)

    def read(self, pos, reg):
        assert pos < self.pub, (pos, self.pub)
        addr = (pos % RING) * 1024
        base = (V_L16, V_L16B, V_L16C)[addr >> 16]
        self.a.ds(f"ds_read_b128 v[{reg}:{reg+3}], v{base} offset:{addr & 0xffff}", ("frag", pos))


class Seq:
    def __init__(self, items, force=False, maxper=99):
        self.items = list(items)
        self.force = force
        self.maxper = maxper

    def take(self, sc, g, kinds):
        n = 0
        while self.items and n < self.maxper:
            fn, slots, early, kind = self.items[0]
            if kind not in kinds or early > g:
                return
            if not self.force:
                if slots > sc.free and not (sc.fresh and slots > sc.budget):
                    return
                if kind == "vm" and not sc.vm_ok(g):
                    return
            fn()
            sc.use(slots, kind, g)
            self.items.pop(0)
            n += 1

    def done(self):
        return not self.items

    def flush(self):
        for it in self.items:
            it[0]()
        self.items = []


class Dag:
    def __init__(self, a, ops):
        self.a, self.ops = a, ops
        self.left = list(range(len(ops)))
        self.at = {}
        self.off = 0
        self.keep = False

    def emit(self, k):
        t = self.ops[k][0]
        t() if callable(t) else self.a.e(t)

    def take(self, sc, g, kinds):
        g += self.off
        for k in list(self.left)[:80]:
            text, deps, tr, early = self.ops[k]
            kind = "vm" if callable(text) else ("s" if text.startswith("s_") else "v")
            if early > g or kind not in kinds or any(d not in self.at or self.at[d] >= g for d in deps):
                continue
            slots = 3 if kind == "vm" else (2 if tr else 1)
            if slots > sc.free:
                continue
            self.emit(k)
            sc.use(slots, kind, g - self.off)
            self.at[k] = g
            self.left.remove(k)

    def done(self):
        return not self.left

    def flush(self):
        if self.keep:
            return
        g = 10 ** 6
        while self.left:
            g += 1
            n = 0
            for k in list(self.left):
                if n < 6 and all(d in self.at and self.at[d] < g for d in self.ops[k][1]):
                    self.emit(k)
                    self.at[k] = g
                    self.left.remove(k)
                    n += 1


class RingFill:
    def __init__(self, ring, early=0, limit=INF, park=None, park_early=0, maxn=INF):
        self.ring, self.early, self.limit, self.park, self.park_early, self.maxn = ring, early, limit, park, park_early, maxn

    def take(self, sc, g, kinds):
        if "vm" not in kinds:
            return
        r = self.ring
        if g >= self.early and self.maxn > 0:
            p = r.plan(self.limit)
            if p and p[0] == "flush":
                if (p[1] <= sc.free or sc.fresh) and g >= sc.fl_t:
                    r.step(self.limit)
                    sc.use(p[1], "s", g)
                    sc.fl_t = g + sc.fl_per
            elif p and sc.vm_ok(g) and (p[1] <= sc.free or sc.fresh):
                r.step(self.limit)
                sc.use(p[1], "vm", g)
                self.maxn -= 1
                return
        if self.park is not None and g >= self.park_early and r.park_ready(self.park) and sc.vm_ok(g) and (3 <= sc.free or sc.fresh):
            r.park(self.park)
            sc.use(3, "vm", g)

    def done(self):
        return True

    def flush(self):
        pass


class Sched:
    def __init__(self, streams, budget, period, fl_per=3):
        self.streams, self.budget, self.period = streams, budget, period
        self.vm_t = 0.0
        self.fl_t, self.fl_per = 0, fl_per

    def vm_ok(self, g):
        return self.vm_t <= g

    def use(self, slots, kind, g):
        self.free -= slots
        self.fresh = False
        if kind == "vm":
            per = self.period(g) if callable(self.period) else self.period
            self.vm_t = max(self.vm_t, g - 1.0) + per

    def gap(self, g, used):
        self.free = self.budget - used
        self.fresh = True
        for s in self.streams:
            s.take(self, g, ("vm", "s"))
        for s in self.streams:
            s.take(self, g, ("v", "s"))
            assert g < getattr(s, "deadline", INF) or s.done(), ("deadline", g)

    def finish(self):
        for s in self.streams:
            s.flush()


def run_pass(a, ring, mf, sc, bars, depth, group, hook=None, fifo=V_FIFO, stamps=None):
    n = len(mf)
    starts = {}
    m = 0
    while m < n:
        g = group(m) if callable(group) else group
        starts[m] = min(m + g, n) - 1
        m += g

    def rd(m):
        if m in bars:
            ring.barrier(bars[m])
        ring.read(mf[m][0], fifo + 4 * (m % depth))

    for m in range(min(depth - 1, n)):
        rd(m)
    if hook:
        hook()
    for m in range(n):
        if m in starts:
            last = starts[m]
            tags = {mf[k][1] for k in range(m, last + 1)}
            a.wait_both(lambda t: t in tags, ("frag", mf[last][0]))
            ring.cons = mf[last][0] + 1
        mf[m][2](fifo + 4 * (m % depth))
        used = 0
        if m + depth - 1 < n:
            used += 3 if (m + depth - 1) in bars else 1
            rd(m + depth - 1)
        if m + 1 in starts:
            used += 1
        sc.gap(m, used)
        if stamps and m in stamps:
            stamps[m]()
    sc.finish()


def vseq(fns, early, kind="v", slots=1):
    return [(f, slots, early, kind) for f in fns]


def aload(a, s, sbase_setup, reg=None, tag="A"):
    if s % 4 == 0:
        sbase_setup(s)
    r = 4 * s if reg is None else reg
    a.vm(f"buffer_load_dwordx4 a[{r}:{r+3}], v{V_L16}, s[{SRD_WS}:{SRD_WS+3}], s{S_A} offen offset:{(s%4)*1024} sc1", (tag, s))


def lines(a, text):
    return [(lambda t=t: a.e(t)) for t in text.strip().split("\n") if t.strip()]


def cnt_off(a, dst, kind, sidx, nextlayer=False):
    c = (kind * 64 + (L.CNT_PER_LAYER if nextlayer else 0)) * L.CNT_STRIDE
    a.e(f"s_lshl_b32 s{dst}, s{sidx}, 8\ns_add_u32 s{dst}, s{dst}, s{S_COFF}")
    if c:
        a.e(f"s_add_u32 s{dst}, s{dst}, {c}")


def signal(a, kind, sidx, nextlayer=False, inc=S_ONE):
    cnt_off(a, S_T + 13, kind, sidx, nextlayer)
    a.e(f"s_atomic_add s{inc}, s[12:13], s{S_T+13}")


def poll_issue(a, kind, sidx):
    cnt_off(a, S_T + 12, kind, sidx)
    a.e(f"s_mov_b32 s{S_POLL}, 0")
    a.e(f"s_atomic_add s{S_POLL}, s[12:13], s{S_T+12} glc")


def poll_check(a, shift=0, target=16):
    lp, ok = a.label("Lpoll"), a.label("Lok")
    a.e(f"s_mov_b32 s{S_T+11}, 0")
    a.e(f"{lp}:")
    a.e("s_waitcnt lgkmcnt(0)")
    a.lgq = []
    a.e(f"s_bfe_u32 s{S_POLL}, s{S_POLL}, {(8 << 16) | shift}")
    a.e(f"s_cmp_ge_u32 s{S_POLL}, {target}\ns_cbranch_scc1 {ok}")
    a.e(f"s_mov_b32 s{S_POLL}, 0")
    a.e(f"s_atomic_add s{S_POLL}, s[12:13], s{S_T+12} glc")
    a.e(f"s_add_u32 s{S_T+11}, s{S_T+11}, 1")
    a.e(f"s_cmp_lt_u32 s{S_T+11}, {SPIN}\ns_cbranch_scc1 {lp}")
    a.e("s_waitcnt lgkmcnt(0)")
    a.e(f"{ok}:")


def poll(a, kind, sidx, shift=0):
    poll_issue(a, kind, sidx)
    poll_check(a, shift)


def a_setup(a, rel_sgpr, const):
    def f(s):
        if s == 0:
            a.e(f"s_add_u32 s{S_A}, s{S_LOFF}, s{rel_sgpr}\ns_add_u32 s{S_A}, s{S_A}, {const}")
        else:
            a.e(f"s_add_u32 s{S_A}, s{S_A}, 4096")
    return f


def stats_load(a, const):
    a.e(f"s_add_u32 s{S_T}, s{S_LOFF}, s{S_STA}\ns_add_u32 s{S_T}, s{S_T}, {const}")
    for n in range(4):
        a.vm(f"buffer_load_dwordx2 v[{V_ST+2*n}:{V_ST+2*n+1}], v{V_STL}, s[{SRD_WS}:{SRD_WS+3}], s{S_T} offen offset:{n*256} sc1", "st")


def stats_math(a, t):
    S = V_ST
    f = [lambda: a.wait_vm("st")]
    f += lines(a, f"""
v_add_f32 v{t}, v{S}, v{S+2}
v_add_f32 v{t+1}, v{S+4}, v{S+6}
v_add_f32 v{t}, v{t}, v{t+1}
v_mov_b32 v{t+1}, v{t}
v_permlane32_swap_b32 v{t}, v{t+1}
v_add_f32 v{t}, v{t}, v{t+1}
v_mul_f32 v{t}, {f32bits(-0.125)}, v{t}
""")
    for n in range(4):
        f += lines(a, f"""
v_add_f32 v{t+1}, v{S+2*n}, v{t}
v_mul_f32 v{t+1}, v{t+1}, v{t+1}
v_fmac_f32 v{S+2*n+1}, {f32bits(80.0)}, v{t+1}
""")
    f += lines(a, f"""
v_add_f32 v{t+1}, v{S+1}, v{S+3}
v_add_f32 v{t+2}, v{S+5}, v{S+7}
v_add_f32 v{t+1}, v{t+1}, v{t+2}
v_mov_b32 v{t+2}, v{t+1}
v_permlane32_swap_b32 v{t+1}, v{t+2}
v_add_f32 v{t+1}, v{t+1}, v{t+2}
v_mov_b32 v{t+2}, {f32bits(1e-5)}
v_fmac_f32 v{t+2}, {f32bits(1.0/640)}, v{t+1}
v_rsq_f32 v{S}, v{t+2}
v_cvt_pk_bf16_f32 v{t+1}, v{t}, v{t}
v_and_b32 v{t+1}, 0xffff0000, v{t+1}
v_sub_f32 v{t+1}, v{t}, v{t+1}
v_cvt_pk_bf16_f32 v{V_MF}, v{t}, v{t+1}
v_mov_b32 v{V_MF+1}, v{V_MF}
v_mov_b32 v{V_MF+2}, v{V_MF}
v_mov_b32 v{V_MF+3}, v{V_MF}
""")
    return f


def stamp(a, name, cfg, level=1, real=False):
    if not cfg.get("timing") or level > cfg.get("level", 1):
        return
    if name in ("start", "end") and not real:
        stamp(a, name, cfg, level, True)
    names = cfg["_stamps"]
    key = ("rt_" if real else "") + name
    if key not in names:
        names.append(key)
    n = names.index(key)
    pend = cfg["_pend"]
    k = cfg["_k"][0]
    cfg["_k"][0] += 1
    pair = 90 + 2 * (k % 3)
    if len(pend) == 2:
        p, idx = pend.pop(0)
        a.e(f"v_writelane_b32 v31, s{p}, {idx}")
    a.e(f"{'s_memrealtime' if real else 's_memtime'} s[{pair}:{pair+1}]")
    pend.append((pair, n))
    if name == "end" and not real:
        stamp_flush(a, cfg, True)


def stamp_flush(a, cfg, store=False):
    if not cfg.get("timing"):
        return
    a.e("s_waitcnt lgkmcnt(0)")
    a.lgq = []
    while cfg["_pend"]:
        p, idx = cfg["_pend"].pop(0)
        a.e(f"v_writelane_b32 v31, s{p}, {idx}")
    cfg["_k"][0] = 0
    if store:
        a.e(f"s_add_u32 s{S_TS+1}, s{S_TS+2}, {256 * cfg['_slot']}")
        a.vm(f"buffer_store_dword v31, v30, s[72:75], s{S_TS+1} offen", "stamp")
        a.e("s_nop 1\nv_mov_b32 v31, 0")


def phi_tile(a, acc, dst, R, RL, t, mixed):
    f = []
    for p in range(8):
        r = 2 * p
        u, e = t + 4 * (p & 1), t + 4 * (p & 1) + 2
        if mixed:
            f += lines(a, f"""
v_pk_fma_f32 v[{e}:{e+1}], v[{acc+r}:{acc+r+1}], v[{RL+r}:{RL+r+1}], v[{V_C2}:{V_C2+1}] op_sel_hi:[1,1,0]
v_pk_fma_f32 v[{u}:{u+1}], v[{acc+r}:{acc+r+1}], v[{R+r}:{R+r+1}], v[{V_C3}:{V_C3+1}] op_sel_hi:[1,1,0]
v_exp_f32 v{e}, v{e} clamp
v_exp_f32 v{e+1}, v{e+1} clamp
v_max_f32 v{u}, v{V_LO}, v{u}
v_max_f32 v{u+1}, v{V_LO}, v{u+1}
""")
        else:
            f += lines(a, f"""
v_pk_mul_f32 v[{e}:{e+1}], v[{acc+r}:{acc+r+1}], v[{RL+r}:{RL+r+1}]
v_pk_fma_f32 v[{u}:{u+1}], v[{acc+r}:{acc+r+1}], v[{R+r}:{R+r+1}], s[{S_EPS2}:{S_EPS2+1}]
v_exp_f32 v{e}, v{e} clamp
v_exp_f32 v{e+1}, v{e+1} clamp
v_max_f32 v{u}, s{S_EPS2}, v{u}
v_max_f32 v{u+1}, s{S_EPS2}, v{u+1}
""")
        f += lines(a, f"""
v_pk_add_f32 v[{u}:{u+1}], v[{u}:{u+1}], v[{e}:{e+1}]
v_cvt_pk_bf16_f32 v{dst+p}, v{u}, v{u+1}
""")
    return f


def set_exec(a, lo, hi):
    a.e(f"s_mov_b32 exec_lo, {lo:#x}\ns_mov_b32 exec_hi, {hi:#x}")


def lanemask(fn):
    m = 0
    for l in range(64):
        if fn(l):
            m |= 1 << l
    return m & 0xffffffff, m >> 32


T32 = [V_ACC + 16 * t for t in range(6)]
P1_R, P1_RL = V_TMP, V_TMP + 16
P1_PT = [144, 152, 240]
P1_TT = 248
PK3 = P3S + 156
G32 = lambda m: 3 if m < 60 else (4 if m < 100 else (2 if m == 100 else 3))


def mk32(a, pos, t, s, wfirst):
    def f(b):
        x = f"a[{4*s}:{4*s+3}]" if s < 40 else f"v[{V_MF}:{V_MF+3}]"
        c = "0" if s == 0 else f"v[{T32[t]}:{T32[t]+15}]"
        w = f"v[{b}:{b+3}]"
        p, q = (w, x) if wfirst else (x, w)
        a.e(f"v_mfma_f32_32x32x16_bf16 v[{T32[t]}:{T32[t]+15}], {p}, {q}, {c}")
    return (pos, ("A", s) if s < 40 else "none", f)


def panel(a, base, tiles, wfirst):
    return sorted((mk32(a, base + L.fragpos(t, s), t, s, wfirst) for t in tiles for s in range(41)), key=lambda x: x[0])


def stats_seq(a, cfg, kind, const, tail, polled=True):
    it = []
    p0 = cfg.get("stp", 14)
    if polled:
        it += [(lambda: poll_issue(a, kind, S_TB32), 5, p0, "s"),
               (lambda: poll_check(a, 8), 6, p0 + 24, "s"),
               (lambda: stats_load(a, const), 10, p0 + 25, "s")]
    m = Seq(vseq(stats_math(a, P1_TT) + tail, cfg.get("stm", 72)), maxper=3)
    m.deadline = 97
    return [Seq(it, force=True, maxper=1), m]


def phi_ops(acc, dst, R, RL, tmp, early):
    ops = []
    last = {}
    for r in range(16):
        e = tmp + r % 8
        x = acc + r
        b = len(ops)
        ops.append((f"v_mul_f32 v{e}, v{x}, v{RL+r}", [last[e]] if e in last else [], False, early))
        ops.append((f"v_exp_f32 v{e}, v{e} clamp", [b], True, early))
        ops.append((f"v_fma_f32 v{x}, v{x}, v{R+r}, s{S_EPS2}", [b], False, early))
        ops.append((f"v_max_f32 v{x}, s{S_EPS2}, v{x}", [b + 2], False, early))
        ops.append((f"v_add_f32 v{x}, v{x}, v{e}", [b + 1, b + 3], False, early))
        last[e] = b + 4
        if r & 1:
            ops.append((f"v_cvt_pk_bf16_f32 v{dst + (r >> 1)}, v{x-1}, v{x}", [b - 1, b + 4], False, early))
    return ops


def phase1(a, ring, cfg, first):
    AW = cfg.get("aw", 10)
    T, R, RL, PT, tt = T32, P1_R, P1_RL, P1_PT, P1_TT
    park = cfg.get("park", True)
    setup = a_setup(a, S_XA, L.X)
    mf = panel(a, P1S, (0, 1, 2), False)
    tail = lines(a, f"v_mul_f32 v{tt}, {f32bits(LOG2E)}, v{V_ST}\nv_cmp_gt_u32 vcc, 32, v{V_LANE}\nv_cndmask_b32 v{tt}, v{tt}, v{V_ST}, vcc")
    tail += [lambda: a.ds(f"ds_write_b32 v{V_RSW}, v{tt}", "rs")]
    for i in range(4):
        tail += [lambda i=i: a.ds(f"ds_read_b128 v[{R+4*i}:{R+4*i+3}], v{V_RSR} offset:{32*i}", "rs")]
        tail += [lambda i=i: a.ds(f"ds_read_b128 v[{RL+4*i}:{RL+4*i+3}], v{V_RSR} offset:{128+32*i}", "rs")]
    z = vseq(lines(a, f"v_mov_b32 v{tt+4}, 0\nv_mov_b32 v{tt+5}, 0\nv_mov_b32 v{tt+6}, 0\nv_mov_b32 v{tt+7}, 0"), 50)
    z += [(lambda: a.ds(f"ds_write_b128 v{V_T16}, v[{tt+4}:{tt+7}] offset:{GB_OFF}", "z"), 5, 66, "v"),
          (lambda: a.ds(f"ds_write_b128 v{V_T16}, v[{tt+4}:{tt+7}] offset:{GB_OFF+1024}", "z"), 5, 68, "v")]
    zs = Seq(z, maxper=3, force=True)
    d0 = Dag(a, [(lambda: a.wait_ds("rs"), [], False, 101)] + [(t_, [0] + [d + 1 for d in dp], tr, e) for t_, dp, tr, e in phi_ops(T[0], PT[0], R, RL, 112, 102)])
    if first:
        LA = cfg.get("la0", 3)
        ring.maxg = 12
        it = []
        done_a = cfg["_a0"]
        for blk in range(LA, 11):
            e = 12 * (blk - LA)
            need = [s for s in range(done_a, 40) if L.fragpos(0, s) < 12 * blk + 12]
            done_a += len(need)
            ops = [((lambda b=blk: ring.step(min(12 * b + 12, 124))), 4) for k in range(3 if blk < 10 else 1)]
            ops += [((lambda s=s: aload(a, s, setup)), 2) for s in need]
            it += [(f_, sl, e + int(k * 12 / len(ops)), "vm") for k, (f_, sl) in enumerate(ops)]
        sc = Sched([Seq(it, force=True, maxper=2), d0, RingFill(ring, 12 * (11 - LA), 164), zs] +
                   stats_seq(a, cfg, None, L.ST, tail, polled=False), 6, 2.0)
        bars = {12 * k: min(12 * k + 12, 123) for k in range(11)}
        hook = None
    else:
        ap = cfg.get("aper", 2.3)
        al = Seq([((lambda s=s: aload(a, s, setup)), 2, int(ap * (s - AW)), "vm") for s in range(AW, 40)], force=True, maxper=1)
        sc = Sched([al, d0] + stats_seq(a, cfg, L.C_X, L.ST, tail) + [RingFill(ring, 0, cfg.get("lim1a", 164), PK3 if park else None, 60), zs], 6, cfg.get("per1", 2.3))
        bars = {0: 48, 48: 72, 72: 96, 96: 123}

        def hook():
            poll_check(a)
            cfg["_slot"] = 0
            stamp(a, "end", cfg, 0)
            for s in range(AW):
                aload(a, s, setup)
    run_pass(a, ring, mf, sc, bars, cfg.get("d32", 9), G32, hook)
    ring.maxg = 16
    assert ring.freed >= P2S - RING, ring.freed
    cfg["_info"].append(f"P1a({first}): ring.next {ring.next} parked {ring.parked} late {getattr(ring, 'late', 0)}")
    stamp(a, "P1a done", cfg)
    if first:
        P = 128
        a.wait_vm("res")
        for p in range(10):
            a.e(f"v_lshlrev_b32 v{V_RES+2*p}, 16, v{P+p}\nv_and_b32 v{V_RES+2*p+1}, 0xffff0000, v{P+p}")
    ring.steps(limit=164)
    KVA = [80, 64, 96, 128]
    pairs = [(0, 2), (0, 1), (1, 2), (1, 1)]

    def kvm(b, u):
        x, y = pairs[b]
        c = "0" if u == 0 else f"v[{KVA[b]}:{KVA[b]+15}]"
        a.e(f"v_mfma_f32_32x32x16_bf16 v[{KVA[b]}:{KVA[b]+15}], v[{PT[x]+4*u}:{PT[x]+4*u+3}], v[{PT[y]+4*u}:{PT[y]+4*u+3}], {c}")
    f = phi_tile(a, T[1], PT[1], R, RL, tt, True)
    for k, g in enumerate(f):
        g()
        if first and park and k % cfg.get("pk_every", 12) == 0 and k < 50 and ring.park_ready(PK3):
            ring.park(PK3)
    stamp(a, "phi done", cfg, 3)
    for n, (b, u) in enumerate(((1, 0), (1, 1), (3, 0), (3, 1))):
        kvm(b, u)
        for p in (2 * n, 2 * n + 1):
            a.e(f"v_mul_f32 v{T[2]+2*p}, v{T[2]+2*p}, v{R+2*p}\nv_mul_f32 v{T[2]+2*p+1}, v{T[2]+2*p+1}, v{R+2*p+1}")
        for p in (2 * n, 2 * n + 1):
            a.e(f"v_cvt_pk_bf16_f32 v{PT[2]+p}, v{T[2]+2*p}, v{T[2]+2*p+1}")
    rho = lambda l, i: 8 * i + 4 * (l >> 5)
    for i, (b, u) in enumerate(((0, 0), (0, 1), (2, 0), (2, 1))):
        if i:
            a.e("s_mov_b64 exec, -1")
        kvm(b, u)
        set_exec(a, *lanemask(lambda l: (l & 31) == 24 or (8 <= (l & 31) < 16 and rho(l, i) >= 20)))
        a.ds(f"ds_write_b128 v{V_G1}, v[{KVA[1]+4*i}:{KVA[1]+4*i+3}] offset:{32*i}", "g")
    set_exec(a, *lanemask(lambda l: 8 <= (l & 31) < 16 or (l & 31) == 24))
    a.ds(f"ds_write_b128 v{V_G1}, v[{KVA[3]}:{KVA[3]+3}] offset:128", "g")
    for i in range(4):
        set_exec(a, *lanemask(lambda l: ((l & 31) < 20) == (rho(l, i) < 20)))
        a.ds(f"ds_write_b128 v{V_G0}, v[{KVA[0]+4*i}:{KVA[0]+4*i+3}] offset:{32*i}", "g")
    set_exec(a, *lanemask(lambda l: (l & 31) >= 20))
    a.ds(f"ds_write_b128 v{V_G0}, v[{KVA[2]}:{KVA[2]+3}] offset:128", "g")
    a.e("s_mov_b64 exec, -1")
    a.wait_ds_all()
    stamp(a, "G written", cfg, 3)
    ring.barrier(P1S + 164)
    for w in range(4):
        a.ds(f"ds_read_b128 v[{64+4*w}:{67+4*w}], v{V_T16} offset:{GC_OFF + w*GC_STR}", "g")
    a.e(f"s_add_u32 s{S_T}, s{S_LOFF}, s{S_KVS}")

    def kvstore():
        a.wait_ds("g")
        a.e("v_pk_add_f32 v[64:65], v[64:65], v[68:69]\nv_pk_add_f32 v[66:67], v[66:67], v[70:71]")
        a.e("v_pk_add_f32 v[72:73], v[72:73], v[76:77]\nv_pk_add_f32 v[74:75], v[74:75], v[78:79]")
        a.e("v_pk_add_f32 v[64:65], v[64:65], v[72:73]\nv_pk_add_f32 v[66:67], v[66:67], v[74:75]")
        a.e("v_cvt_pk_bf16_f32 v68, v64, v65\nv_cvt_pk_bf16_f32 v69, v66, v67")
        a.e(f"s_mov_b64 exec, s[{S_M210}:{S_M210+1}]")
        a.vm(f"buffer_store_dwordx2 v[68:69], v{V_T8}, s[{SRD_WS}:{SRD_WS+3}], s{S_T} offen sc1", "kvst")
        set_exec(a, 0x00FF0000, 0x00FF0000)
        for i in range(4):
            a.ds(f"ds_write_b64 v{V_QW1}, v[{PT[1]+2*i}:{PT[1]+2*i+1}] offset:{16*i}", "q")
        a.e("s_mov_b64 exec, -1")
        stamp(a, "kv stored", cfg)
    mf = panel(a, P1S, (3,), False)
    sg = Seq([(lambda: (a.wait_vm("kvst"), signal(a, L.C_KV, S_KVC)), 5, cfg.get("kvsig", 22), "s")], force=True)
    sc = Sched([sg, RingFill(ring, 0, INF, PK3 if park else None, 0)], 6, cfg.get("per1b", 2.4))
    run_pass(a, ring, mf, sc, {}, cfg.get("d32", 9), 3, kvstore)
    f = phi_tile(a, T[3], PT[0], R, RL, tt, False)
    for k, g in enumerate(f):
        g()
        if k == cfg.get("kvpoll", 8):
            poll_issue(a, L.C_KV, S_KVC)
        if park and k % 14 == 0 and k < cfg.get("pk_t3", 30) and ring.park_ready(PK3):
            ring.park(PK3)
    for i in range(4):
        a.ds(f"ds_write_b64 v{V_QW3}, v[{PT[0]+2*i}:{PT[0]+2*i+1}] offset:{16*i}", "q")
    stamp(a, "P1b done", cfg)
    poll_check(a)
    stamp(a, "kv polled", cfg)
    a.e(f"s_add_u32 s{S_T}, s{S_LOFF}, s{S_KVR}")
    a.e(f"s_mov_b64 exec, s[{S_MKV}:{S_MKV+1}]")
    for i in range(8):
        a.vm(f"buffer_load_dwordx4 v[{72+4*i}:{75+4*i}], v{V_KVL}, s[{SRD_WS}:{SRD_WS+3}], s{S_T} offen sc1", ("kv", i))
        if i < 7:
            a.e(f"s_add_u32 s{S_T}, s{S_T}, {2 * L.KV_STR}")
    a.e("s_mov_b64 exec, -1")
    PQ = 144
    for s in range(2):
        for u in range(2):
            a.ds(f"ds_read_b64_tr_b16 v[{PQ+4*s+2*u}:{PQ+4*s+2*u+1}], v{V_QR} offset:{(16*s+4*u)*72}", "pq")
    for u in range(2):
        a.ds(f"ds_read_b64_tr_b16 v[{PQ+8+2*u}:{PQ+8+2*u+1}], v{V_QR2} offset:{4*u*72}", "pq")
    for k in range(cfg.get("dmakv", 4)):
        if ring.plan():
            ring.step()
        elif park and ring.park_ready(PK3):
            ring.park(PK3)
    stamp(a, "kv issued", cfg, 3)
    for i in range(8):
        if i % 2 == 0:
            a.wait_vm(("kv", i + 1))
            if i in (0, 6):
                stamp(a, f"kv got{i}", cfg, 3)
        for c in range(4):
            src = 72 + 4 * i + c
            if i == 0:
                a.e(f"v_lshlrev_b32 v{64+2*c}, 16, v{src}\nv_and_b32 v{65+2*c}, 0xffff0000, v{src}")
            else:
                t_ = 104 + 2 * c
                a.e(f"v_lshlrev_b32 v{t_}, 16, v{src}\nv_and_b32 v{t_+1}, 0xffff0000, v{src}")
        if i:
            for c in range(4):
                a.e(f"v_pk_add_f32 v[{64+2*c}:{65+2*c}], v[{64+2*c}:{65+2*c}], v[{104+2*c}:{105+2*c}]")
    for k in range(4):
        a.e(f"v_permlane32_swap_b32 v{64+k}, v{68+k}")
    a.e("v_pk_add_f32 v[64:65], v[64:65], v[68:69]\nv_pk_add_f32 v[66:67], v[66:67], v[70:71]")
    a.e("v_cvt_pk_bf16_f32 v68, v64, v65\nv_cvt_pk_bf16_f32 v69, v66, v67")
    a.e(f"s_mov_b64 exec, s[{S_MKV}:{S_MKV+1}]")
    a.ds(f"ds_write_b64 v{V_GBW}, v[68:69]", "gb")
    a.e("s_mov_b64 exec, -1")
    a.wait_ds_all()
    stamp(a, "kv summed", cfg)
    stamp_flush(a, cfg)
    ring.barrier(0)
    GX, GY, DX, DY = 208, 220, 64, 80
    for s in range(3):
        a.ds(f"ds_read_b128 v[{GY+4*s}:{GY+4*s+3}], v{V_GBY} offset:{32*s}", ("gy", s))
    for s in range(3):
        a.ds(f"ds_read_b128 v[{GX+4*s}:{GX+4*s+3}], v{V_GBX} offset:{32*s}", ("gx", s))
    for s in range(3):
        a.wait_ds(("gy", s))
        c = "0" if s == 0 else f"v[{DY}:{DY+15}]"
        a.e(f"v_mfma_f32_32x32x16_bf16 v[{DY}:{DY+15}], v[{GY+4*s}:{GY+4*s+3}], v[{PQ+4*s}:{PQ+4*s+3}], {c}")
    for s in range(3):
        a.wait_ds(("gx", s))
        c = "0" if s == 0 else f"v[{DX}:{DX+15}]"
        a.e(f"v_mfma_f32_32x32x16_bf16 v[{DX}:{DX+15}], v[{GX+4*s}:{GX+4*s+3}], v[{PQ+4*s}:{PQ+4*s+3}], {c}")
    a.e(f"s_add_u32 s{S_T}, s{S_LOFF}, s{S_OS}")
    r0, r1 = 232, 234
    a.e(f"v_add_f32 v{r0}, s{S_EPS2}, v{DY+8}\nv_add_f32 v{r1}, s{S_EPS2}, v{DY+9}")
    a.e(f"v_rcp_f32 v{r0}, v{r0}\nv_rcp_f32 v{r1}, v{r1}")
    OP = 236
    for (src, rr, dst, off) in ((DY, (r0, r1), OP + 8, 512), (DX, (r0, r0), OP, 0), (DX + 8, (r1, r1), OP + 4, 768)):
        for p in range(4):
            r = rr[p >> 1]
            a.e(f"v_pk_mul_f32 v[{src+2*p}:{src+2*p+1}], v[{src+2*p}:{src+2*p+1}], v[{r}:{r+1}] op_sel_hi:[1,0]")
        for p in range(4):
            a.e(f"v_cvt_pk_bf16_f32 v{dst+p}, v{src+2*p}, v{src+2*p+1}")
        if off == 512:
            a.e("s_mov_b32 exec_hi, 0")
        a.vm(f"buffer_store_dwordx4 v[{dst}:{dst+3}], v{V_OST}, s[{SRD_WS}:{SRD_WS+3}], s{S_T} offen offset:{off} sc1", "ost")
        if off == 512:
            a.e("s_mov_b64 exec, -1")
    stamp(a, "o stored", cfg)
    ring.steps(cfg.get("dmao", 8))
    a.wait_vm("ost")
    signal(a, L.C_O, S_TB32)
    stamp(a, "o sig", cfg, 3)
    n = 0
    rest = []
    npre = cfg.get("opre", 6)
    while ring.plan() or (park and ring.park_ready(PK3)):
        if n == npre:
            poll_issue(a, L.C_O, S_TB32P)
        ring.step() if ring.plan() else ring.park(PK3)
        n += 1
    if n <= npre:
        if cfg.get("osleep"):
            a.e(f"s_sleep {cfg['osleep']}")
        poll_issue(a, L.C_O, S_TB32P)
    cfg["_info"].append(f"P1({first}) end: ring.next {ring.next} late parks {n}")
    ring.cons = P2S
    a.wait_vm(lambda t: isdma(t) and t[1] < P2S + 100)
    stamp(a, "o signalled", cfg, 4)


def next_layer(a):
    a.e(f"s_mov_b32 s{S_LAY}, 1\ns_mov_b32 s{S_LOFF}, {L.LBASE + L.LSTR}\ns_mov_b32 s{S_COFF}, {L.CNT_PER_LAYER * L.CNT_STRIDE}")


def out_epilogue(a, ring, cfg, xconst, stconst, kind, nextlayer, final_branch):
    P = V_TMP
    a.e(f"s_add_u32 s{S_T}, s{S_LOFF}, s{S_XS}\ns_add_u32 s{S_T}, s{S_T}, {xconst}")
    for p in range(10):
        a.e(f"v_cvt_pk_bf16_f32 v{P+p}, v{V_RES+2*p}, v{V_RES+2*p+1}")
    if final_branch:
        cfg["_final"] = (list(cfg["_pend"]), cfg["_k"][0])
        a.e(f"s_cmp_eq_u32 s{S_LAY}, 1\ns_cbranch_scc1 L_final")
    a.vm(f"buffer_store_dwordx4 v[{P}:{P+3}], v{V_XS1}, s[{SRD_WS}:{SRD_WS+3}], s{S_T} offen sc1", "xst")
    a.vm(f"buffer_store_dwordx4 v[{P+4}:{P+7}], v{V_XS1}, s[{SRD_WS}:{SRD_WS+3}], s{S_T} offen offset:2048 sc1", "xst")
    a.vm(f"buffer_store_dwordx2 v[{P+8}:{P+9}], v{V_XS2}, s[{SRD_WS}:{SRD_WS+3}], s{S_T} offen sc1", "xst")
    f = []
    for p in range(10):
        f += lines(a, f"v_lshlrev_b32 v{V_RES+2*p}, 16, v{P+p}\nv_and_b32 v{V_RES+2*p+1}, 0xffff0000, v{P+p}")
    t = V_TMP + 16
    f += lines(a, f"v_pk_add_f32 v[{t}:{t+1}], v[{V_RES}:{V_RES+1}], v[{V_RES+2}:{V_RES+3}]")
    f += lines(a, f"v_pk_add_f32 v[{t+2}:{t+3}], v[{V_RES+4}:{V_RES+5}], v[{V_RES+6}:{V_RES+7}]")
    for p in range(4, 10):
        d = t + 2 * (p & 1)
        f += lines(a, f"v_pk_add_f32 v[{d}:{d+1}], v[{d}:{d+1}], v[{V_RES+2*p}:{V_RES+2*p+1}]")
    f += lines(a, f"v_pk_add_f32 v[{t}:{t+1}], v[{t}:{t+1}], v[{t+2}:{t+3}]\nv_add_f32 v{t}, v{t}, v{t+1}")

    def red(x, y):
        return lines(a, f"v_mov_b32 v{y}, v{x}\nv_permlane16_swap_b32 v{x}, v{y}\nv_add_f32 v{x}, v{x}, v{y}\n"
                        f"v_mov_b32 v{y}, v{x}\nv_permlane32_swap_b32 v{x}, v{y}\nv_add_f32 v{x}, v{x}, v{y}")
    f += red(t, t + 1)
    f += lines(a, f"v_mul_f32 v{t}, {f32bits(1.0/80)}, v{t}")
    q = t + 4
    for p in range(10):
        d = t + 8 + 2 * (p & 3)
        f += lines(a, f"v_pk_add_f32 v[{d}:{d+1}], v[{V_RES+2*p}:{V_RES+2*p+1}], v[{t}:{t+1}] op_sel_hi:[1,0] neg_lo:[0,1] neg_hi:[0,1]")
        qq = q + 2 * (p & 1)
        if p < 2:
            f += lines(a, f"v_pk_mul_f32 v[{qq}:{qq+1}], v[{d}:{d+1}], v[{d}:{d+1}]")
        else:
            f += lines(a, f"v_pk_fma_f32 v[{qq}:{qq+1}], v[{d}:{d+1}], v[{d}:{d+1}], v[{qq}:{qq+1}]")
    f += lines(a, f"v_pk_add_f32 v[{q}:{q+1}], v[{q}:{q+1}], v[{q+2}:{q+3}]\nv_add_f32 v{t+1}, v{q}, v{q+1}")
    f += red(t + 1, t + 2)
    for k, g in enumerate(f):
        g()
        if k % cfg.get("epi_every", 16) == 4:
            ring.steps(1)
    a.e(f"s_add_u32 s{S_T}, s{S_LOFF}, s{S_STS}\ns_add_u32 s{S_T}, s{S_T}, {stconst}")
    a.e("s_mov_b64 exec, 0xffff")
    a.vm(f"buffer_store_dwordx2 v[{t}:{t+1}], v{V_STS}, s[{SRD_WS}:{SRD_WS+3}], s{S_T} offen sc1", "sst")
    a.e("s_mov_b64 exec, -1")
    ring.steps(cfg.get("dma_after_st", 2))
    stamp(a, "pre xwait" + str(int(nextlayer)), cfg, 3)
    a.wait_vm("xst")
    signal(a, kind, S_TB32P, nextlayer)
    stamp(a, "x sig" + str(int(nextlayer)), cfg, 3)
    ring.barrier(0)
    key = "x2" if nextlayer else "x1"
    n1, n2, n3 = cfg.get("gap" + key, (5, 3, 4) if nextlayer else (5, 3, INF))
    ring.steps(n1)
    a.wait_vm("sst")
    signal(a, kind, S_TB32P, nextlayer, S_C256)
    ring.steps(n2)
    stamp(a, "x2 epi end" if nextlayer else "x1 epi end", cfg, 1)
    if nextlayer:
        next_layer(a)
    poll_issue(a, kind, S_TB32)
    ring.steps(n3)
    while ring.open:
        ring.step()
    cfg["_info"].append(f"epilogue end: ring.next {ring.next}")


def mk16(a, pos, t, s, reg, tag):
    def f(b):
        c = V_RES + 4 * t
        a.e(f"v_mfma_f32_16x16x32_bf16 v[{c}:{c+3}], v[{b}:{b+3}], a[{reg}:{reg+3}], v[{c}:{c+3}]")
    return (pos, (tag, s), f)


def phase2(a, ring, cfg):
    AW = cfg.get("aw2", 12)
    setup = a_setup(a, S_OA, L.O)
    mf = [mk16(a, P2S + 5 * s + t, t, s, 4 * s, "A") for s in range(20) for t in range(5)]
    al = Seq([((lambda s=s: aload(a, s, setup)), 2, 4 * (s - AW), "vm") for s in range(AW, 20)], force=True, maxper=1)
    sc = Sched([al, RingFill(ring, cfg.get("dma2", 40))], 2, 5.0)

    def hook():
        poll_check(a)
        stamp(a, "P2 polled", cfg)
        for s in range(AW):
            aload(a, s, setup)
    bars = {0: P2S + 100}
    if cfg.get("b2", 80):
        bars[cfg.get("b2", 80)] = 0
    run_pass(a, ring, mf, sc, bars, cfg.get("d16", 15), 5, hook, V_ACC)
    stamp(a, "P2 done", cfg)
    out_epilogue(a, ring, cfg, L.X1, L.ST1, L.C_X1, False, False)


def silu_ops(a):
    NRL, VA = V_ST + 2, V_ST + 4
    ops = []
    last_e = {}
    k = 0
    for t in range(6):
        early = L.fragpos(t, 40) + 2
        acc, dst = T32[t], V_TMP + 4 * t
        cv = []
        for r in range(8):
            g, u = acc + r, acc + 8 + r
            e = V_TMP + 24 + k % 16
            k += 1
            b = len(ops)
            ops.append((f"v_mul_f32 v{e}, v{g}, v{NRL}", [last_e[e]] if e in last_e else [], False, early))
            ops.append((f"v_exp_f32 v{e}, v{e}", [b], True, early))
            ops.append((f"v_mul_f32 v{g}, v{g}, v{u}", [b], False, early))
            ops.append((f"v_fma_f32 v{e}, v{e}, v{VA}, v{VA}", [b + 1], False, early))
            ops.append((f"v_rcp_f32 v{e}, v{e}", [b + 3], True, early))
            ops.append((f"v_mul_f32 v{g}, v{g}, v{e}", [b + 2, b + 4], False, early))
            last_e[e] = b + 5
            if r & 1:
                ops.append((f"v_cvt_pk_bf16_f32 v{dst + (r >> 1)}, v{g-1}, v{g}", [b - 1, b + 5], False, early))
                cv.append(len(ops) - 1)

        def st(d=dst, t=t):
            a.e(f"s_add_u32 s{S_T+1}, s{S_LOFF}, s{S_HS[t >> 1]}")
            a.vm(f"buffer_store_dwordx4 v[{d}:{d+3}], v{V_HST}, s[{SRD_WS}:{SRD_WS+3}], s{S_T+1} offen offset:{512*(t & 1)} sc1", ("hst", t))
        ops.append((st, cv, False, early))
    return ops


A4REG = lambda s: (160 + 4 * s) if s < 24 else 4 * (s - 24)


def phase34(a, ring, cfg):
    AW = cfg.get("aw", 10)
    setup = a_setup(a, S_XA, L.X1)
    setup4 = a_setup(a, S_HA, L.H)
    mf = panel(a, P3S, range(6), True)
    ap = cfg.get("aper", 2.3)
    al = Seq([((lambda s=s: aload(a, s, setup)), 2, int(ap * (s - AW)), "vm") for s in range(AW, 40)], force=True, maxper=1)
    tail = lines(a, f"v_mul_f32 v{V_ST+2}, {f32bits(-LOG2E)}, v{V_ST}\nv_mov_b32 v{V_ST+4}, v{P1_TT+2}")
    d = Dag(a, silu_ops(a))
    d.keep = True

    def sig(inst):
        def f():
            stores = [k for k, o in enumerate(d.ops) if callable(o[0])]
            assert stores[2 * inst] in d.at and stores[2 * inst + 1] in d.at, ("h signal before its stores", inst)
            a.wait_vm(lambda t: t in (("hst", 2 * inst), ("hst", 2 * inst + 1)))
            signal(a, L.C_H0 + inst, S_TB32)
        return f

    def a4(s):
        def f():
            if s < 24:
                assert not any(isfl(t) for t in a.lgq) and ring.next >= P4S, "parked registers still in use"
            aload(a, s, setup4, A4REG(s), "H")
        return f
    h0s, h0p, h0c = cfg.get("h0", (166, 190, 212))
    h1s, h1p = cfg.get("h1", (212, 236))
    sg = Seq([(sig(0), 5, h0s, "s"), (lambda: poll_issue(a, L.C_H0, S_TB32P), 5, h0p, "s"),
              (lambda: poll_check(a), 6, h0c, "s"), (sig(1), 5, h1s, "s")], force=True)
    a4p = cfg.get("a4per", 2.6)
    n_early = min(16, int((246 - h0c - 1) / a4p) + 1)
    a4s = Seq([(a4(s), 2, h0c + 1 + int(a4p * s), "vm") for s in range(n_early)], force=True, maxper=1)
    pe = cfg.get("per3e", 3.5)
    period = lambda g: pe if 102 <= g < cfg.get("e0end", 140) else cfg.get("per3", 2.3)
    sc = Sched([al, sg, a4s, d] + stats_seq(a, cfg, L.C_X1, L.ST1, tail) + [RingFill(ring, 0)], 6, period, cfg.get("fl3", 3))
    bars = {0: P3S + 48}
    for b in range(24, 246, cfg.get("b3", 24)):
        bars[b] = min(P3S + b + cfg.get("b3", 24), P3S + 246)
    st = {idx: (lambda n=n: stamp(a, f"P3.{n}", cfg, 2)) for n, idx in enumerate((0, 40, 80, 122, 163, 204))}

    def hook():
        poll_check(a)
        stamp(a, "P3 polled", cfg)
        for s in range(AW):
            aload(a, s, setup)
    run_pass(a, ring, mf, sc, bars, cfg.get("d32", 9), G32, hook, stamps=st)
    stores = [d.at.get(k) for k, o in enumerate(d.ops) if callable(o[0])]
    cfg["_info"].append(f"P3: h stores at {stores} ring.next {ring.next - P4S} early A4 {n_early} late {getattr(ring, 'late', 0)}")
    stamp(a, "P3 done", cfg)
    ring.cons = P4S
    poll_issue(a, L.C_H1, S_TB32P)
    d.off = 250
    AW4 = max(n_early, min(16, cfg.get("aw4", 16)))
    sc0 = Sched([Seq([(a4(s), 2, 2 * (s - n_early), "vm") for s in range(n_early, AW4)], force=True, maxper=1), d, RingFill(ring, 0, TOT)], 8, 2.3)
    g = 0
    while not (sc0.streams[0].done() and d.done()):
        sc0.gap(g, 0)
        g += 1
    stamp(a, "h epi end", cfg)
    mf = [mk16(a, P4S + 5 * s + t, t, s, A4REG(s), "H") for s in range(48) for t in range(5)]
    lead = cfg.get("lead4", 12)
    it = []
    for s in range(AW4, 48):
        k = max(5 * (s - lead), cfg.get("h1c", 0) + 4 * (s - 16))
        if s in (16, 32):
            it.append((lambda: poll_check(a), 6, k, "s"))
        it.append((a4(s), 2, k, "vm"))
    k32 = max(5 * (32 - lead), cfg.get("h1c", 0) + 64)
    sg = Seq([(sig(2), 5, cfg.get("h2sig", 30), "s"),
              (lambda: poll_issue(a, L.C_H2, S_TB32P), 5, k32 - cfg.get("plead", 35), "s")], force=True)
    sc = Sched([Seq(it, force=True, maxper=2), sg, RingFill(ring, 0, TOT), RingFill(ring, cfg.get("nx4", 170))], 2, cfg.get("per4", 2.5), cfg.get("fl4", 4))
    bars = {}
    for b in range(0, 240, 30):
        bars[b] = min(P4S + b + 30, P4S + 240)
    st = {idx: (lambda n=n: stamp(a, f"P4.{n}", cfg, 2)) for n, idx in enumerate((0, 40, 80, 120, 160, 200))}
    run_pass(a, ring, mf, sc, bars, cfg.get("d16", 15), 5, None, V_ACC, stamps=st)
    cfg["_info"].append(f"P4: ring.next {ring.next - TOT} late {getattr(ring, 'late', 0)}")
    stamp(a, "P4 done", cfg)
    out_epilogue(a, ring, cfg, L.LSTR + L.X, L.LSTR + L.ST, L.C_X, True, True)


def gen_main(name="main_kernel", cfg=None):
    cfg = cfg or {}
    a = Asm()
    parks = [(P3S + 156, P3S + 248)] if cfg.get("park", True) else []
    ring = Ring(a, parks)
    cfg["_info"] = []
    cfg["_stamps"] = []
    cfg["_pend"] = []
    cfg["_k"] = [0]
    a.e(f".globl {name}\n.p2align 8\n.type {name},@function\n{name}:")
    a.e("s_cmp_ge_u32 s2, 256\ns_cbranch_scc1 L_end")
    a.e("s_load_dwordx2 s[44:45], s[0:1], 56\ns_load_dwordx2 s[12:13], s[0:1], 72")
    a.e(f"v_and_b32 v{V_LANE}, 63, v0\nv_lshlrev_b32 v{V_L16}, 4, v{V_LANE}\nv_lshlrev_b32 v{V_T16}, 4, v0")
    a.e(f"v_lshrrev_b32 v30, 6, v0\nv_readfirstlane_b32 s{S_W}, v30")
    a.e(f"s_and_b32 s46, s2, 6\ns_lshl_b32 s46, s46, 1\ns_lshr_b32 s47, s2, 3\ns_and_b32 s47, s47, 3\ns_add_u32 s{S_I}, s46, s47")
    a.e(f"s_and_b32 s46, s2, 1\ns_lshl_b32 s46, s46, 3\ns_lshr_b32 s47, s2, 5\ns_add_u32 s{S_J}, s46, s47")
    a.e(f"s_lshl_b32 s{S_W1K}, s{S_W}, 10")
    a.e(f"s_lshr_b32 s48, s{S_J}, 1\ns_and_b32 s49, s{S_J}, 1")
    a.e(f"s_mul_i32 s20, s{S_J}, {L.WQKV_STR}\ns_add_u32 s20, s20, {L.WQKV}")
    a.e(f"s_mul_i32 s21, s48, {L.WO_STR}\ns_add_u32 s21, s21, {L.WO}")
    a.e(f"s_mul_i32 s22, s{S_J}, {L.W13_STR}\ns_add_u32 s22, s22, {L.W13}")
    a.e(f"s_mul_i32 s23, s48, {L.W2_STR}\ns_add_u32 s23, s23, {L.W2}")
    a.e("s_waitcnt lgkmcnt(0)")
    for d in (SRD_WS, SRD_NX):
        a.e(f"s_mov_b32 s{d}, s12\ns_and_b32 s{d+1}, s13, 0xffff\ns_mov_b32 s{d+2}, {L.WS_USED}\ns_mov_b32 s{d+3}, 0x20000")
    a.e(f"s_mov_b32 s8, s44\ns_and_b32 s9, s45, 0xffff\ns_mov_b32 s10, {2048*1280}\ns_mov_b32 s11, 0x20000")
    a.e(f"s_mov_b32 s{S_LAY}, 0\ns_mov_b32 s{S_LOFF}, {L.LBASE}\ns_mov_b32 s{S_COFF}, 0")
    if cfg.get("timing"):
        a.e(f"s_add_u32 s72, s12, {cfg['timing']}\ns_addc_u32 s73, s13, 0\ns_and_b32 s73, s73, 0xffff\ns_mov_b32 s74, {1024*512}\ns_mov_b32 s75, 0x20000")
        a.e(f"s_lshl_b32 s{S_TS+2}, s2, 2\ns_add_u32 s{S_TS+2}, s{S_TS+2}, s{S_W}\ns_lshl_b32 s{S_TS+2}, s{S_TS+2}, 9\nv_lshlrev_b32 v30, 2, v{V_LANE}\nv_mov_b32 v31, 0")
    stamp(a, "start", cfg, 0)
    ring.freed = 0
    a.e(f"s_lshl_b32 s{S_TB32}, s{S_I}, 2\ns_add_u32 s{S_TB32}, s{S_TB32}, s{S_W}")
    a.e(f"s_mul_i32 s{S_XA}, s{S_TB32}, 40960\ns_lshl_b32 s{S_STA}, s{S_TB32}, 11")
    setup0 = a_setup(a, S_XA, L.X)
    a.e(f"s_lshl_b32 s{S_WG[8]}, s{S_W}, 11\ns_mul_i32 s{S_WG[12]}, s{S_W}, 3072\ns_lshl_b32 s{S_WG[16]}, s{S_W}, 12")
    for g_ in (8, 12, 16):
        a.e(f"v_add_u32 v{V_TG[g_]}, s{S_WG[g_]}, v{V_L16}")
    a.e(f"v_add_u32 v{V_T16B}, 0x10000, v{V_T16}\nv_add_u32 v{V_T16C}, 0x20000, v{V_T16}\nv_lshlrev_b32 v{V_T8}, 3, v0")
    ring.maxg = 12
    for blk in range(cfg.get("la0", 3)):
        for k in range(3):
            ring.step(12 * blk + 12)
        for s_ in range(4 * blk, 4 * blk + 4):
            aload(a, s_, setup0)
            cfg["_a0"] = s_ + 1
    a.e(f"s_lshl_b32 s{S_TB16}, s{S_I}, 3\ns_lshl_b32 s46, s49, 2\ns_add_u32 s{S_TB16}, s{S_TB16}, s46\ns_add_u32 s{S_TB16}, s{S_TB16}, s{S_W}")
    a.e(f"s_lshr_b32 s{S_TB32P}, s{S_TB16}, 1")
    a.e(f"s_mul_i32 s{S_OA}, s{S_TB16}, 20480\ns_mul_i32 s{S_HA}, s{S_TB16}, 49152")
    a.e(f"s_and_b32 s50, s{S_TB16}, 1")
    a.e(f"s_mul_i32 s{S_XS}, s{S_TB32P}, 40960\ns_mul_i32 s46, s48, 5120\ns_add_u32 s{S_XS}, s{S_XS}, s46\ns_lshl_b32 s46, s50, 8\ns_add_u32 s{S_XS}, s{S_XS}, s46")
    a.e(f"s_lshl_b32 s{S_STS}, s{S_TB32P}, 11\ns_lshl_b32 s46, s48, 8\ns_add_u32 s{S_STS}, s{S_STS}, s46\ns_lshl_b32 s46, s50, 7\ns_add_u32 s{S_STS}, s{S_STS}, s46")
    a.e(f"s_mul_i32 s{S_OS}, s{S_TB32}, 40960\ns_mul_i32 s46, s{S_J}, 1280\ns_add_u32 s{S_OS}, s{S_OS}, s46\ns_add_u32 s{S_OS}, s{S_OS}, {L.O}")
    a.e(f"s_mul_i32 s47, s{S_TB32}, {2*49152}\ns_add_u32 s47, s47, {L.H}")
    a.e(f"s_lshl_b32 s46, s{S_J}, 10\ns_add_u32 s{S_HS[0]}, s47, s46")
    a.e(f"s_add_u32 s{S_HS[1]}, s{S_HS[0]}, {32*512}\ns_add_u32 s{S_HS[2]}, s{S_HS[0]}, {64*512}")
    a.e(f"s_mul_i32 s{S_KVR}, s{S_J}, {16*L.KV_STR}\ns_add_u32 s{S_KVR}, s{S_KVR}, {L.KV}")
    a.e(f"s_mul_i32 s46, s{S_I}, {L.KV_STR}\ns_add_u32 s{S_KVS}, s{S_KVR}, s46")
    a.e(f"s_mul_i32 s{S_OUT}, s{S_TB16}, {16*1280}\ns_mul_i32 s46, s48, 160\ns_add_u32 s{S_OUT}, s{S_OUT}, s46")
    a.e(f"s_lshl_b32 s{S_KVC}, s{S_J}, 2\ns_add_u32 s{S_KVC}, s{S_KVC}, s{S_W}")
    a.e(f"s_mov_b32 s{S_ONE}, 1\ns_mov_b32 s{S_C256}, 256")
    a.e(f"s_mov_b32 s{S_EPS2}, {f32bits(1e-6)}\ns_mov_b32 s{S_EPS2+1}, {f32bits(1e-6)}\ns_mov_b32 s{S_ONE2}, 1.0\ns_mov_b32 s{S_ONE2+1}, 1.0")
    a.e(f"v_mov_b32 v216, 210\nv_cmp_gt_u32 s[{S_M210}:{S_M210+1}], v216, v0")
    tok, hf, t16, g, x, y, z = 208, 209, 210, 211, 212, 213, 214
    ln = V_LANE
    a.e(f"v_add_u32 v{V_L16B}, 0x10000, v{V_L16}\nv_add_u32 v{V_L16C}, 0x20000, v{V_L16}")
    a.e(f"v_and_b32 v{tok}, 31, v{ln}\nv_lshrrev_b32 v{hf}, 5, v{ln}\nv_and_b32 v{t16}, 15, v{ln}\nv_lshrrev_b32 v{g}, 4, v{ln}")
    a.e(f"v_lshlrev_b32 v{x}, 10, v{hf}\nv_lshl_add_u32 v{V_STL}, v{tok}, 3, v{x}")
    a.e(f"v_lshlrev_b32 v{x}, 8, v{hf}\nv_lshl_add_u32 v{x}, v{t16}, 4, v{x}\nv_bfe_u32 v{y}, v{ln}, 4, 1")
    a.e(f"v_mul_u32_u24 v{z}, 20480, v{y}\nv_add_u32 v{V_OST}, v{x}, v{z}")
    a.e(f"v_mul_u32_u24 v{z}, 49152, v{y}\nv_add_u32 v{V_HST}, v{x}, v{z}")
    a.e(f"v_lshlrev_b32 v{x}, 9, v{g}\nv_lshl_add_u32 v{V_XS1}, v{t16}, 4, v{x}")
    a.e(f"v_lshlrev_b32 v{x}, 9, v{hf}\nv_lshl_add_u32 v{x}, v{t16}, 4, v{x}\nv_lshl_add_u32 v{x}, v{y}, 3, v{x}\nv_add_u32 v{V_XS2}, 4096, v{x}")
    a.e(f"v_mul_u32_u24 v{x}, 1280, v{t16}\nv_lshl_add_u32 v{V_OUT1}, v{g}, 4, v{x}\nv_lshl_add_u32 v{x}, v{g}, 3, v{x}\nv_add_u32 v{V_OUT2}, 128, v{x}")
    a.e(f"v_lshlrev_b32 v{V_STS}, 3, v{ln}")
    a.e(f"s_add_u32 s{S_T}, s{S_XS}, {L.LBASE + L.X}")
    P = 128
    a.vm(f"buffer_load_dwordx4 v[{P}:{P+3}], v{V_XS1}, s[{SRD_WS}:{SRD_WS+3}], s{S_T} offen", "res")
    a.vm(f"buffer_load_dwordx4 v[{P+4}:{P+7}], v{V_XS1}, s[{SRD_WS}:{SRD_WS+3}], s{S_T} offen offset:2048", "res")
    a.vm(f"buffer_load_dwordx2 v[{P+8}:{P+9}], v{V_XS2}, s[{SRD_WS}:{SRD_WS+3}], s{S_T} offen", "res")
    stats_load(a, L.ST)
    a.e(f"s_mul_i32 s46, s{S_W}, {GC_STR}\ns_add_u32 s46, s46, {GC_OFF}")
    a.e(f"v_mul_u32_u24 v{x}, 80, v{tok}\nv_lshl_add_u32 v{x}, v{hf}, 4, v{x}\nv_add_u32 v{x}, s46, v{x}")
    a.e(f"v_subrev_u32 v{y}, 80, v{x}\nv_cmp_le_u32 vcc, 20, v{tok}\nv_cndmask_b32 v{V_G0}, v{x}, v{y}, vcc")
    a.e(f"v_add_u32 v{y}, {23*80}, v{x}\nv_add_u32 v{x}, {16*80}, v{x}\nv_cmp_gt_u32 vcc, 16, v{tok}\nv_cndmask_b32 v{V_G1}, v{x}, v{y}, vcc")
    a.e(f"s_lshl_b32 s46, s{S_W}, 5\nv_add_u32 v215, s46, v{tok}\nv_cmp_gt_u32 s[{S_MKV}:{S_MKV+1}], 0x69, v215" .replace("0x69, v215", "v216, v215").replace("v_cmp_gt", "v_mov_b32 v216, 105\nv_cmp_gt"))
    a.e(f"v_mul_u32_u24 v{x}, {L.KV_STR}, v{hf}\nv_lshl_add_u32 v{V_KVL}, v215, 4, v{x}\nv_lshl_add_u32 v215, v215, 1, v{hf}")
    a.e(f"v_mul_u32_u24 v{x}, 205, v215\nv_lshrrev_b32 v{x}, 10, v{x}\nv_mul_u32_u24 v{y}, 5, v{x}\nv_sub_u32 v{y}, v215, v{y}")
    a.e(f"v_mul_u32_u24 v{z}, 112, v{x}\nv_lshl_add_u32 v{z}, v{y}, 3, v{z}\nv_add_u32 v{z}, {GB_OFF}, v{z}\nv_add_u32 v{y}, 40, v{z}")
    a.e(f"v_cmp_le_u32 vcc, 20, v{x}\nv_cndmask_b32 v{y}, v{z}, v{y}, vcc\nv_cmp_eq_u32 vcc, 40, v{x}\nv_cndmask_b32 v{V_GBW}, v{y}, v{z}, vcc")
    a.e(f"v_lshrrev_b32 v{x}, 4, v{tok}\nv_mul_u32_u24 v{x}, 24, v{x}\nv_bfe_u32 v{y}, v{tok}, 2, 1\nv_lshl_add_u32 v{x}, v{y}, 3, v{x}")
    a.e(f"v_bfe_u32 v{y}, v{tok}, 3, 1\nv_lshl_add_u32 v{x}, v{y}, 2, v{x}\nv_and_b32 v{z}, 3, v{tok}\nv_add_u32 v{x}, v{x}, v{z}")
    a.e(f"v_mul_u32_u24 v{x}, 112, v{x}\nv_lshl_add_u32 v{x}, v{hf}, 4, v{x}\nv_add_u32 v{V_GBX}, {GB_OFF}, v{x}")
    a.e(f"v_lshl_add_u32 v{x}, v{y}, 2, v{z}\nv_add_u32 v{x}, 16, v{x}\nv_mov_b32 v{y}, 42")
    a.e(f"v_and_b32 v215, 0x14, v{tok}\nv_cmp_eq_u32 vcc, 0, v215\nv_cndmask_b32 v{y}, v{y}, v{x}, vcc")
    a.e(f"v_add_u32 v{x}, 40, v{z}\nv_and_b32 v215, 0x1a, v{tok}\nv_cmp_eq_u32 vcc, 16, v215\nv_cndmask_b32 v{y}, v{y}, v{x}, vcc")
    a.e(f"v_mul_u32_u24 v{x}, 112, v{y}\nv_lshl_add_u32 v{x}, v{hf}, 4, v{x}\nv_add_u32 v{V_GBY}, {GB_OFF}, v{x}")
    a.e(f"s_mul_i32 s46, s{S_W}, 2304\ns_add_u32 s46, s46, {QT_OFF}\ns_mul_i32 s47, s{S_W}, 576\ns_add_u32 s47, s47, {Q1_OFF}")
    a.e(f"v_mul_u32_u24 v{x}, 72, v{tok}\nv_lshl_add_u32 v{x}, v{hf}, 3, v{x}\nv_add_u32 v{V_QW3}, s46, v{x}")
    a.e(f"v_add_u32 v{x}, s47, v{x}\nv_subrev_u32 v{V_QW1}, {16*72}, v{x}")
    a.e(f"v_bfe_u32 v{x}, v{ln}, 2, 2\nv_mul_u32_u24 v{x}, 72, v{x}\nv_bfe_u32 v{y}, v{ln}, 4, 1\nv_lshl_add_u32 v{x}, v{y}, 5, v{x}")
    a.e(f"v_and_b32 v{y}, 3, v{ln}\nv_lshl_add_u32 v{x}, v{y}, 3, v{x}\nv_add_u32 v{V_QR2}, s47, v{x}")
    a.e(f"v_mul_u32_u24 v{y}, {8*72}, v{hf}\nv_add_u32 v{x}, v{x}, v{y}\nv_add_u32 v{V_QR}, s46, v{x}")
    a.e(f"v_mov_b32 v{V_C2}, 0\nv_mov_b32 v{V_C3}, 0\nv_mov_b32 v{V_LO}, 0\nv_mov_b32 v{V_C2+1}, 0\nv_mov_b32 v{V_C3+1}, 0")
    set_exec(a, 0x00FF00FF, 0x00FF00FF)
    a.e(f"v_mov_b32 v{V_C3}, s{S_EPS2}\nv_mov_b32 v{V_LO}, s{S_EPS2}")
    set_exec(a, 0x0000FF00, 0x0000FF00)
    a.e(f"v_mov_b32 v{V_C2}, 0xff800000\nv_mov_b32 v{V_LO}, 0xff800000")
    a.e("s_mov_b64 exec, -1")
    a.e(f"s_lshl_b32 s46, s{S_W}, 8\ns_add_u32 s46, s46, {RS_OFF}")
    a.e(f"v_lshlrev_b32 v{x}, 2, v{ln}\nv_add_u32 v{V_RSW}, s46, v{x}\nv_lshlrev_b32 v{x}, 4, v{hf}\nv_add_u32 v{V_RSR}, s46, v{x}")
    stamp(a, "P1 polled", cfg)
    phase1(a, ring, cfg, True)
    a.e("s_branch L_join")
    j0 = (ring.next, ring.cons, ring.freed, dict(ring.parked))
    tags0 = set(a.vm_tags())
    a.e("L_top:")
    cfg["_pend"][:], cfg["_k"][0] = cfg.get("_ptop", ([], 0))
    top = cfg.get("_top", ([("dma", p_) for p_ in range(0, RING, 4)], RING))
    a.vmq = list(top[0])
    a.lgq = []
    ring.next, ring.pub, ring.cons, ring.freed, ring.parked = top[1], 0, 0, 0, {}
    phase1(a, ring, cfg, False)
    assert j0 == (ring.next, ring.cons, ring.freed, dict(ring.parked)), (j0, ring.next, ring.cons)
    a.e("L_join:")
    a.vmq = [frozenset(tags0 | set(a.vm_tags()))]
    assert not a.lgq
    phase2(a, ring, cfg)
    phase34(a, ring, cfg)
    assert ring.freed == TOT and not ring.open, (ring.next, ring.freed)
    bottom = ([((t[0], t[1] - TOT) if isdma(t) else "old") for t in a.vmq], ring.next - TOT)
    ptop = (list(cfg["_pend"]), cfg["_k"][0])
    if cfg.get("_top") != bottom or cfg.get("_ptop") != ptop:
        cfg = dict(cfg)
        cfg["_top"] = bottom
        cfg["_ptop"] = ptop
        return gen_main(name, cfg)
    import sys
    print("\n".join(cfg["_info"]), "nops", a.nops_added, file=sys.stderr)
    a.e(f"s_mov_b32 s{SRD_NX+2}, 0")
    a.e("s_branch L_top")
    a.e("L_final:")
    cfg["_pend"][:], cfg["_k"][0] = cfg["_final"]
    cfg["_slot"] = 1
    P = V_TMP
    a.e(f"buffer_store_dwordx4 v[{P}:{P+3}], v{V_OUT1}, s[8:11], s{S_OUT} offen")
    a.e(f"buffer_store_dwordx4 v[{P+4}:{P+7}], v{V_OUT1}, s[8:11], s{S_OUT} offen offset:64")
    a.e(f"buffer_store_dwordx2 v[{P+8}:{P+9}], v{V_OUT2}, s[8:11], s{S_OUT} offen")
    stamp(a, "end", cfg, 0)
    a.e("s_waitcnt vmcnt(0)")
    a.e("L_end:\ns_endpgm")
    t = a.text()
    if cfg.get("timing"):
        t += "; STAMPS " + "|".join(cfg["_stamps"]) + "\n"
    return t, kd(name, 512, 100, 256), a


if __name__ == "__main__":
    t, k, a = gen_main()
    print(t)
```

```python
from asmcore import *
import layout as L

N_QKV, N_W13, N_W2, N_WO, N_X = 120, 192, 96, 40, 256
B_QKV = 0
B_W13 = B_QKV + N_QKV
B_W2 = B_W13 + N_W13
B_WO = B_W2 + N_W2
B_X = B_WO + N_WO
PREP_GRID = B_X + N_X
PREP_LDS = 20480
PREP_BLOCK = 128
ST_FLAG = "sc1"


def srd(a, d, base, size):
    a.e(f"s_mov_b32 s{d}, s{base}\ns_and_b32 s{d+1}, s{base+1}, 0xffff\ns_mov_b32 s{d+2}, {size}\ns_mov_b32 s{d+3}, 0x20000")


def load_cols(a, pitch, s_cb, s_kq):
    a.e("v_lshrrev_b32 v5, 3, v1\nv_and_b32 v6, 7, v1")
    a.e(f"v_mul_u32_u24 v5, {pitch}, v5\nv_lshl_add_u32 v5, v6, 4, v5")
    a.e(f"s_mul_i32 s34, s{s_kq}, {160*pitch}\ns_mul_i32 s35, s3, {80*pitch}\ns_add_u32 s34, s34, s35")
    a.e(f"s_lshl_b32 s35, s{s_cb}, 7\ns_add_u32 s34, s34, s35\ns_mul_i32 s36, s3, 10240")
    for n in range(10):
        a.e(f"s_add_u32 m0, s36, {n*1024}")
        a.e(f"buffer_load_dwordx4 v5, s[12:15], s34 offen lds")
        a.e(f"s_add_u32 s34, s34, {8*pitch}")


def frag_table(a, s_kq, base, pstr):
    k = s_kq
    a.e(f"s_mul_i32 s40, s{k}, 30\ns_mul_i32 s41, s{k}, 20\ns_add_u32 s41, s41, 20\ns_mul_i32 s45, s{k}, 10\ns_add_u32 s42, s45, 82\ns_add_u32 s43, s40, 2")
    a.e(f"s_mov_b32 s46, 3072\ns_mov_b32 s47, 3072\ns_cmp_ge_u32 s{k}, 2")
    a.e("s_cselect_b32 s40, s41, s40\ns_cselect_b32 s43, s42, s43\ns_cselect_b32 s46, 2048, s46\ns_cselect_b32 s47, 1024, s47")
    a.e("v_add_u32 v13, s40, v10\nv_mov_b32 v14, s46\nv_add_u32 v15, 100, v10")
    a.e("v_mov_b32 v6, s43\nv_mov_b32 v7, s47\nv_mov_b32 v8, 122\nv_cmp_eq_u32 vcc, 2, v10")
    a.e("v_cndmask_b32 v13, v13, v6, vcc\nv_cndmask_b32 v14, v14, v7, vcc\nv_cndmask_b32 v15, v15, v8, vcc")
    a.e("v_mul_u32_u24 v8, 41, v10\nv_add_u32 v6, s45, v8\nv_add_u32 v8, 40, v8\nv_mov_b32 v7, 1024\nv_cmp_lt_u32 vcc, 2, v10")
    a.e("v_cndmask_b32 v13, v13, v6, vcc\nv_cndmask_b32 v14, v14, v7, vcc\nv_cndmask_b32 v15, v15, v8, vcc")
    a.e(f"v_mul_u32_u24 v6, {pstr}, v11\nv_lshl_add_u32 v6, v12, 4, v6\nv_add_u32 v6, {base}, v6")
    a.e("v_lshl_add_u32 v13, v13, 10, v6\nv_lshl_add_u32 v15, v15, 10, v6")
    a.e("v_lshrrev_b32 v7, 5, v1\nv_lshl_add_u32 v13, v7, 9, v13")
    a.e(f"s_lshr_b32 s40, s{k}, 1\ns_lshl_b32 s40, s40, 9\ns_and_b32 s41, s{k}, 1\ns_lshl_b32 s41, s41, 3\ns_add_u32 s40, s40, s41")
    a.e("v_add_u32 v15, s40, v15")


def tr_pack(a, zero_mask=None):
    for s in range(10):
        for u in range(2):
            a.ds(f"ds_read_b64_tr_b16 v[{16+4*s+2*u}:{17+4*s+2*u}], v4 offset:{(16*s+4*u)*128}", ("t", s))
    a.e("v_mov_b32 v9, 0\ns_mov_b32 s42, 0x3f803f80\nv_mov_b32 v60, v13")
    for s in range(10):
        a.wait_ds(("t", s))
        a.e(f"buffer_store_dwordx4 v[{16+4*s}:{19+4*s}], v13, s[8:11], 0 offen {ST_FLAG}")
        a.e("v_add_u32 v13, v13, v14")
        for r in range(4):
            a.e(f"v_dot2_f32_bf16 v9, v{16+4*s+r}, s42, v9")
    a.e("v_mov_b32 v10, v9\nv_permlane32_swap_b32 v9, v10\nv_add_f32 v9, v9, v10")
    a.e("v_cvt_pk_bf16_f32 v6, v9, v9\nv_and_b32 v10, 0xffff0000, v6\nv_sub_f32 v10, v9, v10\nv_cvt_pk_bf16_f32 v7, v10, v10")
    a.e("s_mov_b32 exec_hi, 0")
    a.e(f"buffer_store_dwordx2 v[6:7], v15, s[8:11], 0 offen {ST_FLAG}")
    if zero_mask is not None:
        lab = a.label("LP_z")
        a.e(f"s_mov_b64 exec, -1\nv_mov_b32 v56, 0\nv_mov_b32 v57, 0\nv_mov_b32 v58, 0\nv_mov_b32 v59, 0")
        a.e(f"s_mov_b64 exec, s[{zero_mask}:{zero_mask+1}]\ns_cbranch_execz {lab}")
        for s in range(10):
            a.e(f"buffer_store_dwordx4 v[56:59], v60, s[8:11], 0 offen offset:128 {ST_FLAG}")
            a.e("v_add_u32 v60, v60, v14")
        a.e(f"buffer_store_dwordx2 v[56:57], v15, s[8:11], 0 offen offset:128 {ST_FLAG}")
        a.e(f"{lab}:")


def gen_prep(name="prep_kernel", code_prefetch=True, tlb=None, timing=None):
    a = Asm()

    def fin():
        if timing:
            a.e("s_mov_b64 exec, -1\ns_memrealtime s[66:67]\ns_waitcnt vmcnt(0)\ns_memrealtime s[68:69]\ns_waitcnt lgkmcnt(0)")
            a.e(f"s_add_u32 s72, s30, {timing + (1 << 20)}\ns_addc_u32 s73, s31, 0\ns_and_b32 s73, s73, 0xffff\ns_mov_b32 s74, 65536\ns_mov_b32 s75, 0x20000")
            a.e("v_mov_b32 v4, s62\nv_mov_b32 v5, s64\nv_mov_b32 v6, s66\nv_mov_b32 v7, s68\nv_mov_b32 v8, 0")
            a.e("s_lshl_b32 s70, s2, 1\ns_add_u32 s70, s70, s3\ns_lshl_b32 s70, s70, 4\ns_mov_b64 exec, 1")
            a.e("buffer_store_dwordx4 v[4:7], v8, s[72:75], s70 offen")
        a.e("s_endpgm")

    def loaded():
        a.e("s_waitcnt vmcnt(0)")
        if timing:
            a.e("s_memrealtime s[64:65]")

    a.e(f".globl {name}\n.p2align 8\n.type {name},@function\n{name}:")
    a.e(f"s_cmp_ge_u32 s2, {PREP_GRID}\ns_cbranch_scc1 LP_end")
    if timing:
        a.e("s_memrealtime s[62:63]")
    a.e("s_load_dwordx4 s[16:19], s[0:1], 0")
    a.e("s_load_dwordx2 s[20:21], s[0:1], 16")
    a.e("s_load_dwordx4 s[24:27], s[0:1], 32")
    a.e("s_load_dwordx2 s[28:29], s[0:1], 48")
    a.e("s_load_dwordx2 s[30:31], s[0:1], 72")
    a.e("v_and_b32 v1, 63, v0")
    a.e("v_lshlrev_b32 v2, 4, v1")
    a.e("v_lshrrev_b32 v3, 6, v0")
    a.e("v_readfirstlane_b32 s3, v3")
    a.e("s_waitcnt lgkmcnt(0)")
    srd(a, 8, 30, L.WS_USED)
    a.e(f"s_cmp_ge_u32 s2, {B_X}\ns_cbranch_scc1 LP_x")
    a.e(f"s_cmp_ge_u32 s2, {B_W2}\ns_cbranch_scc1 LP_w2")
    a.e(f"s_cmp_ge_u32 s2, {B_W13}\ns_cbranch_scc1 LP_w13")

    def krow_addr():
        a.e("v_lshrrev_b32 v7, 5, v1\nv_lshlrev_b32 v7, 3, v7\nv_bfe_u32 v8, v1, 2, 2\nv_add_u32 v7, v7, v8")
        a.e("v_lshlrev_b32 v7, 7, v7\ns_lshl_b32 s35, s3, 6\nv_add_u32 v7, s35, v7")

    srd(a, 12, 18, 640 * 3840)
    a.e("s_mul_i32 s33, s2, 137\ns_lshr_b32 s33, s33, 12\ns_mul_i32 s34, s33, 30\ns_sub_u32 s32, s2, s34")
    load_cols(a, 3840, 32, 33)
    krow_addr()
    a.e("v_bfe_u32 v6, v1, 4, 1\nv_lshl_add_u32 v7, v6, 5, v7\nv_and_b32 v6, 3, v1\nv_lshl_add_u32 v4, v6, 3, v7")
    a.e("s_lshl_b32 s37, s32, 3\ns_lshl_b32 s38, s3, 2\ns_add_u32 s37, s37, s38")
    a.e("s_mul_i32 s38, s32, 26\ns_lshr_b32 s38, s38, 8")
    a.e("s_mul_i32 s39, s38, 80\ns_sub_u32 s37, s37, s39")
    a.e("v_bfe_u32 v6, v1, 3, 2\nv_add_u32 v6, s37, v6")
    a.e("v_mul_u32_u24 v11, 205, v6\nv_lshrrev_b32 v11, 10, v11\nv_mul_u32_u24 v7, 5, v11\nv_sub_u32 v6, v6, v7")
    a.e("s_mov_b32 s39, 3\ns_mov_b32 s40, 16\ns_cmp_eq_u32 s38, 1\ns_cselect_b32 s39, 0, s39\ns_cselect_b32 s40, 0, s40")
    a.e("s_cmp_eq_u32 s38, 2\ns_cselect_b32 s39, 2, s39\ns_cselect_b32 s40, 8, s40")
    a.e("v_mov_b32 v10, s39\nv_lshlrev_b32 v12, 3, v6\nv_mov_b32 v7, s40\nv_cmp_eq_u32 vcc, 4, v6")
    a.e("v_cndmask_b32 v10, v10, 1, vcc\nv_cndmask_b32 v12, v12, v7, vcc\nv_and_b32 v7, 7, v1\nv_add_u32 v12, v12, v7")
    a.e("s_cmp_eq_u32 s38, 0\ns_cselect_b64 s[48:49], vcc, 0")
    frag_table(a, 33, L.WQKV, L.WQKV_STR)
    loaded()
    a.e("s_barrier")
    tr_pack(a, 48)
    fin()

    a.e("LP_w13:")
    a.e(f"s_sub_u32 s32, s2, {B_W13}\ns_and_b32 s39, s32, 1\ns_lshr_b32 s32, s32, 1")
    a.e("s_mul_i32 s33, s32, 43\ns_lshr_b32 s33, s33, 10\ns_mul_i32 s34, s33, 24\ns_sub_u32 s32, s32, s34")
    a.e("s_cmp_eq_u32 s39, 0\ns_cselect_b32 s22, s24, s26\ns_cselect_b32 s23, s25, s27")
    srd(a, 12, 22, 640 * 3072)
    load_cols(a, 3072, 32, 33)
    krow_addr()
    a.e("v_bfe_u32 v6, v1, 4, 1\nv_lshl_add_u32 v7, v6, 5, v7")
    a.e("v_and_b32 v8, 1, v1\nv_lshl_add_u32 v7, v8, 4, v7\nv_bfe_u32 v8, v1, 1, 1\nv_lshl_add_u32 v4, v8, 3, v7")
    a.e("s_lshl_b32 s37, s32, 1\ns_add_u32 s37, s37, s3\ns_and_b32 s38, s37, 15\ns_lshr_b32 s37, s37, 4\ns_lshl_b32 s37, s37, 1")
    a.e("v_add_u32 v10, s37, v6\nv_mov_b32 v11, s38\ns_lshl_b32 s39, s39, 4\nv_and_b32 v12, 15, v1\nv_add_u32 v12, s39, v12")
    frag_table(a, 33, L.W13, L.W13_STR)
    loaded()
    a.e("s_barrier")
    tr_pack(a)
    fin()

    a.e("LP_w2:")
    a.e(f"s_sub_u32 s32, s2, {B_W2}\ns_sub_u32 s33, s2, {B_WO}")
    a.e(f"s_mov_b32 s34, {1536*1280}\ns_mov_b32 s35, {L.W2}\ns_mov_b32 s37, {L.W2_STR}")
    a.e(f"s_cmp_ge_u32 s2, {B_WO}")
    a.e("s_cselect_b32 s32, s33, s32\ns_cselect_b32 s22, s20, s28\ns_cselect_b32 s23, s21, s29")
    a.e(f"s_cselect_b32 s34, {640*1280}, s34\ns_cselect_b32 s35, {L.WO}, s35\ns_cselect_b32 s37, {L.WO_STR}, s37")
    a.e("s_mov_b32 s12, s22\ns_and_b32 s13, s23, 0xffff\ns_mov_b32 s14, s34\ns_mov_b32 s15, 0x20000")
    a.e("s_and_b32 s33, s32, 1\ns_lshr_b32 s32, s32, 1")
    for n in range(5):
        a.e(f"v_add_u32 v5, {64*n}, v1\nv_mul_u32_u24 v6, 205, v5\nv_lshrrev_b32 v6, 13, v6")
        a.e(f"v_mul_u32_u24 v6, 640, v6\nv_lshl_add_u32 v{60+n}, v5, 4, v6")
    a.e("s_mul_i32 s36, s3, 10240\ns_mul_i32 s34, s32, 40960\ns_mul_i32 s38, s3, 20480\ns_add_u32 s34, s34, s38")
    a.e("s_mul_i32 s38, s33, 640\ns_add_u32 s34, s34, s38")
    for n in range(10):
        a.e(f"s_add_u32 m0, s36, {n*1024}")
        a.e(f"buffer_load_dwordx4 v{60+n%5}, s[12:15], s34 offen lds")
        if n == 4:
            a.e(f"s_add_u32 s34, s34, {8*1280}")
    a.e("v_lshrrev_b32 v7, 4, v1\nv_lshlrev_b32 v7, 3, v7\nv_bfe_u32 v8, v1, 2, 2\nv_add_u32 v7, v7, v8")
    a.e("v_mul_u32_u24 v7, 640, v7\ns_mul_i32 s38, s3, 320\nv_add_u32 v7, s38, v7")
    a.e("v_and_b32 v8, 3, v1\nv_lshl_add_u32 v4, v8, 4, v7\nv_lshl_add_u32 v5, v8, 3, v7")
    a.e("s_lshl_b32 s38, s33, 1\ns_add_u32 s38, s38, s3\ns_lshl_b32 s38, s38, 1\ns_mul_i32 s38, s38, s37\ns_add_u32 s43, s35, s38")
    a.e("s_mul_i32 s38, s32, 5120\ns_add_u32 s43, s43, s38")
    loaded()
    a.e("s_barrier")
    for cc in range(2):
        for t in range(5):
            f = cc * 5 + t
            for u in range(2):
                if t < 4:
                    off = cc * 160 + (t >> 1) * 64 + (t & 1) * 8 + u * 4 * 640
                    a.ds(f"ds_read_b64_tr_b16 v[{16+4*f+2*u}:{17+4*f+2*u}], v4 offset:{off}", ("t", f))
                else:
                    off = cc * 160 + 128 + u * 4 * 640
                    a.ds(f"ds_read_b64_tr_b16 v[{16+4*f+2*u}:{17+4*f+2*u}], v5 offset:{off}", ("t", f))
    for cc in range(2):
        for t in range(5):
            f = cc * 5 + t
            a.wait_ds(("t", f))
            if t < 4:
                a.e(f"buffer_store_dwordx4 v[{16+4*f}:{19+4*f}], v2, s[8:11], s43 offen offset:{t*1024} {ST_FLAG}")
            else:
                a.e("s_add_u32 s44, s43, 4096")
                a.e(f"buffer_store_dwordx4 v[{16+4*f}:{19+4*f}], v2, s[8:11], s44 offen {ST_FLAG}")
        a.e("s_add_u32 s43, s43, s37")
    fin()

    a.e("LP_x:")
    a.e(f"s_sub_u32 s32, s2, {B_X}")
    a.e("s_cmp_eq_u32 s3, 0\ns_cbranch_scc1 LP_x0")
    a.e("v_mov_b32 v10, 0\nv_lshlrev_b32 v11, 8, v1\ns_lshl_b32 s35, s32, 10\ns_mov_b64 exec, 15")
    a.e(f"buffer_store_dword v10, v11, s[8:11], s35 offen {ST_FLAG}")
    a.e("s_mov_b64 exec, -1")
    if code_prefetch:
        a.e("s_getpc_b64 s[50:51]\nLP_pc:")
        a.e("s_add_u32 s50, s50, main_kernel-LP_pc\ns_addc_u32 s51, s51, 0")
        a.e("s_lshr_b32 s52, s32, 3\ns_lshl_b32 s52, s52, 11")
        a.e("v_add_u32 v68, s52, v2")
        a.e("v_cmp_gt_u32 vcc, L_end-main_kernel-1040, v68")
        a.e("v_mov_b32 v71, s51\nv_add_co_u32 v70, s[54:55], s50, v68\nv_addc_co_u32 v71, s[54:55], 0, v71, s[54:55]")
        a.e("s_and_saveexec_b64 s[56:57], vcc\ns_cbranch_execz LP_end")
        a.e("global_load_dwordx4 v[72:75], v[70:71], off\nglobal_load_dwordx4 v[76:79], v[70:71], off offset:1024")
    a.e("s_endpgm")
    a.e("LP_x0:")
    srd(a, 12, 16, 2048 * 1280)
    a.e("s_and_b32 s33, s32, 3\ns_lshl_b32 s33, s33, 3\ns_lshr_b32 s32, s32, 2")
    a.e("v_and_b32 v5, 7, v1\nv_add_u32 v5, s33, v5")
    a.e("v_lshrrev_b32 v6, 3, v1")
    a.e("v_mul_u32_u24 v7, 1280, v5\nv_lshl_add_u32 v7, v6, 4, v7")
    a.e("s_mul_i32 s34, s32, 40960")
    for q in range(10):
        a.e(f"buffer_load_dwordx4 v[{16+4*q}:{19+4*q}], v7, s[12:15], s34 offen offset:{q*128}")
    a.e("v_lshlrev_b32 v8, 9, v6\nv_lshl_add_u32 v8, v5, 4, v8")
    a.e("v_lshlrev_b32 v9, 8, v6\nv_lshl_add_u32 v9, v5, 3, v9")
    a.e(f"s_add_u32 s34, s34, {L.LBASE + L.X}")
    a.e(f"s_lshl_b32 s38, s32, 11\ns_add_u32 s38, s38, {L.LBASE + L.ST}")
    a.e("s_mov_b32 s42, 0x3f803f80\nv_mov_b32 v12, 0\nv_mov_b32 v13, 0")
    loaded()
    for q in range(10):
        a.e(f"buffer_store_dwordx4 v[{16+4*q}:{19+4*q}], v8, s[8:11], s34 offen {ST_FLAG}")
        a.e("s_add_u32 s34, s34, 4096")
    for r in range(40):
        a.e(f"v_dot2_f32_bf16 v{12+(r&1)}, v{16+r}, s42, v{12+(r&1)}")
    a.e(f"v_add_f32 v12, v12, v13\nv_mul_f32 v12, {f32bits(1.0/80)}, v12")
    a.e("v_mov_b32 v14, 0\nv_mov_b32 v15, 0")
    for r in range(40):
        t = 60 + 2 * (r & 3)
        a.e(f"v_lshlrev_b32 v{t}, 16, v{16+r}\nv_and_b32 v{t+1}, 0xffff0000, v{16+r}")
        a.e(f"v_pk_add_f32 v[{t}:{t+1}], v[{t}:{t+1}], v[12:13] op_sel_hi:[1,0] neg_lo:[0,1] neg_hi:[0,1]")
        a.e(f"v_pk_fma_f32 v[14:15], v[{t}:{t+1}], v[{t}:{t+1}], v[14:15]")
    a.e("v_add_f32 v13, v14, v15")
    a.e(f"buffer_store_dwordx2 v[12:13], v9, s[8:11], s38 offen {ST_FLAG}")
    fin()
    a.e("LP_end:\ns_endpgm")
    return a.text(), kd(name, 80, 80, 80)
```

```python
KB = 1024
CNT = 0
CNT_STRIDE = 256
C_X, C_KV, C_O, C_X1, C_H0, C_H1, C_H2 = range(7)
CNT_PER_LAYER = 8 * 64
C_PQKV, C_PWO, C_PW13, C_PW2 = 16, 17, 18, 19
NCNT = 20 * 64
WQKV = 320 * KB
WQKV_STR = 164 * KB
WO = WQKV + 16 * WQKV_STR
WO_STR = 100 * KB
W13 = WO + 8 * WO_STR
W13_STR = 248 * KB
W2 = W13 + 16 * W13_STR
W2_STR = 240 * KB
LBASE = W2 + 8 * W2_STR
X = 0
ST = X + 2560 * KB
KV = ST + 128 * KB
KV_STR = 1792
O = KV + 896 * KB
X1 = O + 2560 * KB
ST1 = X1 + 2560 * KB
H = ST1 + 128 * KB
LSTR = H + 6144 * KB
WS_USED = LBASE + 2 * LSTR


def fragpos(t, s):
    if t >= 3:
        return 123 + 41 * (t - 3) + s
    if s < 20:
        return 3 * s + t
    if t < 2:
        return 60 + 2 * (s - 20) + t
    return 102 + (s - 20)
```

```python
import sys, json
from gen_prep import gen_prep, PREP_GRID, PREP_LDS, PREP_BLOCK
from gen_main import gen_main

HDR = open("ref.s.txt").read().split("; Override launch")[0]

def gen_all(cfg=None, only_prep=False):
    pt, pk = gen_prep("prep_kernel", (cfg or {}).get("cpf", True), (cfg or {}).get("tlb"), (cfg or {}).get("timing"))
    mt, mk, a = gen_main("main_kernel", cfg)
    s = HDR
    s += f"; @launch kernel=prep_kernel grid=({PREP_GRID},1,1) block=({PREP_BLOCK},1,1) lds={PREP_LDS}\n"
    if not only_prep:
        s += "; @launch kernel=main_kernel grid=(256,1,1) block=(256,1,1) lds=163840\n"
    s += '.amdgcn_target "amdgcn-amd-amdhsa--gfx950"\n.text\n'
    s += pt + mt
    s += '.section .rodata,"a"\n' + pk + mk
    return s

if __name__ == "__main__":
    cfg = json.loads(sys.argv[2]) if len(sys.argv) > 2 else {}
    open(sys.argv[1], "w").write(gen_all(cfg))
```

```python
from asmcore import *
import layout as L
import gen_stage0 as S0

RING = 156
P1S, SCR, P2S, P3S, P4S, TOT = 0, 164, 192, 292, 540, 780
FIX = RING * 1024
SCRB = (SCR % RING) * 1024
GC_OFF, GC_STR = SCRB, 3360
GB_OFF = GC_OFF + 4 * GC_STR
QT_OFF = GB_OFF + 5120
RS_OFF = FIX
Q1_OFF = FIX + 1024
assert QT_OFF + 4 * 2304 <= SCRB + 28 * 1024
LOG2E = 1.4426950408889634
SPIN = 400000

V_LANE, V_L16, V_T16, V_L16B, V_L16C = 1, 2, 3, 4, 5
V_STL, V_OST, V_HST, V_XS1, V_XS2, V_OUT1, V_OUT2 = 6, 7, 8, 9, 10, 11, 12
V_G0, V_G1, V_GBW, V_GBX, V_GBY = 13, 14, 15, 16, 17
V_QW3, V_QW1, V_QR, V_QR2 = 18, 19, 20, 21
V_C2, V_C3, V_LO = 22, 24, 26
V_RSW, V_RSR, V_STS = 27, 28, 29
V_RES = 32
V_MF = 52
V_ST = 56
V_ACC = 64
V_FIFO = 160
V_TMP = 208
S_W, S_I, S_J, S_LAY, S_LOFF, S_COFF, S_W1K = 3, 14, 15, 16, 17, 18, 19
S_SEG = {P1S: 20, P2S: 21, P3S: 22, P4S: 23}
S_TB32, S_TB16, S_TB32P = 24, 25, 26
S_XA, S_STA, S_OA, S_HA, S_XS, S_STS, S_OS = 27, 28, 29, 30, 31, 32, 33
S_HS = (34, 35, 36)
S_KVS, S_KVR, S_OUT, S_KVC = 38, 39, 40, 41
S_T = 44
S_M210 = 60
S_ONE = 62
S_POLL = 63
S_C256 = 42
SRD_WS, SRD_OUT, SRD_NX = 4, 8, 64
S_DBG = 68
S_A = 70
S_EPS2 = 76
S_ONE2 = 78
S_TS = 80


V_TG = {4: V_T16, 8: 196, 12: 197, 16: 198}
S_WG = {4: S_W1K, 8: 84, 12: 85, 16: 86}
V_T16B, V_T16C, V_T8, V_KVL = 199, 200, 201, 202
S_MKV = 88
S_LO32 = 96
S_RT = 98
V_POI = 204
V_CHK = 203
RETRY = 3000
S_CW = 83
S_PA, S_PB, S_PADDR = 37, 43, 71
A_PARK = 160
INF = 10 ** 9
isdma = lambda t: isinstance(t, tuple) and t[0] == "dma"
isfl = lambda t: isinstance(t, tuple) and t[0] == "flush"


def flat_tags(q):
    for t in q:
        if isinstance(t, frozenset):
            yield from t
        else:
            yield t


class Ring:
    def __init__(self, a, parks):
        self.a = a
        self.next = 0
        self.pub = 0
        self.freed = 0
        self.cons = 0
        self.open = None
        self.parks = parks
        self.parked = {}
        self.maxg = 16
        self.gate = INF
        self.wflag = ""

    def seg(self, pos):
        p = pos % TOT
        for s, e in ((P1S, SCR), (P2S, P3S), (P3S, P4S), (P4S, TOT)):
            if s <= p < e:
                return s, p - s, e - p
        return None

    def skip(self):
        if self.next % TOT == SCR:
            self.next += P2S - SCR

    def park_of(self, pos):
        for s, (e, r) in self.parks.items():
            if s <= pos < e:
                return s
        return None

    def plan(self, limit=INF):
        if self.open:
            return ("dma", 3)
        n = self.next + (P2S - SCR if self.next % TOT == SCR else 0)
        if n >= limit or n >= self.gate or n + 4 - RING > self.freed:
            return None
        pk = self.park_of(n)
        if pk is not None:
            if self.parked.get(pk, 0) <= (n - pk) // 4:
                return None
            return ("flush", 5)
        return ("dma", 5)

    def step(self, limit=INF):
        a = self.a
        p = self.plan(limit)
        assert p is not None
        if not self.open:
            self.skip()
        pos = self.next
        if p[0] == "flush":
            pk = self.park_of(pos)
            q = (pos - pk) // 4
            a.wait_vm(("park", pos))
            addr = (pos % RING) * 1024
            base = (V_T16, V_T16B, V_T16C)[addr >> 16]
            rb = self.parks[pk][1] + 4 * q
            a.ds(f"ds_write_b128 v{base}, a[{rb}:{rb+3}] offset:{addr & 0xffff}", ("flush", pos))
            self.next = pos + 4
            return
        if not self.open:
            s, rel, left = self.seg(pos)
            g = min(self.maxg, left, RING - pos % RING, (self.freed + RING - pos) // 4 * 4, max(4, (limit - pos + 3) // 4 * 4))
            for ps in self.parks:
                if pos < ps:
                    g = min(g, ps - pos)
            assert g >= 4 and g % 4 == 0
            a.e(f"s_add_u32 m0, s{S_WG[g]}, {(pos % RING) * 1024}")
            a.e(f"s_add_u32 s{S_T+15}, s{S_SEG[s]}, {rel * 1024}")
            self.open = [pos, g, 0]
        st, g, k = self.open
        srd = SRD_NX if st >= TOT else SRD_WS
        a.vm(f"buffer_load_dwordx4 v{V_TG[g]}, s[{srd}:{srd+3}], s{S_T+15} offen offset:{k*1024} {self.wflag} lds", ("dma", st))
        self.open[2] += 1
        if self.open[2] == g // 4:
            self.next = st + g
            self.open = None

    def steps(self, maxn=INF, limit=INF):
        n = 0
        while n < maxn and self.plan(limit):
            self.step(limit)
            n += 1
        while self.open and maxn == INF:
            self.step(limit)
        return n

    def park_ready(self, pk):
        return pk in self.parks and pk < self.gate and pk + 4 * self.parked.get(pk, 0) < self.parks[pk][0]

    def park(self, pk):
        a = self.a
        q = self.parked.get(pk, 0)
        pos = pk + 4 * q
        s, rel, left = self.seg(pos)
        rb = self.parks[pk][1] + 4 * q
        a.e(f"s_add_u32 s{S_T+14}, s{S_SEG[s]}, {rel * 1024}")
        a.vm(f"buffer_load_dwordx4 a[{rb}:{rb+3}], v{V_T16}, s[{SRD_WS}:{SRD_WS+3}], s{S_T+14} offen {self.wflag}", ("park", pos))
        self.parked[pk] = q + 1

    def any_step(self, pks=(), limit=INF):
        if self.plan(limit):
            self.step(limit)
            return True
        for pk in pks:
            if self.park_ready(pk):
                self.park(pk)
                return True
        return False

    def barrier(self, need):
        a = self.a
        while need > self.next and not (self.next % TOT == SCR and not self.open and need <= self.next + P2S - SCR):
            self.step()
            self.late = getattr(self, "late", 0) + 1
        a.wait_both(lambda t: isdma(t) and t[1] < need, lambda t: isfl(t) and t[1] < need)
        a.e("s_barrier")
        out = [t[1] for t in a.vm_tags() if isdma(t)] + [t[1] for t in flat_tags(a.lgq) if isfl(t)] + [self.next]
        self.pub = min(out)
        if self.pub % TOT == SCR:
            self.pub += P2S - SCR
        self.freed = max(self.freed, self.cons)

    def read(self, pos, reg):
        assert pos < self.pub, (pos, self.pub)
        addr = (pos % RING) * 1024
        base = (V_L16, V_L16B, V_L16C)[addr >> 16]
        self.a.ds(f"ds_read_b128 v[{reg}:{reg+3}], v{base} offset:{addr & 0xffff}", ("frag", pos))


class Seq:
    def __init__(self, items, force=False, maxper=99):
        self.items = list(items)
        self.force = force
        self.maxper = maxper

    def take(self, sc, g, kinds):
        n = 0
        while self.items and n < self.maxper:
            fn, slots, early, kind = self.items[0]
            if kind not in kinds or early > g:
                return
            if not self.force:
                if slots > sc.free and not (sc.fresh and slots > sc.budget):
                    return
                if kind == "vm" and not sc.vm_ok(g):
                    return
            fn()
            sc.use(slots, kind, g)
            self.items.pop(0)
            n += 1

    def done(self):
        return not self.items

    def flush(self):
        for it in self.items:
            it[0]()
        self.items = []


class Dag:
    def __init__(self, a, ops):
        self.a, self.ops = a, ops
        self.left = list(range(len(ops)))
        self.at = {}
        self.off = 0
        self.keep = False

    def emit(self, k):
        t = self.ops[k][0]
        t() if callable(t) else self.a.e(t)

    def take(self, sc, g, kinds):
        g += self.off
        for k in list(self.left)[:80]:
            text, deps, tr, early = self.ops[k]
            kind = "vm" if callable(text) else ("s" if text.startswith("s_") else "v")
            if early > g or kind not in kinds or any(d not in self.at or self.at[d] >= g for d in deps):
                continue
            slots = 3 if kind == "vm" else (2 if tr else 1)
            if slots > sc.free:
                continue
            self.emit(k)
            sc.use(slots, kind, g - self.off)
            self.at[k] = g
            self.left.remove(k)

    def done(self):
        return not self.left

    def flush(self):
        if self.keep:
            return
        g = 10 ** 6
        while self.left:
            g += 1
            n = 0
            for k in list(self.left):
                if n < 6 and all(d in self.at and self.at[d] < g for d in self.ops[k][1]):
                    self.emit(k)
                    self.at[k] = g
                    self.left.remove(k)
                    n += 1


class RingFill:
    def __init__(self, ring, early=0, limit=INF, park=None, park_early=0, maxn=INF, cheap=False):
        self.cheap = cheap
        self.ring, self.early, self.limit, self.park, self.park_early, self.maxn = ring, early, limit, park, park_early, maxn

    def take(self, sc, g, kinds):
        if "vm" not in kinds:
            return
        r = self.ring
        if g >= self.early and self.maxn > 0:
            p = r.plan(self.limit)
            if p and p[0] == "flush":
                if (p[1] <= sc.free or sc.fresh) and g >= sc.fl_t:
                    r.step(self.limit)
                    sc.use(p[1], "s", g)
                    sc.fl_t = g + sc.fl_per
            elif p and sc.vm_ok(g) and (p[1] <= sc.free or sc.fresh or self.cheap):
                r.step(self.limit)
                sc.use(0 if self.cheap else p[1], "vm", g)
                self.maxn -= 1
                return
        if self.park is not None and g >= self.park_early and r.park_ready(self.park) and sc.vm_ok(g) and (3 <= sc.free or sc.fresh or self.cheap):
            r.park(self.park)
            sc.use(0 if self.cheap else 3, "vm", g)

    def done(self):
        return True

    def flush(self):
        pass


class Sched:
    def __init__(self, streams, budget, period, fl_per=3):
        self.streams, self.budget, self.period = streams, budget, period
        self.vm_t = 0.0
        self.fl_t, self.fl_per = 0, fl_per

    def vm_ok(self, g):
        return self.vm_t <= g

    def use(self, slots, kind, g):
        self.free -= slots
        self.fresh = False
        if kind == "vm":
            per = self.period(g) if callable(self.period) else self.period
            self.vm_t = max(self.vm_t, g - 1.0) + per

    def gap(self, g, used):
        self.free = self.budget - used
        self.fresh = True
        for s in self.streams:
            s.take(self, g, ("vm", "s"))
        for s in self.streams:
            s.take(self, g, ("v", "s"))
            assert g < getattr(s, "deadline", INF) or s.done(), ("deadline", g)

    def finish(self):
        for s in self.streams:
            s.flush()


def run_pass(a, ring, mf, sc, bars, depth, group, hook=None, fifo=V_FIFO, stamps=None, ver=None):
    n = len(mf)
    starts = {}
    m = 0
    while m < n:
        g = group(m) if callable(group) else group
        starts[m] = min(m + g, n) - 1
        m += g
    tags_of = lambda m: {mf[k][1] for k in range(m, starts[m] + 1)}

    def rd(m):
        if m in bars:
            ring.barrier(bars[m])
        ring.read(mf[m][0], fifo + 4 * (m % depth))

    for m in range(min(depth - 1, n)):
        rd(m)
    if hook:
        hook()
    if ver:
        t0 = tags_of(0)
        a.wait_vm(lambda t: t in t0)
        ver.compare(ver.fresh(t0))
        ver.branch()
    todo = []
    for m in range(n):
        if m in starts:
            last = starts[m]
            tags = tags_of(m)
            if ver:
                assert not ver.fresh(tags) and not ver.pending
                tags = tags_of(last + 1) if last + 1 < n else set()
                todo = ver.fresh(tags)
            a.wait_both(lambda t: t in tags, ("frag", mf[last][0]))
            ring.cons = mf[last][0] + 1
        mf[m][2](fifo + 4 * (m % depth))
        used = 0
        if m + depth - 1 < n:
            used += 3 if (m + depth - 1) in bars else 1
            rd(m + depth - 1)
        if m + 1 in starts:
            used += 1
        if ver and ver.pending:
            ver.branch()
            used += 1
        if todo:
            used += ver.cost(todo)
        sc.gap(m, used)
        if todo:
            ver.compare(todo)
            todo = []
        if stamps and m in stamps:
            stamps[m]()
    sc.finish()


class Verifier:
    def __init__(self, a, cfg, rel_sgpr, const, both=lambda s: False):
        self.inc = {L.X: 1, L.O: 1 << 16, L.X1: 1 << 24}[const]
        self.a, self.cfg, self.rel, self.const, self.both = a, cfg, rel_sgpr, const, both
        self.done = set()
        self.pending = None

    def fresh(self, tags):
        return sorted(t[1] for t in tags if isinstance(t, tuple) and t[1] not in self.done)

    def regs(self, steps):
        return [4 * s + d for s in steps for d in ((0, 2) if self.both(s) else (0,))]

    def cost(self, steps):
        return 2 * len(self.regs(steps))

    def cmp_text(self, steps):
        r = self.regs(steps)
        t = [f"v_accvgpr_read_b32 v{V_CHK}, a{r[0]}"]
        for x in r[1:]:
            t += [f"v_accvgpr_read_b32 v23, a{x}", f"v_max_u32 v{V_CHK}, v23, v{V_CHK}"]
        t += [f"v_cmp_eq_u32 vcc, -1, v{V_CHK}"]
        return "\n".join(t)

    def compare(self, steps):
        self.a.e(self.cmp_text(steps))
        self.pending = steps
        self.done.update(steps)

    def branch(self):
        a = self.a
        lr, lb = a.label("Lre"), a.label("Lbk")
        a.e(f"s_cbranch_vccnz {lr}\n{lb}:")
        t = [f"{lr}:", f"s_mov_b32 s{S_RT+1}, 0", f"{lr}_l:"]
        if self.cfg.get("timing"):
            t += [f"s_add_u32 s87, s87, {self.inc}"]
        for s in self.pending:
            t += [f"s_add_u32 s{S_RT}, s{S_LOFF}, s{self.rel}", f"s_add_u32 s{S_RT}, s{S_RT}, {self.const + s * 1024}",
                  f"buffer_load_dwordx4 a[{4*s}:{4*s+3}], v{V_L16}, s[{SRD_WS}:{SRD_WS+3}], s{S_RT} offen sc1"]
        t += ["s_waitcnt vmcnt(0)", self.cmp_text(self.pending), f"s_add_u32 s{S_RT+1}, s{S_RT+1}, 1",
              f"s_cbranch_vccz {lb}", f"s_cmp_lt_u32 s{S_RT+1}, {RETRY}", f"s_cbranch_scc1 {lr}_l", f"s_branch {lb}"]
        self.cfg["_cold"].append("\n".join(t))
        self.pending = None


def vseq(fns, early, kind="v", slots=1):
    return [(f, slots, early, kind) for f in fns]


def aload(a, s, sbase_setup, reg=None, tag="A"):
    if s % 4 == 0:
        sbase_setup(s)
    r = 4 * s if reg is None else reg
    a.vm(f"buffer_load_dwordx4 a[{r}:{r+3}], v{V_L16}, s[{SRD_WS}:{SRD_WS+3}], s{S_A} offen offset:{(s%4)*1024} sc1", (tag, s))


def lines(a, text):
    return [(lambda t=t: a.e(t)) for t in text.strip().split("\n") if t.strip()]


def cnt_off(a, dst, kind, sidx, nextlayer=False):
    c = (kind * 64 + (L.CNT_PER_LAYER if nextlayer else 0)) * L.CNT_STRIDE
    a.e(f"s_lshl_b32 s{dst}, s{sidx}, 8\ns_add_u32 s{dst}, s{dst}, s{S_COFF}")
    if c:
        a.e(f"s_add_u32 s{dst}, s{dst}, {c}")


def signal(a, kind, sidx, nextlayer=False, inc=S_ONE):
    cnt_off(a, S_T + 13, kind, sidx, nextlayer)
    a.e(f"s_atomic_add s{inc}, s[12:13], s{S_T+13}")


def chaos(a, cfg, kind, sidx, nextlayer=False):
    if not cfg.get("chaos"):
        return
    signal(a, kind, sidx, nextlayer)
    lb = a.label("Lchaos")
    a.e(f"s_and_b32 s{S_RT}, s2, {cfg['chaos']}\ns_cbranch_scc0 {lb}\ns_sleep 100\n{lb}:")


def esignal(a, cfg, kind, sidx, nextlayer=False):
    if cfg.get("qwait", False):
        a.wait_vm(lambda t: t not in ("xst", "ost", "kvst"))
    if cfg.get("sdelay"):
        a.e(f"s_sleep {cfg['sdelay']}")
    if not cfg.get("chaos"):
        signal(a, kind, sidx, nextlayer)


def poll_issue(a, kind, sidx):
    cnt_off(a, S_T + 12, kind, sidx)
    a.e(f"s_mov_b32 s{S_POLL}, 0")
    a.e(f"s_atomic_add s{S_POLL}, s[12:13], s{S_T+12} glc")


def poll_check(a, shift=0, target=16):
    lp, ok = a.label("Lpoll"), a.label("Lok")
    a.e(f"s_mov_b32 s{S_T+11}, 0")
    a.e(f"{lp}:")
    a.e("s_waitcnt lgkmcnt(0)")
    a.lgq = []
    a.e(f"s_bfe_u32 s{S_POLL}, s{S_POLL}, {(8 << 16) | shift}")
    a.e(f"s_cmp_ge_u32 s{S_POLL}, {target}\ns_cbranch_scc1 {ok}")
    a.e(f"s_mov_b32 s{S_POLL}, 0")
    a.e(f"s_atomic_add s{S_POLL}, s[12:13], s{S_T+12} glc")
    a.e(f"s_add_u32 s{S_T+11}, s{S_T+11}, 1")
    a.e(f"s_cmp_lt_u32 s{S_T+11}, {SPIN}\ns_cbranch_scc1 {lp}")
    a.e("s_waitcnt lgkmcnt(0)")
    a.e(f"{ok}:")


def poll2_a(a, kind, sidx):
    cnt_off(a, S_PADDR, kind, sidx)
    a.e(f"s_mov_b32 s{S_PA}, 0\ns_mov_b32 s{S_PB}, 0")
    a.e(f"s_atomic_umax s{S_PA}, s[12:13], s{S_PADDR} glc")


def poll2_check(a, cfg, target=16):
    lp, ok = a.label("Lpoll"), a.label("Lok")
    T_ = S_T + 11
    n_lds = len(a.lgq)
    a.e(f"s_atomic_umax s{S_PB}, s[12:13], s{S_PADDR} glc")
    a.e(f"s_mov_b32 s{T_}, 0")
    a.e(f"{lp}:")
    for r in (S_PA, S_PB):
        a.e("s_waitcnt lgkmcnt(1)")
        a.e(f"s_max_u32 s{S_RT}, s{S_PA}, s{S_PB}\ns_and_b32 s{S_RT}, s{S_RT}, 0xff")
        a.e(f"s_cmp_ge_u32 s{S_RT}, {target}\ns_cbranch_scc1 {ok}")
        a.e(f"s_atomic_umax s{r}, s[12:13], s{S_PADDR} glc")
    a.e(f"s_add_u32 s{T_}, s{T_}, 1\ns_cmp_lt_u32 s{T_}, {SPIN}\ns_cbranch_scc1 {lp}")
    a.e(f"{ok}:")
    a.lgq = a.lgq[-1:]


def gap_issue(a, cfg, kind, sidx):
    (poll2_a if cfg.get("dual", True) else poll_issue)(a, kind, sidx)


def gap_check(a, cfg):
    if cfg.get("dual", True):
        if cfg.get("dsleep"):
            a.e(f"s_sleep {cfg['dsleep']}")
        poll2_check(a, cfg)
    else:
        poll_check(a)


def poll(a, kind, sidx, shift=0):
    poll_issue(a, kind, sidx)
    poll_check(a, shift)


def a_setup(a, rel_sgpr, const):
    def f(s):
        if s == 0:
            a.e(f"s_add_u32 s{S_A}, s{S_LOFF}, s{rel_sgpr}\ns_add_u32 s{S_A}, s{S_A}, {const}")
        else:
            a.e(f"s_add_u32 s{S_A}, s{S_A}, 4096")
    return f


def stats_load(a, const):
    a.e(f"s_add_u32 s{S_T}, s{S_LOFF}, s{S_STA}\ns_add_u32 s{S_T}, s{S_T}, {const}")
    for n in range(4):
        a.vm(f"buffer_load_dwordx2 v[{V_ST+2*n}:{V_ST+2*n+1}], v{V_STL}, s[{SRD_WS}:{SRD_WS+3}], s{S_T} offen offset:{n*256} sc1", "st")


def stats_math(a, t):
    S = V_ST
    f = [lambda: a.wait_vm("st")]
    f += lines(a, f"""
v_add_f32 v{t}, v{S}, v{S+2}
v_add_f32 v{t+1}, v{S+4}, v{S+6}
v_add_f32 v{t}, v{t}, v{t+1}
v_mov_b32 v{t+1}, v{t}
v_permlane32_swap_b32 v{t}, v{t+1}
v_add_f32 v{t}, v{t}, v{t+1}
v_mul_f32 v{t}, {f32bits(-0.125)}, v{t}
""")
    for n in range(4):
        f += lines(a, f"""
v_add_f32 v{t+1}, v{S+2*n}, v{t}
v_mul_f32 v{t+1}, v{t+1}, v{t+1}
v_fmac_f32 v{S+2*n+1}, {f32bits(80.0)}, v{t+1}
""")
    f += lines(a, f"""
v_add_f32 v{t+1}, v{S+1}, v{S+3}
v_add_f32 v{t+2}, v{S+5}, v{S+7}
v_add_f32 v{t+1}, v{t+1}, v{t+2}
v_mov_b32 v{t+2}, v{t+1}
v_permlane32_swap_b32 v{t+1}, v{t+2}
v_add_f32 v{t+1}, v{t+1}, v{t+2}
v_mov_b32 v{t+2}, {f32bits(1e-5)}
v_fmac_f32 v{t+2}, {f32bits(1.0/640)}, v{t+1}
v_rsq_f32 v{S}, v{t+2}
v_cvt_pk_bf16_f32 v{t+1}, v{t}, v{t}
v_and_b32 v{t+1}, 0xffff0000, v{t+1}
v_sub_f32 v{t+1}, v{t}, v{t+1}
v_cvt_pk_bf16_f32 v{V_MF}, v{t}, v{t+1}
v_mov_b32 v{V_MF+1}, v{V_MF}
v_mov_b32 v{V_MF+2}, v{V_MF}
v_mov_b32 v{V_MF+3}, v{V_MF}
""")
    return f


def stamp(a, name, cfg, level=1, real=False):
    if not cfg.get("timing") or level > cfg.get("level", 1):
        return
    if (name in ("start", "end") or cfg.get("allrt")) and not real:
        stamp(a, name, cfg, level, True)
        if cfg.get("allrt") and name not in ("start", "end"):
            return
    names = cfg["_stamps"]
    key = ("rt_" if real else "") + name
    if key not in names:
        names.append(key)
    n = names.index(key)
    pend = cfg["_pend"]
    k = cfg["_k"][0]
    cfg["_k"][0] += 1
    pair = 90 + 2 * (k % 3)
    if len(pend) == 2:
        p, idx = pend.pop(0)
        a.e(f"v_writelane_b32 v31, s{p}, {idx}")
    a.e(f"{'s_memrealtime' if real else 's_memtime'} s[{pair}:{pair+1}]")
    pend.append((pair, n))
    if name == "end" and not real:
        stamp_flush(a, cfg, True)


def stamp_flush(a, cfg, store=False):
    if not cfg.get("timing"):
        return
    a.e("s_waitcnt lgkmcnt(0)")
    a.lgq = []
    while cfg["_pend"]:
        p, idx = cfg["_pend"].pop(0)
        a.e(f"v_writelane_b32 v31, s{p}, {idx}")
    cfg["_k"][0] = 0
    if store:
        a.e("v_writelane_b32 v31, s87, 63\ns_mov_b32 s87, 0")
        a.e(f"s_add_u32 s{S_TS+1}, s{S_TS+2}, {256 * cfg['_slot']}")
        a.vm(f"buffer_store_dword v31, v30, s[72:75], s{S_TS+1} offen", "stamp")
        a.e("s_nop 1\nv_mov_b32 v31, 0")


def phi_tile(a, acc, dst, R, RL, t, mixed):
    f = []
    for p in range(8):
        r = 2 * p
        u, e = t + 4 * (p & 1), t + 4 * (p & 1) + 2
        if mixed:
            f += lines(a, f"""
v_pk_fma_f32 v[{e}:{e+1}], v[{acc+r}:{acc+r+1}], v[{RL+r}:{RL+r+1}], v[{V_C2}:{V_C2+1}] op_sel_hi:[1,1,0]
v_pk_fma_f32 v[{u}:{u+1}], v[{acc+r}:{acc+r+1}], v[{R+r}:{R+r+1}], v[{V_C3}:{V_C3+1}] op_sel_hi:[1,1,0]
v_exp_f32 v{e}, v{e} clamp
v_exp_f32 v{e+1}, v{e+1} clamp
v_max_f32 v{u}, v{V_LO}, v{u}
v_max_f32 v{u+1}, v{V_LO}, v{u+1}
""")
        else:
            f += lines(a, f"""
v_pk_mul_f32 v[{e}:{e+1}], v[{acc+r}:{acc+r+1}], v[{RL+r}:{RL+r+1}]
v_pk_fma_f32 v[{u}:{u+1}], v[{acc+r}:{acc+r+1}], v[{R+r}:{R+r+1}], s[{S_EPS2}:{S_EPS2+1}]
v_exp_f32 v{e}, v{e} clamp
v_exp_f32 v{e+1}, v{e+1} clamp
v_max_f32 v{u}, s{S_EPS2}, v{u}
v_max_f32 v{u+1}, s{S_EPS2}, v{u+1}
""")
        f += lines(a, f"""
v_pk_add_f32 v[{u}:{u+1}], v[{u}:{u+1}], v[{e}:{e+1}]
v_cvt_pk_bf16_f32 v{dst+p}, v{u}, v{u+1}
""")
    return f


def set_exec(a, lo, hi):
    a.e(f"s_mov_b32 exec_lo, {lo:#x}\ns_mov_b32 exec_hi, {hi:#x}")


def lanemask(fn):
    m = 0
    for l in range(64):
        if fn(l):
            m |= 1 << l
    return m & 0xffffffff, m >> 32


T32 = [V_ACC + 16 * t for t in range(6)]
P1_R, P1_RL = V_TMP, V_TMP + 16
P1_PT = [144, 152, 240]
P1_TT = 248
PK3 = P3S + 156
PK3A = P3S + 52
G32 = lambda m: 3 if m < 60 else (4 if m < 100 else (2 if m == 100 else 3))


def mk32(a, pos, t, s, wfirst):
    def f(b):
        x = f"a[{4*s}:{4*s+3}]" if s < 40 else f"v[{V_MF}:{V_MF+3}]"
        c = "0" if s == 0 else f"v[{T32[t]}:{T32[t]+15}]"
        w = f"v[{b}:{b+3}]"
        p, q = (w, x) if wfirst else (x, w)
        a.e(f"v_mfma_f32_32x32x16_bf16 v[{T32[t]}:{T32[t]+15}], {p}, {q}, {c}")
    return (pos, ("A", s) if s < 40 else "none", f)


def panel(a, base, tiles, wfirst):
    return sorted((mk32(a, base + L.fragpos(t, s), t, s, wfirst) for t in tiles for s in range(41)), key=lambda x: x[0])


def poison_items(a, what, early, step=3):
    W = f"s[{SRD_WS}:{SRD_WS+3}]"
    P4, P2 = f"v[{V_POI}:{V_POI+3}]", f"v[{V_POI}:{V_POI+1}]"
    T_ = S_T + 10
    tag = ("poison", what)
    if what == "kv":
        def f():
            a.e(f"s_add_u32 s{T_}, s{S_LOFF}, s{S_KVS}\ns_mov_b64 exec, s[{S_M210}:{S_M210+1}]")
            a.vm(f"buffer_store_dwordx2 {P2}, v{V_T8}, {W}, s{T_} offen sc1", tag)
            a.e("s_mov_b64 exec, -1")
        fs = [f]
    elif what == "o":
        def f0():
            a.e(f"s_add_u32 s{T_}, s{S_LOFF}, s{S_OS}")
            a.vm(f"buffer_store_dwordx4 {P4}, v{V_OST}, {W}, s{T_} offen sc1", tag)
        fs = [f0, lambda: a.vm(f"buffer_store_dwordx4 {P4}, v{V_OST}, {W}, s{T_} offen offset:512 sc1", tag),
              lambda: a.vm(f"buffer_store_dwordx4 {P4}, v{V_OST}, {W}, s{T_} offen offset:768 sc1", tag)]
    else:
        const = L.X1 if what == "x1" else L.LSTR + L.X
        srd = W if what == "x1" else f"s[{SRD_NX}:{SRD_NX+3}]"

        def f0():
            a.e(f"s_add_u32 s{T_}, s{S_LOFF}, s{S_XS}\ns_add_u32 s{T_}, s{T_}, {const}")
            a.vm(f"buffer_store_dwordx4 {P4}, v{V_XS1}, {srd}, s{T_} offen sc1", tag)
        fs = [f0, lambda: a.vm(f"buffer_store_dwordx4 {P4}, v{V_XS1}, {srd}, s{T_} offen offset:2048 sc1", tag),
              lambda: a.vm(f"buffer_store_dwordx2 {P2}, v{V_XS2}, {srd}, s{T_} offen sc1", tag)]
    return [(f_, 4, early + step * k, "vm") for k, f_ in enumerate(fs)]


def stats_seq(a, cfg, kind, const, tail, polled=True):
    it = []
    p0 = cfg.get("stp", 20)
    if polled and cfg.get("early", True):
        it += [(lambda: (a.wait_vm(lambda t: t in ("sst", "old")), a.e(f"s_atomic_add s{S_C256}, s[12:13], s{S_T+9}")), 2, 0, "s")]
    if polled:
        it += [(lambda: poll_issue(a, kind, S_TB32), 5, p0, "s"),
               (lambda: poll_check(a, 8), 6, p0 + 24, "s"),
               (lambda: stats_load(a, const), 10, p0 + 25, "s")]
    m = Seq(vseq(stats_math(a, P1_TT) + tail, cfg.get("stm", 74)), maxper=3)
    m.deadline = 97
    return [Seq(it, force=True, maxper=1), m]


def phi_ops(acc, dst, R, RL, tmp, early):
    ops = []
    last = {}
    for r in range(16):
        e = tmp + r % 8
        x = acc + r
        b = len(ops)
        ops.append((f"v_mul_f32 v{e}, v{x}, v{RL+r}", [last[e]] if e in last else [], False, early))
        ops.append((f"v_exp_f32 v{e}, v{e} clamp", [b], True, early))
        ops.append((f"v_fma_f32 v{x}, v{x}, v{R+r}, s{S_EPS2}", [b], False, early))
        ops.append((f"v_max_f32 v{x}, s{S_EPS2}, v{x}", [b + 2], False, early))
        ops.append((f"v_add_f32 v{x}, v{x}, v{e}", [b + 1, b + 3], False, early))
        last[e] = b + 4
        if r & 1:
            ops.append((f"v_cvt_pk_bf16_f32 v{dst + (r >> 1)}, v{x-1}, v{x}", [b - 1, b + 4], False, early))
    return ops


def phase1(a, ring, cfg, first):
    AW = cfg.get("aw", 10)
    T, R, RL, PT, tt = T32, P1_R, P1_RL, P1_PT, P1_TT
    park = True
    early = cfg.get("early", True)
    ver = None
    pz = Seq(poison_items(a, "kv", cfg.get("pz1", 76)) + poison_items(a, "o", cfg.get("pz1", 76) + 4) if early else [], force=True, maxper=1)
    setup = a_setup(a, S_XA, L.X)
    mf = panel(a, P1S, (0, 1, 2), False)
    tail = lines(a, f"v_mul_f32 v{tt}, {f32bits(LOG2E)}, v{V_ST}\nv_cndmask_b32 v{tt}, v{tt}, v{V_ST}, s[{S_LO32}:{S_LO32+1}]")
    tail += [lambda: a.ds(f"ds_write_b32 v{V_RSW}, v{tt}", "rs")]
    for i in range(4):
        tail += [lambda i=i: a.ds(f"ds_read_b128 v[{R+4*i}:{R+4*i+3}], v{V_RSR} offset:{32*i}", "rs")]
        tail += [lambda i=i: a.ds(f"ds_read_b128 v[{RL+4*i}:{RL+4*i+3}], v{V_RSR} offset:{128+32*i}", "rs")]
    z = vseq(lines(a, f"v_mov_b32 v{tt+4}, 0\nv_mov_b32 v{tt+5}, 0\nv_mov_b32 v{tt+6}, 0\nv_mov_b32 v{tt+7}, 0"), 50)
    z += [(lambda: a.ds(f"ds_write_b128 v{V_T16}, v[{tt+4}:{tt+7}] offset:{GB_OFF}", "z"), 5, 66, "v"),
          (lambda: a.ds(f"ds_write_b128 v{V_T16}, v[{tt+4}:{tt+7}] offset:{GB_OFF+1024}", "z"), 5, 68, "v")]
    zs = Seq(z, maxper=3, force=True)
    d0 = Dag(a, [(lambda: a.wait_ds("rs"), [], False, 101)] + [(t_, [0] + [d + 1 for d in dp], tr, e) for t_, dp, tr, e in phi_ops(T[0], PT[0], R, RL, 112, 102)])
    if first:
        LA = cfg.get("la0", 3)
        ring.maxg = 12
        it = []
        done_a = cfg["_a0"]
        for blk in range(LA, 11):
            e = 12 * (blk - LA)
            need = [s for s in range(done_a, 40) if L.fragpos(0, s) < 12 * blk + 12]
            done_a += len(need)
            ops = [((lambda b=blk: ring.step(min(12 * b + 12, 124))), 4) for k in range(3 if blk < 10 else 1)]
            ops += [((lambda s=s: aload(a, s, setup)), 2) for s in need]
            it += [(f_, sl, e + int(k * 12 / len(ops)), "vm") for k, (f_, sl) in enumerate(ops)]
        pp = []
        if cfg.get("fuse", True):
            def chk(target, gate):
                def f():
                    poll_check(a, 0, target)
                    ring.gate = gate
                return f
            g0 = cfg.get("pkpoll", 30)
            for n_, (kind, idx, target, gate) in enumerate(((L.C_PWO, S_CW, 20, P3S), (L.C_PW13, S_KVC, 24, P4S), (L.C_PW2, S_CW, 48, INF))):
                pp += [((lambda kind=kind, idx=idx: poll_issue(a, kind, idx)), 5, g0 + 22 * n_, "s"), (chk(target, gate), 6, g0 + 22 * n_ + 20, "s")]
        sc = Sched([Seq(it, force=True, maxper=2), Seq(pp, force=True, maxper=1), pz, d0, RingFill(ring, 12 * (11 - LA), 164), zs] +
                   stats_seq(a, cfg, None, L.ST, tail, polled=False), 6, 2.0)
        bars = {12 * k: min(12 * k + 12, 123) for k in range(11)}
        hook = None
    else:
        ap = cfg.get("aper", 2.3)
        al = Seq([((lambda s=s: aload(a, s, setup)), 2, int(ap * (s - AW)), "vm") for s in range(AW, 40)], force=True, maxper=1)
        if early:
            ver = Verifier(a, cfg, S_XA, L.X, lambda s_: s_ % 5 == 4)
        sc = Sched([al, pz, d0] + stats_seq(a, cfg, L.C_X, L.ST, tail) + [RingFill(ring, 0, cfg.get("lim1a", 240), PK3 if park else None, 60, cheap=True), zs], 6, cfg.get("per1", 2.3))
        bars = {0: 48, 48: 72, 72: 96, 96: 123}

        def hook():
            gap_check(a, cfg)
            cfg["_slot"] = 0
            stamp(a, "end", cfg, 0)
            for s in range(AW):
                aload(a, s, setup)
    run_pass(a, ring, mf, sc, bars, cfg.get("d32", 9), G32, hook, ver=ver)
    ring.maxg = 16
    assert ring.freed >= P2S - RING, ring.freed
    cfg["_info"].append(f"P1a({first}): ring.next {ring.next} parked {ring.parked} late {getattr(ring, 'late', 0)}")
    stamp(a, "P1a done", cfg)
    if first:
        P = 128
        a.wait_vm("res")
        for p in range(10):
            a.e(f"v_lshlrev_b32 v{V_RES+2*p}, 16, v{P+p}\nv_and_b32 v{V_RES+2*p+1}, 0xffff0000, v{P+p}")
    KVA = [80, 64, 96, 128]
    pairs = [(0, 2), (0, 1), (1, 2), (1, 1)]

    def kvm(b, u):
        x, y = pairs[b]
        c = "0" if u == 0 else f"v[{KVA[b]}:{KVA[b]+15}]"
        a.e(f"v_mfma_f32_32x32x16_bf16 v[{KVA[b]}:{KVA[b]+15}], v[{PT[x]+4*u}:{PT[x]+4*u+3}], v[{PT[y]+4*u}:{PT[y]+4*u+3}], {c}")
    f = phi_tile(a, T[1], PT[1], R, RL, tt, True)
    for k, g in enumerate(f):
        g()
        if k % cfg.get("pk_every", 14) == 0:
            ring.any_step((PK3,))
    stamp(a, "phi done", cfg, 3)
    for n, (b, u) in enumerate(((1, 0), (1, 1), (3, 0), (3, 1))):
        kvm(b, u)
        if n & 1 and cfg.get("pk_kv", 1):
            ring.any_step((PK3,))
        for p in (2 * n, 2 * n + 1):
            a.e(f"v_mul_f32 v{T[2]+2*p}, v{T[2]+2*p}, v{R+2*p}\nv_mul_f32 v{T[2]+2*p+1}, v{T[2]+2*p+1}, v{R+2*p+1}")
        for p in (2 * n, 2 * n + 1):
            a.e(f"v_cvt_pk_bf16_f32 v{PT[2]+p}, v{T[2]+2*p}, v{T[2]+2*p+1}")
    rho = lambda l, i: 8 * i + 4 * (l >> 5)
    for i, (b, u) in enumerate(((0, 0), (0, 1), (2, 0), (2, 1))):
        if i:
            a.e("s_mov_b64 exec, -1")
        kvm(b, u)
        if cfg.get("pk_kv", 1):
            ring.any_step((PK3,))
        set_exec(a, *lanemask(lambda l: (l & 31) == 24 or (8 <= (l & 31) < 16 and rho(l, i) >= 20)))
        a.ds(f"ds_write_b128 v{V_G1}, v[{KVA[1]+4*i}:{KVA[1]+4*i+3}] offset:{32*i}", "g")
    set_exec(a, *lanemask(lambda l: 8 <= (l & 31) < 16 or (l & 31) == 24))
    a.ds(f"ds_write_b128 v{V_G1}, v[{KVA[3]}:{KVA[3]+3}] offset:128", "g")
    for i in range(4):
        set_exec(a, *lanemask(lambda l: ((l & 31) < 20) == (rho(l, i) < 20)))
        a.ds(f"ds_write_b128 v{V_G0}, v[{KVA[0]+4*i}:{KVA[0]+4*i+3}] offset:{32*i}", "g")
    set_exec(a, *lanemask(lambda l: (l & 31) >= 20))
    a.ds(f"ds_write_b128 v{V_G0}, v[{KVA[2]}:{KVA[2]+3}] offset:128", "g")
    a.e("s_mov_b64 exec, -1")
    a.wait_ds_all()
    stamp(a, "G written", cfg, 3)
    ring.barrier(P1S + 164)
    for w in range(4):
        a.ds(f"ds_read_b128 v[{64+4*w}:{67+4*w}], v{V_T16} offset:{GC_OFF + w*GC_STR}", "g")
    a.e(f"s_add_u32 s{S_T}, s{S_LOFF}, s{S_KVS}")

    def kvstore():
        a.wait_ds("g")
        a.e("v_pk_add_f32 v[64:65], v[64:65], v[68:69]\nv_pk_add_f32 v[66:67], v[66:67], v[70:71]")
        a.e("v_pk_add_f32 v[72:73], v[72:73], v[76:77]\nv_pk_add_f32 v[74:75], v[74:75], v[78:79]")
        a.e("v_pk_add_f32 v[64:65], v[64:65], v[72:73]\nv_pk_add_f32 v[66:67], v[66:67], v[74:75]")
        a.e("v_cvt_pk_bf16_f32 v68, v64, v65\nv_cvt_pk_bf16_f32 v69, v66, v67")
        a.wait_vm(("poison", "kv"))
        chaos(a, cfg, L.C_KV, S_KVC)
        a.e(f"s_mov_b64 exec, s[{S_M210}:{S_M210+1}]")
        a.vm(f"buffer_store_dwordx2 v[68:69], v{V_T8}, s[{SRD_WS}:{SRD_WS+3}], s{S_T} offen sc1", "kvst")
        if early:
            esignal(a, cfg, L.C_KV, S_KVC)
        set_exec(a, 0x00FF0000, 0x00FF0000)
        for i in range(4):
            a.ds(f"ds_write_b64 v{V_QW1}, v[{PT[1]+2*i}:{PT[1]+2*i+1}] offset:{16*i}", "q")
        a.e("s_mov_b64 exec, -1")
        stamp(a, "kv stored", cfg)
    mf = panel(a, P1S, (3,), False)
    if early:
        sg = Seq(poison_items(a, "x1", 2) + [(lambda: poll_issue(a, L.C_KV, S_KVC), 5, cfg.get("kvp", 18), "s")], force=True, maxper=1)
    else:
        sg = Seq([(lambda: (a.wait_vm("kvst"), signal(a, L.C_KV, S_KVC)), 5, cfg.get("kvsig", 22), "s")], force=True)
    sc = Sched([sg, RingFill(ring, 0, INF, PK3 if park else None, 0, maxn=cfg.get("n1b", 17))], 6, cfg.get("per1b", 2.4))
    run_pass(a, ring, mf, sc, {cfg.get("b1b", 24): 0}, cfg.get("d32", 9), 3, kvstore)

    def kvload():
        a.e(f"s_add_u32 s{S_T}, s{S_LOFF}, s{S_KVR}")
        a.e(f"s_mov_b64 exec, s[{S_MKV}:{S_MKV+1}]")
        for i in range(8):
            a.vm(f"buffer_load_dwordx4 v[{72+4*i}:{75+4*i}], v{V_KVL}, s[{SRD_WS}:{SRD_WS+3}], s{S_T} offen sc1", ("kv", i))
            if i < 7:
                a.e(f"s_add_u32 s{S_T}, s{S_T}, {2 * L.KV_STR}")
        a.e("s_mov_b64 exec, -1")
    if early:
        stamp(a, "P1b done", cfg)
        poll_check(a)
        stamp(a, "kv polled", cfg)
        kvload()
    f = phi_tile(a, T[3], PT[0], R, RL, tt, False)
    for k, g in enumerate(f):
        g()
        if not early and k == cfg.get("kvpoll", 8):
            poll_issue(a, L.C_KV, S_KVC)
        if k % cfg.get("pk_t3", 16) == 12:
            ring.any_step((PK3A, PK3), P2S + 100)
    for i in range(4):
        a.ds(f"ds_write_b64 v{V_QW3}, v[{PT[0]+2*i}:{PT[0]+2*i+1}] offset:{16*i}", "q")
    if not early:
        stamp(a, "P1b done", cfg)
        poll_check(a)
        stamp(a, "kv polled", cfg)
        kvload()
    PQ = 144
    for s in range(2):
        for u in range(2):
            a.ds(f"ds_read_b64_tr_b16 v[{PQ+4*s+2*u}:{PQ+4*s+2*u+1}], v{V_QR} offset:{(16*s+4*u)*72}", "pq")
    for u in range(2):
        a.ds(f"ds_read_b64_tr_b16 v[{PQ+8+2*u}:{PQ+8+2*u+1}], v{V_QR2} offset:{4*u*72}", "pq")
    for k in range(cfg.get("dmakv", 2)):
        ring.any_step((PK3A, PK3), P2S + 100)
    stamp(a, "kv issued", cfg, 3)
    lsum, lre = a.label("Lkvsum"), a.label("Lkvre")
    a.e(f"s_mov_b32 s{S_RT+1}, 0\n{lsum}:")
    for i in range(8):
        if i % 2 == 0:
            a.wait_vm(("kv", i + 1))
            if i in (0, 6):
                stamp(a, f"kv got{i}", cfg, 3)
        for c in range(4):
            src = 72 + 4 * i + c
            if i == 0:
                a.e(f"v_lshlrev_b32 v{64+2*c}, 16, v{src}\nv_and_b32 v{65+2*c}, 0xffff0000, v{src}")
            else:
                t_ = 104 + 2 * c
                a.e(f"v_lshlrev_b32 v{t_}, 16, v{src}\nv_and_b32 v{t_+1}, 0xffff0000, v{src}")
        if i:
            for c in range(4):
                a.e(f"v_pk_add_f32 v[{64+2*c}:{65+2*c}], v[{64+2*c}:{65+2*c}], v[{104+2*c}:{105+2*c}]")
    if early:
        a.e("v_max_u32 v112, v72, v74")
        for i in range(1, 8):
            a.e(f"v_max3_u32 v112, v{72+4*i}, v{74+4*i}, v112")
        a.e(f"v_cmp_eq_u32 vcc, -1, v112\ns_and_b64 vcc, vcc, s[{S_MKV}:{S_MKV+1}]\ns_cbranch_scc1 {lre}\n{lre}_b:")
        b = Asm()
        b.e(f"{lre}:\n" + ("s_add_u32 s87, s87, 256\n" if cfg.get("timing") else "") + f"s_add_u32 s{S_RT+1}, s{S_RT+1}, 1\ns_cmp_ge_u32 s{S_RT+1}, {RETRY}\ns_cbranch_scc1 {lre}_b")
        keep, a.out = a.out, b.out
        svq = list(a.vmq)
        kvload()
        a.e(f"s_waitcnt vmcnt(0)\ns_branch {lsum}")
        a.vmq = svq
        cfg["_cold"].append("\n".join(x.text for x in a.out))
        a.out = keep
    for k in range(cfg.get("dmasum", 6)):
        ring.any_step((PK3A, PK3), P2S + 100)
    for k in range(4):
        a.e(f"v_permlane32_swap_b32 v{64+k}, v{68+k}")
    a.e("v_pk_add_f32 v[64:65], v[64:65], v[68:69]\nv_pk_add_f32 v[66:67], v[66:67], v[70:71]")
    a.e("v_cvt_pk_bf16_f32 v68, v64, v65\nv_cvt_pk_bf16_f32 v69, v66, v67")
    a.e(f"s_mov_b64 exec, s[{S_MKV}:{S_MKV+1}]")
    a.ds(f"ds_write_b64 v{V_GBW}, v[68:69]", "gb")
    a.e("s_mov_b64 exec, -1")
    a.wait_ds_all()
    stamp(a, "kv summed", cfg)
    stamp_flush(a, cfg)
    ring.barrier(0)
    GX, GY, DX, DY = 208, 220, 64, 80
    for s in range(3):
        a.ds(f"ds_read_b128 v[{GY+4*s}:{GY+4*s+3}], v{V_GBY} offset:{32*s}", ("gy", s))
    for s in range(3):
        a.ds(f"ds_read_b128 v[{GX+4*s}:{GX+4*s+3}], v{V_GBX} offset:{32*s}", ("gx", s))
    for s in range(3):
        a.wait_ds(("gy", s))
        c = "0" if s == 0 else f"v[{DY}:{DY+15}]"
        a.e(f"v_mfma_f32_32x32x16_bf16 v[{DY}:{DY+15}], v[{GY+4*s}:{GY+4*s+3}], v[{PQ+4*s}:{PQ+4*s+3}], {c}")
    for s in range(3):
        a.wait_ds(("gx", s))
        c = "0" if s == 0 else f"v[{DX}:{DX+15}]"
        a.e(f"v_mfma_f32_32x32x16_bf16 v[{DX}:{DX+15}], v[{GX+4*s}:{GX+4*s+3}], v[{PQ+4*s}:{PQ+4*s+3}], {c}")
    a.e(f"s_add_u32 s{S_T}, s{S_LOFF}, s{S_OS}")
    r0, r1 = 232, 234
    a.e(f"v_add_f32 v{r0}, s{S_EPS2}, v{DY+8}\nv_add_f32 v{r1}, s{S_EPS2}, v{DY+9}")
    a.e(f"v_rcp_f32 v{r0}, v{r0}\nv_rcp_f32 v{r1}, v{r1}")
    OP = 236
    a.wait_vm(("poison", "o"))
    chaos(a, cfg, L.C_O, S_TB32)
    for (src, rr, dst, off) in ((DY, (r0, r1), OP + 8, 512), (DX, (r0, r0), OP, 0), (DX + 8, (r1, r1), OP + 4, 768)):
        for p in range(4):
            r = rr[p >> 1]
            a.e(f"v_pk_mul_f32 v[{src+2*p}:{src+2*p+1}], v[{src+2*p}:{src+2*p+1}], v[{r}:{r+1}] op_sel_hi:[1,0]")
        for p in range(4):
            a.e(f"v_cvt_pk_bf16_f32 v{dst+p}, v{src+2*p}, v{src+2*p+1}")
        if off == 512:
            a.e("s_mov_b32 exec_hi, 0")
        a.vm(f"buffer_store_dwordx4 v[{dst}:{dst+3}], v{V_OST}, s[{SRD_WS}:{SRD_WS+3}], s{S_T} offen offset:{off} sc1", "ost")
        if off == 512:
            a.e("s_mov_b64 exec, -1")
    stamp(a, "o stored", cfg)
    if not early:
        ring.steps(cfg.get("dmao", 8))
        a.wait_vm("ost")
    esignal(a, cfg, L.C_O, S_TB32)
    stamp(a, "o sig", cfg, 3)
    n = ring.steps(limit=P2S + 100)
    n1, n2 = cfg.get("eo0" if first else "eo", (2, 4))
    for k in range(n1):
        ring.park(PK3A) if ring.park_ready(PK3A) else ring.any_step((PK3,))
    gap_issue(a, cfg, L.C_O, S_TB32P)
    for k in range(n2):
        ring.park(PK3A) if ring.park_ready(PK3A) else ring.any_step((PK3,))
    cfg["_info"].append(f"P1({first}) end: ring.next {ring.next} late parks {n}")
    ring.cons = P2S
    a.wait_vm(lambda t: isdma(t) and t[1] < P2S + 100)
    stamp(a, "o signalled", cfg, 4)


def next_layer(a):
    a.e(f"s_mov_b32 s{S_LAY}, 1\ns_mov_b32 s{S_LOFF}, {L.LBASE + L.LSTR}\ns_mov_b32 s{S_COFF}, {L.CNT_PER_LAYER * L.CNT_STRIDE}")


def out_epilogue(a, ring, cfg, xconst, stconst, kind, nextlayer, final_branch):
    P = V_TMP
    a.e(f"s_add_u32 s{S_T}, s{S_LOFF}, s{S_XS}\ns_add_u32 s{S_T}, s{S_T}, {xconst}")
    for p in range(10):
        a.e(f"v_cvt_pk_bf16_f32 v{P+p}, v{V_RES+2*p}, v{V_RES+2*p+1}")
    if final_branch:
        cfg["_final"] = (list(cfg["_pend"]), cfg["_k"][0])
        a.e(f"s_cmp_eq_u32 s{S_LAY}, 1\ns_cbranch_scc1 L_final")
    early = cfg.get("early", True)
    a.wait_vm(("poison", "x2" if nextlayer else "x1"))
    chaos(a, cfg, kind, S_TB32P, nextlayer)
    a.vm(f"buffer_store_dwordx4 v[{P}:{P+3}], v{V_XS1}, s[{SRD_WS}:{SRD_WS+3}], s{S_T} offen sc1", "xst")
    a.vm(f"buffer_store_dwordx4 v[{P+4}:{P+7}], v{V_XS1}, s[{SRD_WS}:{SRD_WS+3}], s{S_T} offen offset:2048 sc1", "xst")
    a.vm(f"buffer_store_dwordx2 v[{P+8}:{P+9}], v{V_XS2}, s[{SRD_WS}:{SRD_WS+3}], s{S_T} offen sc1", "xst")
    if early:
        esignal(a, cfg, kind, S_TB32P, nextlayer)
        if cfg.get("ebar", True):
            ring.barrier(0)
    f = []
    for p in range(10):
        f += lines(a, f"v_lshlrev_b32 v{V_RES+2*p}, 16, v{P+p}\nv_and_b32 v{V_RES+2*p+1}, 0xffff0000, v{P+p}")
    t = V_TMP + 16
    f += lines(a, f"v_pk_add_f32 v[{t}:{t+1}], v[{V_RES}:{V_RES+1}], v[{V_RES+2}:{V_RES+3}]")
    f += lines(a, f"v_pk_add_f32 v[{t+2}:{t+3}], v[{V_RES+4}:{V_RES+5}], v[{V_RES+6}:{V_RES+7}]")
    for p in range(4, 10):
        d = t + 2 * (p & 1)
        f += lines(a, f"v_pk_add_f32 v[{d}:{d+1}], v[{d}:{d+1}], v[{V_RES+2*p}:{V_RES+2*p+1}]")
    f += lines(a, f"v_pk_add_f32 v[{t}:{t+1}], v[{t}:{t+1}], v[{t+2}:{t+3}]\nv_add_f32 v{t}, v{t}, v{t+1}")

    def red(x, y):
        return lines(a, f"v_mov_b32 v{y}, v{x}\nv_permlane16_swap_b32 v{x}, v{y}\nv_add_f32 v{x}, v{x}, v{y}\n"
                        f"v_mov_b32 v{y}, v{x}\nv_permlane32_swap_b32 v{x}, v{y}\nv_add_f32 v{x}, v{x}, v{y}")
    f += red(t, t + 1)
    f += lines(a, f"v_mul_f32 v{t}, {f32bits(1.0/80)}, v{t}")
    q = t + 4
    for p in range(10):
        d = t + 8 + 2 * (p & 3)
        f += lines(a, f"v_pk_add_f32 v[{d}:{d+1}], v[{V_RES+2*p}:{V_RES+2*p+1}], v[{t}:{t+1}] op_sel_hi:[1,0] neg_lo:[0,1] neg_hi:[0,1]")
        qq = q + 2 * (p & 1)
        if p < 2:
            f += lines(a, f"v_pk_mul_f32 v[{qq}:{qq+1}], v[{d}:{d+1}], v[{d}:{d+1}]")
        else:
            f += lines(a, f"v_pk_fma_f32 v[{qq}:{qq+1}], v[{d}:{d+1}], v[{d}:{d+1}], v[{qq}:{qq+1}]")
    f += lines(a, f"v_pk_add_f32 v[{q}:{q+1}], v[{q}:{q+1}], v[{q+2}:{q+3}]\nv_add_f32 v{t+1}, v{q}, v{q+1}")
    f += red(t + 1, t + 2)
    for k, g in enumerate(f):
        g()
        p_ = ring.plan()
        if p_ and k % (cfg.get("fl_every", 4) if p_[0] == "flush" else cfg.get("epi_every", 10)) == 2:
            ring.steps(1)
        if not nextlayer and k % cfg.get("epi_every", 10) == 5:
            for pk in (PK3A, PK3):
                if ring.park_ready(pk):
                    ring.park(pk)
                    break
        if early and k == cfg.get("xpoll", 40):
            if nextlayer:
                a.e(f"s_mov_b32 s{S_COFF}, {L.CNT_PER_LAYER * L.CNT_STRIDE}")
            gap_issue(a, cfg, kind, S_TB32)
            if nextlayer:
                a.e(f"s_mov_b32 s{S_COFF}, 0")
    a.e(f"s_add_u32 s{S_T}, s{S_LOFF}, s{S_STS}\ns_add_u32 s{S_T}, s{S_T}, {stconst}")
    a.e("s_mov_b64 exec, 0xffff")
    a.vm(f"buffer_store_dwordx2 v[{t}:{t+1}], v{V_STS}, s[{SRD_WS}:{SRD_WS+3}], s{S_T} offen sc1", "sst")
    a.e("s_mov_b64 exec, -1")
    key = "x2" if nextlayer else "x1"
    if early:
        if not cfg.get("ebar", True):
            ring.barrier(0)
        n1, n2 = cfg.get("e" + key, (0, 8) if nextlayer else (0, INF))
        ring.steps(n1)
        stamp(a, key + " epi end", cfg, 1)
        cnt_off(a, S_T + 9, kind, S_TB32P, nextlayer)
        if nextlayer:
            ring.steps(n2)
        else:
            while ring.any_step((PK3A, PK3), PK3):
                pass
        while ring.open:
            ring.step()
        if nextlayer:
            next_layer(a)
    else:
        ring.steps(cfg.get("dma_after_st", 2))
        a.wait_vm("xst")
        signal(a, kind, S_TB32P, nextlayer)
        ring.barrier(0)
        n1, n2, n3 = cfg.get("gap" + key, (5, 3, 4) if nextlayer else (5, 3, INF))
        ring.steps(n1)
        a.wait_vm("sst")
        signal(a, kind, S_TB32P, nextlayer, S_C256)
        ring.steps(n2)
        stamp(a, key + " epi end", cfg, 1)
        if nextlayer:
            next_layer(a)
        gap_issue(a, cfg, kind, S_TB32)
        ring.steps(n3)
        while ring.open:
            ring.step()
    cfg["_info"].append(f"epilogue end: ring.next {ring.next}")


def mk16(a, pos, t, s, reg, tag):
    def f(b):
        c = V_RES + 4 * t
        a.e(f"v_mfma_f32_16x16x32_bf16 v[{c}:{c+3}], v[{b}:{b+3}], a[{reg}:{reg+3}], v[{c}:{c+3}]")
    return (pos, (tag, s), f)


class ParkFill:
    def __init__(self, ring, early, order, limit):
        self.ring, self.early, self.order, self.limit = ring, early, order, limit

    def take(self, sc, g, kinds):
        if "vm" not in kinds or g < self.early or not sc.vm_ok(g):
            return
        r = self.ring
        if r.park_ready(PK3A):
            r.park(PK3A)
        elif not r.any_step(self.order, self.limit):
            return
        sc.use(3, "vm", g)

    def done(self):
        return True

    def flush(self):
        pass


def phase2(a, ring, cfg, first):
    AW = cfg.get("aw2", 12)
    setup = a_setup(a, S_OA, L.O)
    mf = [mk16(a, P2S + 5 * s + t, t, s, 4 * s, "A") for s in range(20) for t in range(5)]
    al = Seq([((lambda s=s: aload(a, s, setup)), 2, 4 * (s - AW), "vm") for s in range(AW, 20)], force=True, maxper=1)
    sc = Sched([al, ParkFill(ring, cfg.get("dma2", 34), (PK3,), PK3A if PK3A in ring.parks else INF)], 2, cfg.get("per2", 4.5))

    def hook():
        gap_check(a, cfg)
        stamp(a, "P2 polled", cfg)
        for s in range(AW):
            aload(a, s, setup)
    bars = {0: P2S + 100}
    if cfg.get("b2", 0):
        bars[cfg.get("b2", 0)] = 0
    ver = Verifier(a, cfg, S_OA, L.O) if cfg.get("early", True) else None
    run_pass(a, ring, mf, sc, bars, cfg.get("d16", 15), 5, hook, V_ACC, ver=ver)
    stamp(a, "P2 done", cfg)
    out_epilogue(a, ring, cfg, L.X1, L.ST1, L.C_X1, False, False)


def silu_ops(a):
    NRL, VA = V_ST + 2, V_ST + 4
    ops = []
    last_e = {}
    k = 0
    for t in range(6):
        early = L.fragpos(t, 40) + 2
        acc, dst = T32[t], V_TMP + 4 * t
        cv = []
        for r in range(8):
            g, u = acc + r, acc + 8 + r
            e = V_TMP + 24 + k % 16
            k += 1
            b = len(ops)
            ops.append((f"v_mul_f32 v{e}, v{g}, v{NRL}", [last_e[e]] if e in last_e else [], False, early))
            ops.append((f"v_exp_f32 v{e}, v{e}", [b], True, early))
            ops.append((f"v_mul_f32 v{g}, v{g}, v{u}", [b], False, early))
            ops.append((f"v_fma_f32 v{e}, v{e}, v{VA}, v{VA}", [b + 1], False, early))
            ops.append((f"v_rcp_f32 v{e}, v{e}", [b + 3], True, early))
            ops.append((f"v_mul_f32 v{g}, v{g}, v{e}", [b + 2, b + 4], False, early))
            last_e[e] = b + 5
            if r & 1:
                ops.append((f"v_cvt_pk_bf16_f32 v{dst + (r >> 1)}, v{g-1}, v{g}", [b - 1, b + 5], False, early))
                cv.append(len(ops) - 1)

        def st(d=dst, t=t):
            a.e(f"s_add_u32 s{S_T+1}, s{S_LOFF}, s{S_HS[t >> 1]}")
            a.vm(f"buffer_store_dwordx4 v[{d}:{d+3}], v{V_HST}, s[{SRD_WS}:{SRD_WS+3}], s{S_T+1} offen offset:{512*(t & 1)} sc1", ("hst", t))
        ops.append((st, cv, False, early))
    return ops


A4REG = lambda s: (160 + 4 * s) if s < 24 else 4 * (s - 24)


def phase34(a, ring, cfg):
    AW = cfg.get("aw", 10)
    setup = a_setup(a, S_XA, L.X1)
    setup4 = a_setup(a, S_HA, L.H)
    mf = panel(a, P3S, range(6), True)
    ap = cfg.get("aper", 2.3)
    al = Seq([((lambda s=s: aload(a, s, setup)), 2, int(ap * (s - AW)), "vm") for s in range(AW, 40)], force=True, maxper=1)
    tail = lines(a, f"v_mul_f32 v{V_ST+2}, {f32bits(-LOG2E)}, v{V_ST}\nv_mov_b32 v{V_ST+4}, v{P1_TT+2}")
    d = Dag(a, silu_ops(a))
    d.keep = True

    def sig(inst):
        def f():
            stores = [k for k, o in enumerate(d.ops) if callable(o[0])]
            assert stores[2 * inst] in d.at and stores[2 * inst + 1] in d.at, ("h signal before its stores", inst)
            a.wait_vm(lambda t: t in (("hst", 2 * inst), ("hst", 2 * inst + 1)))
            signal(a, L.C_H0 + inst, S_TB32)
        return f

    def a4(s):
        def f():
            if s < 24:
                assert not any(isfl(t) for t in flat_tags(a.lgq)) and (ring.next >= P4S or PK3 not in ring.parks), "parked registers still in use"
            aload(a, s, setup4, A4REG(s), "H")
        return f
    h0s, h0p, h0c = cfg.get("h0", (166, 190, 212))
    h1s, h1p = cfg.get("h1", (212, 236))
    sg = Seq([(sig(0), 5, h0s, "s"), (lambda: poll_issue(a, L.C_H0, S_TB32P), 5, h0p, "s"),
              (lambda: poll_check(a), 6, h0c, "s"), (sig(1), 5, h1s, "s")], force=True)
    a4p = cfg.get("a4per", 2.6)
    n_early = min(16, int((246 - h0c - 1) / a4p) + 1)
    a4s = Seq([(a4(s), 2, h0c + 1 + int(a4p * s), "vm") for s in range(n_early)], force=True, maxper=1)
    pe = cfg.get("per3e", 3.5)
    period = lambda g: pe if 102 <= g < cfg.get("e0end", 140) else cfg.get("per3", 2.3)
    early = cfg.get("early", True)
    ver = Verifier(a, cfg, S_XA, L.X1, lambda s_: s_ % 5 == 4) if early else None
    pz = Seq(poison_items(a, "x2", cfg.get("pz3", 192)) if early else [], force=True, maxper=1)
    sc = Sched([al, sg, a4s, pz, d] + stats_seq(a, cfg, L.C_X1, L.ST1, tail) + [RingFill(ring, 0)], 6, period, cfg.get("fl3", 3))
    bars = {0: P3S + 48}
    for b in range(24, 246, cfg.get("b3", 24)):
        bars[b] = min(P3S + b + cfg.get("b3", 24), P3S + 246)
    st = {idx: (lambda n=n: stamp(a, f"P3.{n}", cfg, 2)) for n, idx in enumerate((0, 40, 80, 122, 163, 204))}

    assert PK3A not in ring.parks or ring.next >= ring.parks[PK3A][0]

    def hook():
        gap_check(a, cfg)
        stamp(a, "P3 polled", cfg)
        for s in range(AW):
            aload(a, s, setup)
    run_pass(a, ring, mf, sc, bars, cfg.get("d32", 9), G32, hook, stamps=st, ver=ver)
    stores = [d.at.get(k) for k, o in enumerate(d.ops) if callable(o[0])]
    cfg["_info"].append(f"P3: h stores at {stores} ring.next {ring.next - P4S} early A4 {n_early} late {getattr(ring, 'late', 0)}")
    stamp(a, "P3 done", cfg)
    ring.cons = P4S
    poll_issue(a, L.C_H1, S_TB32P)
    d.off = 250
    AW4 = max(n_early, min(16, cfg.get("aw4", 16)))
    sc0 = Sched([Seq([(a4(s), 2, 2 * (s - n_early), "vm") for s in range(n_early, AW4)], force=True, maxper=1), d, RingFill(ring, 0, TOT)], 8, 2.3)
    g = 0
    while not (sc0.streams[0].done() and d.done()):
        sc0.gap(g, 0)
        g += 1
    stamp(a, "h epi end", cfg)
    mf = [mk16(a, P4S + 5 * s + t, t, s, A4REG(s), "H") for s in range(48) for t in range(5)]
    lead = cfg.get("lead4", 12)
    it = []
    for s in range(AW4, 48):
        k = max(5 * (s - lead), cfg.get("h1c", 0) + 4 * (s - 16))
        if s in (16, 32):
            it.append((lambda: poll_check(a), 6, k, "s"))
        it.append((a4(s), 2, k, "vm"))
    k32 = max(5 * (32 - lead), cfg.get("h1c", 0) + 64)
    sg = Seq([(sig(2), 5, cfg.get("h2sig", 30), "s"),
              (lambda: poll_issue(a, L.C_H2, S_TB32P), 5, k32 - cfg.get("plead", 35), "s")], force=True)
    sc = Sched([Seq(it, force=True, maxper=2), sg, RingFill(ring, 0, TOT), RingFill(ring, cfg.get("nx4", 170))], 2, cfg.get("per4", 2.5), cfg.get("fl4", 4))
    bars = {}
    for b in range(0, 240, 30):
        bars[b] = min(P4S + b + 30, P4S + 240)
    st = {idx: (lambda n=n: stamp(a, f"P4.{n}", cfg, 2)) for n, idx in enumerate((0, 40, 80, 120, 160, 200))}
    run_pass(a, ring, mf, sc, bars, cfg.get("d16", 15), 5, None, V_ACC, stamps=st)
    cfg["_info"].append(f"P4: ring.next {ring.next - TOT} late {getattr(ring, 'late', 0)}")
    stamp(a, "P4 done", cfg)
    out_epilogue(a, ring, cfg, L.LSTR + L.X, L.LSTR + L.ST, L.C_X, True, True)


def merge_q(x, y):
    flat = lambda t: set(t) if isinstance(t, frozenset) else {t}
    n = min(len(x), len(y))
    out = [flat(x[len(x) - n + k]) | flat(y[len(y) - n + k]) for k in range(n)]
    extra = set()
    for t in x[:len(x) - n] + y[:len(y) - n]:
        extra |= flat(t)
    return ([frozenset(extra)] if extra else []) + [frozenset(o) for o in out]


def gen_main(name="main_kernel", cfg=None):
    cfg = cfg or {}
    a = Asm()
    parks = {}
    if cfg.get("park", False):
        parks[PK3] = (PK3 + 4 * cfg.get("npk", 23), 160)
    if cfg.get("parka", True):
        parks[PK3A] = (PK3A + 4 * cfg.get("npka", 20), 80)
    ring = Ring(a, parks)
    cfg["_info"] = []
    cfg["_stamps"] = []
    cfg["_pend"] = []
    cfg["_cold"] = []
    cfg["_k"] = [0]
    a.e(f".globl {name}\n.p2align 8\n.type {name},@function\n{name}:")
    a.e("s_cmp_ge_u32 s2, 256\ns_cbranch_scc1 L_end")
    fuse = cfg.get("fuse", True)
    late = cfg.get("late", True)
    a.e(f"s_load_dwordx2 s[44:45], s[0:1], {0 if fuse else 56}\ns_load_dwordx2 s[12:13], s[0:1], 72\ns_load_dwordx2 s[68:69], s[0:1], 64")
    a.e(f"v_and_b32 v{V_LANE}, 63, v0\nv_lshlrev_b32 v{V_L16}, 4, v{V_LANE}\nv_lshlrev_b32 v{V_T16}, 4, v0")
    a.e(f"v_lshrrev_b32 v30, 6, v0\nv_readfirstlane_b32 s{S_W}, v30")
    a.e("s_waitcnt lgkmcnt(0)")
    for d in (SRD_WS, SRD_NX):
        a.e(f"s_mov_b32 s{d}, s12\ns_and_b32 s{d+1}, s13, 0xffff\ns_mov_b32 s{d+2}, {L.WS_USED}\ns_mov_b32 s{d+3}, 0x20000")
    a.e(f"s_mov_b32 s8, s44\ns_and_b32 s9, s45, 0xffff\ns_mov_b32 s10, {2048*1280}\ns_mov_b32 s11, 0x20000")
    a.e(f"s_mov_b32 s{S_LAY}, 0\ns_mov_b32 s{S_LOFF}, {L.LBASE}\ns_mov_b32 s{S_COFF}, 0")
    if cfg.get("timing"):
        a.e(f"s_add_u32 s72, s12, {cfg['timing']}\ns_addc_u32 s73, s13, 0\ns_and_b32 s73, s73, 0xffff\ns_mov_b32 s74, {1024*512}\ns_mov_b32 s75, 0x20000")
        a.e(f"s_lshl_b32 s{S_TS+2}, s2, 2\ns_add_u32 s{S_TS+2}, s{S_TS+2}, s{S_W}\ns_lshl_b32 s{S_TS+2}, s{S_TS+2}, 9\nv_lshlrev_b32 v30, 2, v{V_LANE}\nv_mov_b32 v31, 0\ns_mov_b32 s87, 0")
    stamp(a, "start", cfg, 0)
    if fuse:
        ring.gate, ring.wflag = SCR, "sc1"
        S0.part1(a, name, late)
    rb = cfg.get("xr", 2)
    cb = rb - 1
    a.e(f"s_and_b32 s46, s2, 7\ns_lshr_b32 s46, s46, {cb}\ns_lshl_b32 s46, s46, {rb}\ns_lshr_b32 s47, s2, 3\ns_and_b32 s47, s47, {(1 << rb) - 1}\ns_add_u32 s{S_I}, s46, s47")
    a.e(f"s_and_b32 s46, s2, {(1 << cb) - 1}\ns_lshl_b32 s46, s46, {5 - rb}\ns_lshr_b32 s47, s2, {3 + rb}\ns_add_u32 s{S_J}, s46, s47")
    a.e(f"s_lshl_b32 s{S_W1K}, s{S_W}, 10")
    a.e(f"s_lshr_b32 s48, s{S_J}, 1\ns_and_b32 s49, s{S_J}, 1")
    a.e(f"s_mul_i32 s20, s{S_J}, {L.WQKV_STR}\ns_add_u32 s20, s20, {L.WQKV}")
    a.e(f"s_mul_i32 s21, s48, {L.WO_STR}\ns_add_u32 s21, s21, {L.WO}")
    a.e(f"s_mul_i32 s22, s{S_J}, {L.W13_STR}\ns_add_u32 s22, s22, {L.W13}")
    a.e(f"s_mul_i32 s23, s48, {L.W2_STR}\ns_add_u32 s23, s23, {L.W2}")
    a.e(f"s_lshl_b32 s{S_CW}, s48, 2\ns_add_u32 s{S_CW}, s{S_CW}, s{S_W}")
    ring.freed = 0
    a.e(f"s_lshl_b32 s{S_TB32}, s{S_I}, 2\ns_add_u32 s{S_TB32}, s{S_TB32}, s{S_W}")
    a.e(f"s_mul_i32 s{S_XA}, s{S_TB32}, 40960\ns_lshl_b32 s{S_STA}, s{S_TB32}, 11")
    setup0 = a_setup(a, S_XA, L.X)
    a.e(f"s_lshl_b32 s{S_WG[8]}, s{S_W}, 11\ns_mul_i32 s{S_WG[12]}, s{S_W}, 3072\ns_lshl_b32 s{S_WG[16]}, s{S_W}, 12")
    for g_ in (8, 12, 16):
        a.e(f"v_add_u32 v{V_TG[g_]}, s{S_WG[g_]}, v{V_L16}")
    a.e(f"v_add_u32 v{V_T16B}, 0x10000, v{V_T16}\nv_add_u32 v{V_T16C}, 0x20000, v{V_T16}\nv_lshlrev_b32 v{V_T8}, 3, v0")

    def first_loads():
        ring.maxg = 12
        for blk in range(cfg.get("la0", 3)):
            for k in range(3):
                ring.step(12 * blk + 12)
            for s_ in range(4 * blk, 4 * blk + 4):
                aload(a, s_, setup0)
                cfg["_a0"] = s_ + 1
    if not fuse:
        first_loads()
    a.e(f"s_lshl_b32 s{S_TB16}, s{S_I}, 3\ns_lshl_b32 s46, s49, 2\ns_add_u32 s{S_TB16}, s{S_TB16}, s46\ns_add_u32 s{S_TB16}, s{S_TB16}, s{S_W}")
    a.e(f"s_lshr_b32 s{S_TB32P}, s{S_TB16}, 1")
    a.e(f"s_mul_i32 s{S_OA}, s{S_TB16}, 20480\ns_mul_i32 s{S_HA}, s{S_TB16}, 49152")
    a.e(f"s_and_b32 s50, s{S_TB16}, 1")
    a.e(f"s_mul_i32 s{S_XS}, s{S_TB32P}, 40960\ns_mul_i32 s46, s48, 5120\ns_add_u32 s{S_XS}, s{S_XS}, s46\ns_lshl_b32 s46, s50, 8\ns_add_u32 s{S_XS}, s{S_XS}, s46")
    a.e(f"s_lshl_b32 s{S_STS}, s{S_TB32P}, 11\ns_lshl_b32 s46, s48, 8\ns_add_u32 s{S_STS}, s{S_STS}, s46\ns_lshl_b32 s46, s50, 7\ns_add_u32 s{S_STS}, s{S_STS}, s46")
    a.e(f"s_mul_i32 s{S_OS}, s{S_TB32}, 40960\ns_mul_i32 s46, s{S_J}, 1280\ns_add_u32 s{S_OS}, s{S_OS}, s46\ns_add_u32 s{S_OS}, s{S_OS}, {L.O}")
    a.e(f"s_mul_i32 s47, s{S_TB32}, {2*49152}\ns_add_u32 s47, s47, {L.H}")
    a.e(f"s_lshl_b32 s46, s{S_J}, 10\ns_add_u32 s{S_HS[0]}, s47, s46")
    a.e(f"s_add_u32 s{S_HS[1]}, s{S_HS[0]}, {32*512}\ns_add_u32 s{S_HS[2]}, s{S_HS[0]}, {64*512}")
    a.e(f"s_mul_i32 s{S_KVR}, s{S_J}, {16*L.KV_STR}\ns_add_u32 s{S_KVR}, s{S_KVR}, {L.KV}")
    a.e(f"s_mul_i32 s46, s{S_I}, {L.KV_STR}\ns_add_u32 s{S_KVS}, s{S_KVR}, s46")
    a.e(f"s_mul_i32 s{S_OUT}, s{S_TB16}, {16*1280}\ns_mul_i32 s46, s48, 160\ns_add_u32 s{S_OUT}, s{S_OUT}, s46")
    a.e(f"s_lshl_b32 s{S_KVC}, s{S_J}, 2\ns_add_u32 s{S_KVC}, s{S_KVC}, s{S_W}")
    a.e(f"s_mov_b32 s{S_ONE}, 1\ns_mov_b32 s{S_C256}, 256\ns_mov_b32 s{S_LO32}, -1\ns_mov_b32 s{S_LO32+1}, 0")
    for r_ in range(4):
        a.e(f"v_mov_b32 v{V_POI+r_}, -1")
    a.e(f"s_mov_b32 s{S_EPS2}, {f32bits(1e-6)}\ns_mov_b32 s{S_EPS2+1}, {f32bits(1e-6)}\ns_mov_b32 s{S_ONE2}, 1.0\ns_mov_b32 s{S_ONE2+1}, 1.0")
    a.e(f"v_mov_b32 v216, 210\nv_cmp_gt_u32 s[{S_M210}:{S_M210+1}], v216, v0")
    tok, hf, t16, g, x, y, z = 208, 209, 210, 211, 212, 213, 214
    ln = V_LANE
    a.e(f"v_add_u32 v{V_L16B}, 0x10000, v{V_L16}\nv_add_u32 v{V_L16C}, 0x20000, v{V_L16}")
    a.e(f"v_and_b32 v{tok}, 31, v{ln}\nv_lshrrev_b32 v{hf}, 5, v{ln}\nv_and_b32 v{t16}, 15, v{ln}\nv_lshrrev_b32 v{g}, 4, v{ln}")
    a.e(f"v_lshlrev_b32 v{x}, 10, v{hf}\nv_lshl_add_u32 v{V_STL}, v{tok}, 3, v{x}")
    a.e(f"v_lshlrev_b32 v{x}, 8, v{hf}\nv_lshl_add_u32 v{x}, v{t16}, 4, v{x}\nv_bfe_u32 v{y}, v{ln}, 4, 1")
    a.e(f"v_mul_u32_u24 v{z}, 20480, v{y}\nv_add_u32 v{V_OST}, v{x}, v{z}")
    a.e(f"v_mul_u32_u24 v{z}, 49152, v{y}\nv_add_u32 v{V_HST}, v{x}, v{z}")
    a.e(f"v_lshlrev_b32 v{x}, 9, v{g}\nv_lshl_add_u32 v{V_XS1}, v{t16}, 4, v{x}")
    a.e(f"v_lshlrev_b32 v{x}, 9, v{hf}\nv_lshl_add_u32 v{x}, v{t16}, 4, v{x}\nv_lshl_add_u32 v{x}, v{y}, 3, v{x}\nv_add_u32 v{V_XS2}, 4096, v{x}")
    a.e(f"v_mul_u32_u24 v{x}, 1280, v{t16}\nv_lshl_add_u32 v{V_OUT1}, v{g}, 4, v{x}\nv_lshl_add_u32 v{x}, v{g}, 3, v{x}\nv_add_u32 v{V_OUT2}, 128, v{x}")
    a.e(f"v_lshlrev_b32 v{V_STS}, 3, v{ln}")
    P = 128
    if fuse:
        a.e(f"buffer_load_dwordx4 v[{P}:{P+3}], v{V_OUT1}, s[8:11], s{S_OUT} offen")
        a.e(f"buffer_load_dwordx4 v[{P+4}:{P+7}], v{V_OUT1}, s[8:11], s{S_OUT} offen offset:64")
        a.vm(f"buffer_load_dwordx2 v[{P+8}:{P+9}], v{V_OUT2}, s[8:11], s{S_OUT} offen", "res")
        a.e("s_load_dwordx2 s[44:45], s[0:1], 56")
    else:
        a.e(f"s_add_u32 s{S_T}, s{S_XS}, {L.LBASE + L.X}")
        a.vm(f"buffer_load_dwordx4 v[{P}:{P+3}], v{V_XS1}, s[{SRD_WS}:{SRD_WS+3}], s{S_T} offen", "res")
        a.vm(f"buffer_load_dwordx4 v[{P+4}:{P+7}], v{V_XS1}, s[{SRD_WS}:{SRD_WS+3}], s{S_T} offen offset:2048", "res")
        a.vm(f"buffer_load_dwordx2 v[{P+8}:{P+9}], v{V_XS2}, s[{SRD_WS}:{SRD_WS+3}], s{S_T} offen", "res")
        stats_load(a, L.ST)
    a.e(f"s_mul_i32 s46, s{S_W}, {GC_STR}\ns_add_u32 s46, s46, {GC_OFF}")
    a.e(f"v_mul_u32_u24 v{x}, 80, v{tok}\nv_lshl_add_u32 v{x}, v{hf}, 4, v{x}\nv_add_u32 v{x}, s46, v{x}")
    a.e(f"v_subrev_u32 v{y}, 80, v{x}\nv_cmp_le_u32 vcc, 20, v{tok}\nv_cndmask_b32 v{V_G0}, v{x}, v{y}, vcc")
    a.e(f"v_add_u32 v{y}, {23*80}, v{x}\nv_add_u32 v{x}, {16*80}, v{x}\nv_cmp_gt_u32 vcc, 16, v{tok}\nv_cndmask_b32 v{V_G1}, v{x}, v{y}, vcc")
    a.e(f"s_lshl_b32 s46, s{S_W}, 5\nv_add_u32 v215, s46, v{tok}\nv_cmp_gt_u32 s[{S_MKV}:{S_MKV+1}], 0x69, v215" .replace("0x69, v215", "v216, v215").replace("v_cmp_gt", "v_mov_b32 v216, 105\nv_cmp_gt"))
    a.e(f"v_mul_u32_u24 v{x}, {L.KV_STR}, v{hf}\nv_lshl_add_u32 v{V_KVL}, v215, 4, v{x}\nv_lshl_add_u32 v215, v215, 1, v{hf}")
    a.e(f"v_mul_u32_u24 v{x}, 205, v215\nv_lshrrev_b32 v{x}, 10, v{x}\nv_mul_u32_u24 v{y}, 5, v{x}\nv_sub_u32 v{y}, v215, v{y}")
    a.e(f"v_mul_u32_u24 v{z}, 112, v{x}\nv_lshl_add_u32 v{z}, v{y}, 3, v{z}\nv_add_u32 v{z}, {GB_OFF}, v{z}\nv_add_u32 v{y}, 40, v{z}")
    a.e(f"v_cmp_le_u32 vcc, 20, v{x}\nv_cndmask_b32 v{y}, v{z}, v{y}, vcc\nv_cmp_eq_u32 vcc, 40, v{x}\nv_cndmask_b32 v{V_GBW}, v{y}, v{z}, vcc")
    a.e(f"v_lshrrev_b32 v{x}, 4, v{tok}\nv_mul_u32_u24 v{x}, 24, v{x}\nv_bfe_u32 v{y}, v{tok}, 2, 1\nv_lshl_add_u32 v{x}, v{y}, 3, v{x}")
    a.e(f"v_bfe_u32 v{y}, v{tok}, 3, 1\nv_lshl_add_u32 v{x}, v{y}, 2, v{x}\nv_and_b32 v{z}, 3, v{tok}\nv_add_u32 v{x}, v{x}, v{z}")
    a.e(f"v_mul_u32_u24 v{x}, 112, v{x}\nv_lshl_add_u32 v{x}, v{hf}, 4, v{x}\nv_add_u32 v{V_GBX}, {GB_OFF}, v{x}")
    a.e(f"v_lshl_add_u32 v{x}, v{y}, 2, v{z}\nv_add_u32 v{x}, 16, v{x}\nv_mov_b32 v{y}, 42")
    a.e(f"v_and_b32 v215, 0x14, v{tok}\nv_cmp_eq_u32 vcc, 0, v215\nv_cndmask_b32 v{y}, v{y}, v{x}, vcc")
    a.e(f"v_add_u32 v{x}, 40, v{z}\nv_and_b32 v215, 0x1a, v{tok}\nv_cmp_eq_u32 vcc, 16, v215\nv_cndmask_b32 v{y}, v{y}, v{x}, vcc")
    a.e(f"v_mul_u32_u24 v{x}, 112, v{y}\nv_lshl_add_u32 v{x}, v{hf}, 4, v{x}\nv_add_u32 v{V_GBY}, {GB_OFF}, v{x}")
    a.e(f"s_mul_i32 s46, s{S_W}, 2304\ns_add_u32 s46, s46, {QT_OFF}\ns_mul_i32 s47, s{S_W}, 576\ns_add_u32 s47, s47, {Q1_OFF}")
    a.e(f"v_mul_u32_u24 v{x}, 72, v{tok}\nv_lshl_add_u32 v{x}, v{hf}, 3, v{x}\nv_add_u32 v{V_QW3}, s46, v{x}")
    a.e(f"v_add_u32 v{x}, s47, v{x}\nv_subrev_u32 v{V_QW1}, {16*72}, v{x}")
    a.e(f"v_bfe_u32 v{x}, v{ln}, 2, 2\nv_mul_u32_u24 v{x}, 72, v{x}\nv_bfe_u32 v{y}, v{ln}, 4, 1\nv_lshl_add_u32 v{x}, v{y}, 5, v{x}")
    a.e(f"v_and_b32 v{y}, 3, v{ln}\nv_lshl_add_u32 v{x}, v{y}, 3, v{x}\nv_add_u32 v{V_QR2}, s47, v{x}")
    a.e(f"v_mul_u32_u24 v{y}, {8*72}, v{hf}\nv_add_u32 v{x}, v{x}, v{y}\nv_add_u32 v{V_QR}, s46, v{x}")
    a.e(f"v_mov_b32 v{V_C2}, 0\nv_mov_b32 v{V_C3}, 0\nv_mov_b32 v{V_LO}, 0\nv_mov_b32 v{V_C2+1}, 0\nv_mov_b32 v{V_C3+1}, 0")
    set_exec(a, 0x00FF00FF, 0x00FF00FF)
    a.e(f"v_mov_b32 v{V_C3}, s{S_EPS2}\nv_mov_b32 v{V_LO}, s{S_EPS2}")
    set_exec(a, 0x0000FF00, 0x0000FF00)
    a.e(f"v_mov_b32 v{V_C2}, 0xff800000\nv_mov_b32 v{V_LO}, 0xff800000")
    a.e("s_mov_b64 exec, -1")
    a.e(f"s_lshl_b32 s46, s{S_W}, 8\ns_add_u32 s46, s46, {RS_OFF}")
    a.e(f"v_lshlrev_b32 v{x}, 2, v{ln}\nv_add_u32 v{V_RSW}, s46, v{x}\nv_lshlrev_b32 v{x}, 4, v{hf}\nv_add_u32 v{V_RSR}, s46, v{x}")
    if fuse:
        a.e(f"s_waitcnt lgkmcnt(0)\ns_mov_b32 s8, s44\ns_and_b32 s9, s45, 0xffff")
        stamp(a, "setup done", cfg)
        S0.part2(a, SPIN, late)
        stamp(a, "packed", cfg)
        d = SRD_NX
        a.e(f"s_mov_b32 s{d}, s12\ns_and_b32 s{d+1}, s13, 0xffff\ns_mov_b32 s{d+2}, {L.WS_USED}\ns_mov_b32 s{d+3}, 0x20000")
        poll_issue(a, L.C_PQKV, S_KVC)
        poll2_a(a, L.C_X, S_TB32)
        poll_check(a, 0, 60)
        poll2_check(a, cfg, 4)
        stamp(a, "pk polled", cfg)
        first_loads()
        stats_load(a, L.ST)
    stamp(a, "P1 polled", cfg)
    phase1(a, ring, cfg, True)
    phase2(a, ring, cfg, True)
    a.e("s_branch L_join")
    j0 = (ring.next, ring.cons, ring.freed, dict(ring.parked), list(cfg["_pend"]), cfg["_k"][0])
    tags0 = list(a.vmq)
    lg0 = list(a.lgq)
    a.e("L_top:")
    cfg["_pend"][:], cfg["_k"][0] = cfg.get("_ptop", ([], 0))
    top = cfg.get("_top", ([("dma", p_) for p_ in range(0, RING, 4)], RING))
    a.vmq = list(top[0])
    a.lgq = []
    ring.next, ring.pub, ring.cons, ring.freed, ring.parked = top[1], 0, 0, 0, {}
    phase1(a, ring, cfg, False)
    phase2(a, ring, cfg, False)
    assert j0 == (ring.next, ring.cons, ring.freed, dict(ring.parked), list(cfg["_pend"]), cfg["_k"][0]), (j0, ring.next, ring.cons)
    a.e("L_join:")
    a.vmq = merge_q(tags0, a.vmq)
    a.lgq = merge_q(lg0, a.lgq)
    phase34(a, ring, cfg)
    assert ring.freed == TOT and not ring.open, (ring.next, ring.freed)
    bottom = ([((t[0], t[1] - TOT) if isdma(t) else "old") for t in a.vmq], ring.next - TOT)
    ptop = (list(cfg["_pend"]), cfg["_k"][0])
    if cfg.get("_top") != bottom or cfg.get("_ptop") != ptop:
        cfg = dict(cfg)
        cfg["_top"] = bottom
        cfg["_ptop"] = ptop
        return gen_main(name, cfg)
    import sys
    print("\n".join(cfg["_info"]), "nops", a.nops_added, file=sys.stderr)
    a.e(f"s_mov_b32 s{SRD_NX+2}, 0")
    a.e("s_branch L_top")
    a.e("L_final:")
    cfg["_pend"][:], cfg["_k"][0] = cfg["_final"]
    cfg["_slot"] = 1
    P = V_TMP
    a.e(f"buffer_store_dwordx4 v[{P}:{P+3}], v{V_OUT1}, s[8:11], s{S_OUT} offen {cfg.get('outflag', '')}")
    a.e(f"buffer_store_dwordx4 v[{P+4}:{P+7}], v{V_OUT1}, s[8:11], s{S_OUT} offen offset:64 {cfg.get('outflag', '')}")
    a.e(f"buffer_store_dwordx2 v[{P+8}:{P+9}], v{V_OUT2}, s[8:11], s{S_OUT} offen {cfg.get('outflag', '')}")
    stamp(a, "end", cfg, 0)
    a.e("s_waitcnt vmcnt(0)")
    a.e("L_end:\ns_endpgm")
    for blk in cfg["_cold"]:
        a.e(blk)
    t = a.text()
    if cfg.get("timing"):
        t += "; STAMPS " + "|".join(cfg["_stamps"]) + "\n"
    return t, kd(name, 512, 100, 256), a


if __name__ == "__main__":
    t, k, a = gen_main()
    print(t)
```

```python
from asmcore import *
import layout as L

U_QKV, U_WO, U_W13, U_W2, U_END = 0, 120, 160, 352, 448
STAGE = 116 * 1024
NBOOT = 20
R_QKV, R_W13, R_W2, R_X, R_BOOT, R_IDLE = 0, 1, 2, 3, 4, 5
SU, SROLE, SH = 58, 59, 57
SRC = 64
WS = "s[4:7]"
DBG = 68
V = lambda n: 60 + n
LN, L16 = 1, 2


def vv(text):
    import re
    t = re.sub(r"\bv\[(\d+):(\d+)\]", lambda m: f"v[{V(int(m.group(1)))}:{V(int(m.group(2)))}]", text)
    t = re.sub(r"\bv(\d+)\b", lambda m: f"v{V(int(m.group(1)))}", t)
    return t.replace("LANE", f"v{LN}").replace("L16", f"v{L16}")


def src_srd(a, koff_sgpr_or_imm, size):
    a.e(f"s_load_dwordx2 s[52:53], s[0:1], {koff_sgpr_or_imm}\ns_waitcnt lgkmcnt(0)")
    a.e(f"s_mov_b32 s{SRC}, s52\ns_and_b32 s{SRC+1}, s53, 0xffff\ns_mov_b32 s{SRC+2}, {size}\ns_mov_b32 s{SRC+3}, 0x20000")


def decode(a):
    a.e(f"s_lshl_b32 s{SU}, s3, 8\ns_add_u32 s{SU}, s{SU}, s2\ns_mov_b32 s{SROLE}, {R_QKV}")
    a.e(f"s_cmp_ge_u32 s{SU}, {U_WO}\ns_cselect_b32 s{SROLE}, {R_W2}, s{SROLE}")
    a.e(f"s_cmp_ge_u32 s{SU}, {U_W13}\ns_cselect_b32 s{SROLE}, {R_W13}, s{SROLE}")
    a.e(f"s_cmp_ge_u32 s{SU}, {U_W2}\ns_cselect_b32 s{SROLE}, {R_W2}, s{SROLE}")
    a.e(f"s_cmp_ge_u32 s{SU}, {U_END}\ns_cselect_b32 s{SROLE}, {R_IDLE}, s{SROLE}")
    a.e(f"s_cmp_eq_u32 s3, 2\ns_cselect_b32 s{SROLE}, {R_X}, s{SROLE}")
    a.e(f"s_cmp_eq_u32 s3, 3\ns_cselect_b32 s{SROLE}, {R_BOOT}, s{SROLE}")


def qkv_ids(a):
    a.e(f"s_mul_i32 s44, s{SU}, 137\ns_lshr_b32 s44, s44, 12\ns_mul_i32 s46, s44, 30\ns_sub_u32 s45, s{SU}, s46")


def w13_ids(a):
    a.e(f"s_sub_u32 s45, s{SU}, {U_W13}\ns_and_b32 s51, s45, 1\ns_lshr_b32 s45, s45, 1")
    a.e("s_mul_i32 s44, s45, 43\ns_lshr_b32 s44, s44, 10\ns_mul_i32 s46, s44, 24\ns_sub_u32 s45, s45, s46")


def w2_ids(a):
    a.e(f"s_sub_u32 s45, s{SU}, {U_W2}\ns_sub_u32 s46, s{SU}, {U_WO}\ns_cmp_lt_u32 s{SU}, {U_W13}")
    a.e("s_cselect_b32 s45, s46, s45\ns_cselect_b32 s51, 1, 0\ns_and_b32 s44, s45, 1\ns_lshr_b32 s45, s45, 1")


def stage_base(a, s):
    a.e(f"s_mul_i32 s{s}, s3, 20480\ns_add_u32 s{s}, s{s}, {STAGE}")


def issue_cols(a, pitch):
    a.e(vv(f"v_lshrrev_b32 v5, 3, LANE\nv_and_b32 v6, 7, LANE\nv_mul_u32_u24 v5, {pitch}, v5\nv_lshl_add_u32 v5, v6, 4, v5"))
    a.e(f"s_mul_i32 s46, s44, {160*pitch}\ns_lshl_b32 s47, s45, 7\ns_add_u32 s46, s46, s47")
    stage_base(a, 47)
    for n in range(20):
        a.e(f"s_add_u32 m0, s47, {n*1024}")
        a.e(vv(f"buffer_load_dwordx4 v5, s[{SRC}:{SRC+3}], s46 offen lds"))
        a.e(f"s_add_u32 s46, s46, {8*pitch}")


def issue_qkv(a):
    src_srd(a, 8, 640 * 3840)
    qkv_ids(a)
    issue_cols(a, 3840)


def issue_w13(a):
    w13_ids(a)
    a.e("s_lshl_b32 s46, s51, 3\ns_add_u32 s46, s46, 32")
    src_srd(a, "s46", 640 * 3072)
    issue_cols(a, 3072)


def issue_w2(a):
    w2_ids(a)
    a.e("s_cmp_eq_u32 s51, 1\ns_cselect_b32 s46, 16, 48")
    a.e(f"s_mov_b32 s50, {1536*1280}\ns_cselect_b32 s50, {640*1280}, s50")
    src_srd(a, "s46", "s50")
    for n in range(5):
        a.e(vv(f"v_add_u32 v5, {64*n}, LANE\nv_mul_u32_u24 v6, 205, v5\nv_lshrrev_b32 v6, 13, v6\nv_mul_u32_u24 v6, 640, v6\nv_lshl_add_u32 v{8+n}, v5, 4, v6"))
    a.e("s_mul_i32 s46, s45, 40960\ns_mul_i32 s47, s44, 640\ns_add_u32 s46, s46, s47")
    stage_base(a, 47)
    for n in range(20):
        a.e(f"s_add_u32 m0, s47, {n*1024}")
        a.e(vv(f"buffer_load_dwordx4 v{8+n%5}, s[{SRC}:{SRC+3}], s46 offen lds"))
        if n % 5 == 4 and n < 19:
            a.e(f"s_add_u32 s46, s46, {8*1280}")


def issue_x(a):
    src_srd(a, 0, 2048 * 1280)
    a.e("s_mul_i32 s46, s2, 10240")
    a.e(vv("v_and_b32 v5, 7, LANE\nv_lshrrev_b32 v6, 3, LANE\nv_mul_u32_u24 v7, 1280, v5\nv_lshl_add_u32 v7, v6, 4, v7"))
    for q in range(10):
        a.e(vv(f"buffer_load_dwordx4 v[{16+4*q}:{19+4*q}], v7, s[{SRC}:{SRC+3}], s46 offen offset:{q*128}"))


def issue_boot(a, name):
    lab = a.label("Ls0b")
    a.e(f"s_cmp_ge_u32 s2, {NBOOT}\ns_cbranch_scc1 {lab}")
    a.e(vv(f"v_mov_b32 v4, 0\nv_lshlrev_b32 v5, 8, LANE\ns_lshl_b32 s46, s2, 14\nbuffer_store_dword v4, v5, {WS}, s46 offen sc1"))
    a.e(f"s_waitcnt vmcnt(0)\ns_mov_b32 s46, 1\ns_atomic_add s46, s[{DBG}:{DBG+1}], 0")
    a.e(f"{lab}:")
    lab2 = a.label("Ls0c")
    a.e(f"s_getpc_b64 s[50:51]\n{lab2}_pc:\ns_sub_u32 s50, s50, {lab2}_pc-{name}\ns_subb_u32 s51, s51, 0")
    a.e("s_lshr_b32 s52, s2, 3\ns_lshl_b32 s52, s52, 11")
    a.e(vv(f"v_add_u32 v8, s52, L16\nv_cmp_gt_u32 vcc, L_end-{name}-1040, v8"))
    a.e(vv("v_mov_b32 v11, s51\nv_add_co_u32 v10, s[54:55], s50, v8\nv_addc_co_u32 v11, s[54:55], 0, v11, s[54:55]"))
    a.e(f"s_and_saveexec_b64 s[54:55], vcc\ns_cbranch_execz {lab2}")
    a.e(vv("global_load_dwordx4 v[12:15], v[10:11], off\nglobal_load_dwordx4 v[16:19], v[10:11], off offset:1024"))
    a.e(f"{lab2}:\ns_mov_b64 exec, -1")


def boot_wait(a, spin):
    lp, ok = a.label("Lbw"), a.label("Lbo")
    a.e(vv(f"s_mov_b32 s55, 0\nv_mov_b32 v8, 0\n{lp}:\nglobal_load_dword v9, v8, s[{DBG}:{DBG+1}] sc1\ns_waitcnt vmcnt(0)\nv_readfirstlane_b32 s56, v9"))
    a.e(f"s_cmp_ge_u32 s56, {NBOOT}\ns_cbranch_scc1 {ok}\ns_add_u32 s55, s55, 1\ns_cmp_lt_u32 s55, {spin}\ns_cbranch_scc1 {lp}\n{ok}:")


def frag_table(a, base, pstr):
    a.e("s_mul_i32 s46, s44, 30\ns_mul_i32 s47, s44, 20\ns_add_u32 s47, s47, 20\ns_mul_i32 s48, s44, 10\ns_add_u32 s49, s48, 82\ns_add_u32 s50, s46, 2")
    a.e("s_mov_b32 s52, 3072\ns_mov_b32 s53, 3072\ns_cmp_ge_u32 s44, 2")
    a.e("s_cselect_b32 s46, s47, s46\ns_cselect_b32 s50, s49, s50\ns_cselect_b32 s52, 2048, s52\ns_cselect_b32 s53, 1024, s53")
    a.e(vv("v_add_u32 v13, s46, v10\nv_mov_b32 v14, s52\nv_add_u32 v15, 100, v10"))
    a.e(vv("v_mov_b32 v6, s50\nv_mov_b32 v7, s53\nv_mov_b32 v8, 122\nv_cmp_eq_u32 vcc, 2, v10"))
    a.e(vv("v_cndmask_b32 v13, v13, v6, vcc\nv_cndmask_b32 v14, v14, v7, vcc\nv_cndmask_b32 v15, v15, v8, vcc"))
    a.e(vv("v_mul_u32_u24 v8, 41, v10\nv_add_u32 v6, s48, v8\nv_add_u32 v8, 40, v8\nv_mov_b32 v7, 1024\nv_cmp_lt_u32 vcc, 2, v10"))
    a.e(vv("v_cndmask_b32 v13, v13, v6, vcc\nv_cndmask_b32 v14, v14, v7, vcc\nv_cndmask_b32 v15, v15, v8, vcc"))
    a.e(vv(f"v_mul_u32_u24 v6, {pstr}, v11\nv_lshl_add_u32 v6, v12, 4, v6\nv_add_u32 v6, {base}, v6"))
    a.e(vv("v_lshl_add_u32 v13, v13, 10, v6\nv_lshl_add_u32 v15, v15, 10, v6\nv_lshrrev_b32 v7, 5, LANE\nv_lshl_add_u32 v13, v7, 9, v13"))
    a.e("s_lshr_b32 s46, s44, 1\ns_lshl_b32 s46, s46, 9\ns_and_b32 s47, s44, 1\ns_lshl_b32 s47, s47, 3\ns_add_u32 s46, s46, s47")
    a.e(vv("v_add_u32 v15, s46, v15"))


def krow_addr(a):
    stage_base(a, 46)
    a.e(f"s_lshl_b32 s47, s{SH}, 6\ns_add_u32 s46, s46, s47")
    a.e(vv("v_lshrrev_b32 v7, 5, LANE\nv_lshlrev_b32 v7, 3, v7\nv_bfe_u32 v8, LANE, 2, 2\nv_add_u32 v7, v7, v8\nv_lshlrev_b32 v7, 7, v7\nv_add_u32 v7, s46, v7"))


def tr_reads(a):
    for s in range(10):
        for u in range(2):
            a.ds(vv(f"ds_read_b64_tr_b16 v[{16+4*s+2*u}:{17+4*s+2*u}], v4 offset:{(16*s+4*u)*128}"), ("t", s))


def tr_stores(a, zero_mask=None):
    a.e(vv("v_mov_b32 v9, 0\nv_mov_b32 v5, 0\ns_mov_b32 s46, 0x3f803f80\nv_mov_b32 v60, v13"))
    for s in range(10):
        a.wait_ds(("t", s))
        a.e(vv(f"buffer_store_dwordx4 v[{16+4*s}:{19+4*s}], v13, {WS}, 0 offen sc1\nv_add_u32 v13, v13, v14"))
    for r in range(40):
        acc = 9 if r & 1 else 5
        a.e(vv(f"v_dot2_f32_bf16 v{acc}, v{16+r}, s46, v{acc}"))
    a.e(vv("v_add_f32 v9, v9, v5\nv_mov_b32 v10, v9\nv_permlane32_swap_b32 v9, v10\nv_add_f32 v9, v9, v10"))
    a.e(vv("v_cvt_pk_bf16_f32 v6, v9, v9\nv_and_b32 v10, 0xffff0000, v6\nv_sub_f32 v10, v9, v10\nv_cvt_pk_bf16_f32 v7, v10, v10"))
    a.e("s_mov_b32 exec_hi, 0")
    a.e(vv(f"buffer_store_dwordx2 v[6:7], v15, {WS}, 0 offen sc1"))
    a.e("s_mov_b64 exec, -1")
    if zero_mask is not None:
        lab = a.label("Ls0z")
        a.e(vv("v_mov_b32 v56, 0\nv_mov_b32 v57, 0\nv_mov_b32 v58, 0\nv_mov_b32 v59, 0"))
        a.e(f"s_mov_b64 exec, s[{zero_mask}:{zero_mask+1}]\ns_cbranch_execz {lab}")
        for s in range(10):
            a.e(vv(f"buffer_store_dwordx4 v[56:59], v60, {WS}, 0 offen offset:128 sc1\nv_add_u32 v60, v60, v14"))
        a.e(vv(f"buffer_store_dwordx2 v[56:57], v15, {WS}, 0 offen offset:128 sc1"))
        a.e(f"{lab}:\ns_mov_b64 exec, -1")


def vsignal(a, nlanes, kind, spin, own=False):
    a.e(vv("v_lshlrev_b32 v4, 8, v4"))
    if not own:
        a.e(vv("v_mov_b32 v5, 1"))
    boot_wait(a, spin)
    a.e(f"s_mov_b32 s46, {kind * 64 * L.CNT_STRIDE}" if isinstance(kind, int) else kind)
    if own:
        a.e(f"s_and_b32 exec_lo, vcc_lo, {(1 << nlanes) - 1:#x}\ns_mov_b32 exec_hi, 0")
    else:
        a.e(f"s_mov_b32 exec_lo, {(1 << nlanes) - 1:#x}\ns_mov_b32 exec_hi, 0")
    a.e(vv(f"buffer_atomic_add v5, v4, {WS}, s46 offen sc1"))
    a.e("s_mov_b64 exec, -1")


def half_loop(a, body):
    lp = a.label("Ls0h")
    a.e(f"s_mov_b32 s{SH}, 0\ns_waitcnt vmcnt(0)\n{lp}:")
    body()
    a.e(f"s_add_u32 s{SH}, s{SH}, 1\ns_cmp_lt_u32 s{SH}, 2\ns_cbranch_scc1 {lp}")


def proc_qkv(a, spin):
    qkv_ids(a)

    def body():
        krow_addr(a)
        a.e(vv("v_bfe_u32 v6, LANE, 4, 1\nv_lshl_add_u32 v7, v6, 5, v7\nv_and_b32 v6, 3, LANE\nv_lshl_add_u32 v4, v6, 3, v7"))
        tr_reads(a)
        a.e(f"s_lshl_b32 s46, s45, 3\ns_lshl_b32 s47, s{SH}, 2\ns_add_u32 s46, s46, s47")
        a.e("s_mul_i32 s47, s45, 26\ns_lshr_b32 s47, s47, 8\ns_mul_i32 s48, s47, 80\ns_sub_u32 s46, s46, s48")
        a.e(vv("v_bfe_u32 v6, LANE, 3, 2\nv_add_u32 v6, s46, v6"))
        a.e(vv("v_mul_u32_u24 v11, 205, v6\nv_lshrrev_b32 v11, 10, v11\nv_mul_u32_u24 v7, 5, v11\nv_sub_u32 v6, v6, v7"))
        a.e("s_mov_b32 s48, 3\ns_mov_b32 s49, 16\ns_cmp_eq_u32 s47, 1\ns_cselect_b32 s48, 0, s48\ns_cselect_b32 s49, 0, s49")
        a.e("s_cmp_eq_u32 s47, 2\ns_cselect_b32 s48, 2, s48\ns_cselect_b32 s49, 8, s49")
        a.e(vv("v_mov_b32 v10, s48\nv_lshlrev_b32 v12, 3, v6\nv_mov_b32 v7, s49\nv_cmp_eq_u32 vcc, 4, v6"))
        a.e(vv("v_cndmask_b32 v10, v10, 1, vcc\nv_cndmask_b32 v12, v12, v7, vcc\nv_and_b32 v7, 7, LANE\nv_add_u32 v12, v12, v7"))
        a.e("s_cmp_eq_u32 s47, 0\ns_cselect_b64 s[54:55], vcc, 0")
        frag_table(a, L.WQKV, L.WQKV_STR)
        tr_stores(a, 54)
    half_loop(a, body)
    a.e("s_lshl_b32 s46, s45, 3\ns_mul_i32 s47, s45, 26\ns_lshr_b32 s47, s47, 8\ns_mul_i32 s47, s47, 80\ns_sub_u32 s46, s46, s47")
    a.e("s_mul_i32 s47, s46, 205\ns_lshr_b32 s47, s47, 10\ns_add_u32 s48, s46, 8")
    a.e(vv("v_lshrrev_b32 v6, 2, LANE\nv_add_u32 v6, s47, v6\nv_and_b32 v7, 3, LANE\nv_lshl_add_u32 v4, v6, 2, v7"))
    a.e(vv("v_mul_u32_u24 v6, 5, v6\nv_add_u32 v7, 5, v6\nv_min_i32 v7, s48, v7\nv_max_i32 v6, s46, v6\nv_sub_u32 v5, v7, v6\nv_cmp_lt_i32 vcc, 0, v5"))
    vsignal(a, 12, L.C_PQKV, spin, own=True)


def proc_w13(a, spin):
    w13_ids(a)

    def body():
        krow_addr(a)
        a.e(vv("v_bfe_u32 v6, LANE, 4, 1\nv_lshl_add_u32 v7, v6, 5, v7"))
        a.e(vv("v_and_b32 v8, 1, LANE\nv_lshl_add_u32 v7, v8, 4, v7\nv_bfe_u32 v8, LANE, 1, 1\nv_lshl_add_u32 v4, v8, 3, v7"))
        tr_reads(a)
        a.e(f"s_lshl_b32 s46, s45, 1\ns_add_u32 s46, s46, s{SH}\ns_and_b32 s47, s46, 15\ns_lshr_b32 s46, s46, 4\ns_lshl_b32 s46, s46, 1\ns_lshl_b32 s48, s51, 4")
        a.e(vv("v_add_u32 v10, s46, v6\nv_mov_b32 v11, s47\nv_and_b32 v12, 15, LANE\nv_add_u32 v12, s48, v12"))
        frag_table(a, L.W13, L.W13_STR)
        tr_stores(a)
    half_loop(a, body)
    a.e("s_lshl_b32 s46, s45, 1\ns_and_b32 s46, s46, 15")
    a.e(vv("v_and_b32 v6, 1, LANE\nv_add_u32 v6, s46, v6\nv_lshrrev_b32 v7, 1, LANE\nv_lshl_add_u32 v4, v6, 2, v7"))
    vsignal(a, 8, L.C_PW13, spin)


def proc_w2(a, spin):
    w2_ids(a)
    a.e(f"s_mov_b32 s49, {L.W2}\ns_mov_b32 s50, {L.W2_STR}\ns_cmp_eq_u32 s51, 1\ns_cselect_b32 s49, {L.WO}, s49\ns_cselect_b32 s50, {L.WO_STR}, s50")
    a.e("s_lshl_b32 s48, s44, 2\ns_mul_i32 s48, s48, s50\ns_add_u32 s49, s49, s48\ns_mul_i32 s48, s45, 5120\ns_add_u32 s49, s49, s48")

    def body():
        stage_base(a, 46)
        a.e(f"s_mul_i32 s47, s{SH}, 320\ns_add_u32 s46, s46, s47")
        a.e(vv("v_lshrrev_b32 v7, 4, LANE\nv_lshlrev_b32 v7, 3, v7\nv_bfe_u32 v8, LANE, 2, 2\nv_add_u32 v7, v7, v8\nv_mul_u32_u24 v7, 640, v7\nv_add_u32 v7, s46, v7"))
        a.e(vv("v_and_b32 v8, 3, LANE\nv_lshl_add_u32 v4, v8, 4, v7\nv_lshl_add_u32 v5, v8, 3, v7"))
        for f in range(10):
            cc, t = divmod(f, 5)
            for u in range(2):
                off = cc * 160 + ((t >> 1) * 64 + (t & 1) * 8 if t < 4 else 128) + u * 4 * 640
                a.ds(vv(f"ds_read_b64_tr_b16 v[{16+4*f+2*u}:{17+4*f+2*u}], v{4 if t < 4 else 5} offset:{off}"), ("t", f))
        for f in range(10):
            cc, t = divmod(f, 5)
            a.wait_ds(("t", f))
            if t < 4:
                a.e(vv(f"buffer_store_dwordx4 v[{16+4*f}:{19+4*f}], L16, {WS}, s49 offen offset:{t*1024} sc1"))
            else:
                a.e(vv(f"s_add_u32 s48, s49, 4096\nbuffer_store_dwordx4 v[{16+4*f}:{19+4*f}], L16, {WS}, s48 offen sc1\ns_add_u32 s49, s49, s50"))
        a.e("s_nop 1")
    half_loop(a, body)
    a.e("s_lshl_b32 s46, s44, 2")
    a.e(vv("v_and_b32 v6, 3, LANE\nv_add_u32 v6, s46, v6\nv_lshrrev_b32 v7, 2, LANE\nv_lshl_add_u32 v4, v6, 2, v7"))
    k = f"s_mov_b32 s46, {L.C_PW2 * 64 * L.CNT_STRIDE}\ns_cmp_eq_u32 s51, 1\ns_cselect_b32 s46, {L.C_PWO * 64 * L.CNT_STRIDE}, s46"
    vsignal(a, 16, k, spin)


def proc_x(a, spin):
    a.e("s_and_b32 s44, s2, 3\ns_lshl_b32 s44, s44, 3\ns_lshr_b32 s45, s2, 2")
    a.e(vv("v_and_b32 v5, 7, LANE\nv_add_u32 v5, s44, v5\nv_lshrrev_b32 v6, 3, LANE"))
    a.e(vv("v_lshlrev_b32 v8, 9, v6\nv_lshl_add_u32 v8, v5, 4, v8\nv_lshlrev_b32 v9, 8, v6\nv_lshl_add_u32 v9, v5, 3, v9"))
    a.e(f"s_mul_i32 s46, s45, 40960\ns_add_u32 s46, s46, {L.LBASE + L.X}\ns_lshl_b32 s47, s45, 11\ns_add_u32 s47, s47, {L.LBASE + L.ST}")
    a.e(vv("s_mov_b32 s48, 0x3f803f80\nv_mov_b32 v12, 0\nv_mov_b32 v13, 0\ns_waitcnt vmcnt(0)"))
    for q in range(10):
        a.e(vv(f"buffer_store_dwordx4 v[{16+4*q}:{19+4*q}], v8, {WS}, s46 offen sc1\ns_add_u32 s46, s46, 4096"))
    for r in range(40):
        a.e(vv(f"v_dot2_f32_bf16 v{12+(r&1)}, v{16+r}, s48, v{12+(r&1)}"))
    a.e(vv(f"v_add_f32 v12, v12, v13\nv_mul_f32 v12, {f32bits(1.0/80)}, v12\nv_mov_b32 v14, 0\nv_mov_b32 v15, 0"))
    for r in range(40):
        t = 56 + 2 * (r & 3)
        a.e(vv(f"v_lshlrev_b32 v{t}, 16, v{16+r}\nv_and_b32 v{t+1}, 0xffff0000, v{16+r}"))
        a.e(vv(f"v_pk_add_f32 v[{t}:{t+1}], v[{t}:{t+1}], v[12:13] op_sel_hi:[1,0] neg_lo:[0,1] neg_hi:[0,1]"))
        a.e(vv(f"v_pk_fma_f32 v[14:15], v[{t}:{t+1}], v[{t}:{t+1}], v[14:15]"))
    a.e(vv(f"v_add_f32 v13, v14, v15\nbuffer_store_dwordx2 v[12:13], v9, {WS}, s47 offen sc1"))
    a.e(vv("v_mov_b32 v4, s45"))
    vsignal(a, 1, L.C_X, spin)


def part1(a, name, late):
    decode(a)
    done = a.label("Ls0p1")
    for role, fn in ((R_QKV, issue_qkv), (R_X, issue_x), (R_BOOT, lambda a: issue_boot(a, name))) + (() if late else ((R_W13, issue_w13), (R_W2, issue_w2))):
        nx = a.label("Ls0n")
        a.e(f"s_cmp_lg_u32 s{SROLE}, {role}\ns_cbranch_scc1 {nx}")
        fn(a)
        a.e(f"s_branch {done}\n{nx}:")
    a.e(f"{done}:")


def part2(a, spin, late):
    done = a.label("Ls0p2")
    for role, iss, fn in ((R_QKV, None, proc_qkv), (R_X, None, proc_x), (R_W13, issue_w13, proc_w13), (R_W2, issue_w2, proc_w2)):
        nx = a.label("Ls0n")
        a.e(f"s_cmp_lg_u32 s{SROLE}, {role}\ns_cbranch_scc1 {nx}")
        if iss and late:
            iss(a)
        fn(a, spin)
        a.e(f"s_branch {done}\n{nx}:")
    a.e(f"{done}:\ns_barrier")
```

```python
import sys, json
from gen_prep import gen_prep, PREP_GRID, PREP_LDS, PREP_BLOCK
from gen_main import gen_main

HDR = open("ref.s.txt").read().split("; Override launch")[0]

NAME = "interleave_layers__linear_attn_block__glu_gated_swiglu__prompt_kernel"


def gen_all(cfg=None, only_prep=False):
    cfg = cfg or {}
    s = HDR
    if cfg.get("fuse", True):
        name = "main_kernel" if cfg.get("aslist", True) else NAME
        mt, mk, a = gen_main(name, cfg)
        if cfg.get("aslist", True):
            s += "; @launch kernel=main_kernel grid=(256,1,1) block=(256,1,1) lds=163840\n"
        else:
            s += "; @launch grid=(256,1,1) block=(256,1,1) lds=163840\n"
        s += '.amdgcn_target "amdgcn-amd-amdhsa--gfx950"\n.text\n' + mt + '.section .rodata,"a"\n' + mk
        return s
    pt, pk = gen_prep("prep_kernel", cfg.get("cpf", True), cfg.get("tlb"), cfg.get("timing"))
    mt, mk, a = gen_main("main_kernel", cfg)
    s += f"; @launch kernel=prep_kernel grid=({PREP_GRID},1,1) block=({PREP_BLOCK},1,1) lds={PREP_LDS}\n"
    s += "; @launch kernel=main_kernel grid=(256,1,1) block=(256,1,1) lds=163840\n"
    s += '.amdgcn_target "amdgcn-amd-amdhsa--gfx950"\n.text\n'
    s += pt + mt
    s += '.section .rodata,"a"\n' + pk + mk
    return s

if __name__ == "__main__":
    cfg = json.loads(sys.argv[2]) if len(sys.argv) > 2 else {}
    open(sys.argv[1], "w").write(gen_all(cfg))
```

```python
from asmcore import *
import layout as L
import gen_stage0 as S0

RING = 156
P1S, SCR, P2S, P3S, P4S, TOT = 0, 164, 192, 292, 540, 780
FIX = RING * 1024
SCRB = (SCR % RING) * 1024
GC_OFF, GC_STR = SCRB, 3360
GB_OFF = GC_OFF + 4 * GC_STR
QT_OFF = GB_OFF + 5120
RS_OFF = FIX
Q1_OFF = FIX + 1024
assert QT_OFF + 4 * 2304 <= SCRB + 28 * 1024
LOG2E = 1.4426950408889634
SPIN = 400000

V_LANE, V_L16, V_T16, V_L16B, V_L16C = 1, 2, 3, 4, 5
V_STL, V_OST, V_HST, V_XS1, V_XS2, V_OUT1, V_OUT2 = 6, 7, 8, 9, 10, 11, 12
V_G0, V_G1, V_GBW, V_GBX, V_GBY = 13, 14, 15, 16, 17
V_QW3, V_QW1, V_QR, V_QR2 = 18, 19, 20, 21
V_C2, V_C3, V_LO = 22, 24, 26
V_RSW, V_RSR, V_STS = 27, 28, 29
V_RES = 32
V_MF = 52
V_ST = 56
V_ACC = 64
V_FIFO = 160
V_TMP = 208
S_W, S_I, S_J, S_LAY, S_LOFF, S_COFF, S_W1K = 3, 14, 15, 16, 17, 18, 19
S_SEG = {P1S: 20, P2S: 21, P3S: 22, P4S: 23}
S_TB32, S_TB16, S_TB32P = 24, 25, 26
S_XA, S_STA, S_OA, S_HA, S_XS, S_STS, S_OS = 27, 28, 29, 30, 31, 32, 33
S_HS = (34, 35, 36)
S_KVS, S_KVR, S_OUT, S_KVC = 38, 39, 40, 41
S_T = 44
S_M210 = 60
S_ONE = 62
S_POLL = 63
S_C256 = 42
SRD_WS, SRD_OUT, SRD_NX = 4, 8, 64
S_DBG = 68
S_A = 70
S_EPS2 = 76
S_ONE2 = 78
S_TS = 80


V_TG = {4: V_T16, 8: 196, 12: 197, 16: 198}
S_WG = {4: S_W1K, 8: 84, 12: 85, 16: 86}
V_T16B, V_T16C, V_T8, V_KVL = 199, 200, 201, 202
S_MKV = 88
S_LO32 = 96
S_RT = 98
V_POI = 204
V_CHK = 203
RETRY = 3000
S_CW = 83
S_PA, S_PB, S_PADDR = 37, 43, 71
A_PARK = 160
INF = 10 ** 9
isdma = lambda t: isinstance(t, tuple) and t[0] == "dma"
isfl = lambda t: isinstance(t, tuple) and t[0] == "flush"


def flat_tags(q):
    for t in q:
        if isinstance(t, frozenset):
            yield from t
        else:
            yield t


class Ring:
    def __init__(self, a, parks):
        self.a = a
        self.next = 0
        self.pub = 0
        self.freed = 0
        self.cons = 0
        self.open = None
        self.parks = parks
        self.parked = {}
        self.maxg = 16
        self.gate = INF
        self.wflag = ""

    def seg(self, pos):
        p = pos % TOT
        for s, e in ((P1S, SCR), (P2S, P3S), (P3S, P4S), (P4S, TOT)):
            if s <= p < e:
                return s, p - s, e - p
        return None

    def skip(self):
        if self.next % TOT == SCR:
            self.next += P2S - SCR

    def park_of(self, pos):
        for s, (e, r) in self.parks.items():
            if s <= pos < e:
                return s
        return None

    def plan(self, limit=INF):
        if self.open:
            return ("dma", 3)
        n = self.next + (P2S - SCR if self.next % TOT == SCR else 0)
        if n >= limit or n >= self.gate or n + 4 - RING > self.freed:
            return None
        pk = self.park_of(n)
        if pk is not None:
            if self.parked.get(pk, 0) <= (n - pk) // 4:
                return None
            return ("flush", 5)
        return ("dma", 5)

    def step(self, limit=INF):
        a = self.a
        p = self.plan(limit)
        assert p is not None
        if not self.open:
            self.skip()
        pos = self.next
        if p[0] == "flush":
            pk = self.park_of(pos)
            q = (pos - pk) // 4
            a.wait_vm(("park", pos))
            addr = (pos % RING) * 1024
            base = (V_T16, V_T16B, V_T16C)[addr >> 16]
            rb = self.parks[pk][1] + 4 * q
            a.ds(f"ds_write_b128 v{base}, a[{rb}:{rb+3}] offset:{addr & 0xffff}", ("flush", pos))
            self.next = pos + 4
            return
        if not self.open:
            s, rel, left = self.seg(pos)
            g = min(self.maxg, left, RING - pos % RING, (self.freed + RING - pos) // 4 * 4, max(4, (limit - pos + 3) // 4 * 4))
            for ps in self.parks:
                if pos < ps:
                    g = min(g, ps - pos)
            assert g >= 4 and g % 4 == 0
            a.e(f"s_add_u32 m0, s{S_WG[g]}, {(pos % RING) * 1024}")
            a.e(f"s_add_u32 s{S_T+15}, s{S_SEG[s]}, {rel * 1024}")
            self.open = [pos, g, 0]
        st, g, k = self.open
        srd = SRD_NX if st >= TOT else SRD_WS
        a.vm(f"buffer_load_dwordx4 v{V_TG[g]}, s[{srd}:{srd+3}], s{S_T+15} offen offset:{k*1024} {self.wflag} lds", ("dma", st))
        self.open[2] += 1
        if self.open[2] == g // 4:
            self.next = st + g
            self.open = None

    def steps(self, maxn=INF, limit=INF):
        n = 0
        while n < maxn and self.plan(limit):
            self.step(limit)
            n += 1
        while self.open and maxn == INF:
            self.step(limit)
        return n

    def park_ready(self, pk):
        return pk in self.parks and pk < self.gate and pk + 4 * self.parked.get(pk, 0) < self.parks[pk][0]

    def park(self, pk):
        a = self.a
        q = self.parked.get(pk, 0)
        pos = pk + 4 * q
        s, rel, left = self.seg(pos)
        rb = self.parks[pk][1] + 4 * q
        a.e(f"s_add_u32 s{S_T+14}, s{S_SEG[s]}, {rel * 1024}")
        a.vm(f"buffer_load_dwordx4 a[{rb}:{rb+3}], v{V_T16}, s[{SRD_WS}:{SRD_WS+3}], s{S_T+14} offen {self.wflag}", ("park", pos))
        self.parked[pk] = q + 1

    def any_step(self, pks=(), limit=INF):
        if self.plan(limit):
            self.step(limit)
            return True
        for pk in pks:
            if self.park_ready(pk):
                self.park(pk)
                return True
        return False

    def barrier(self, need):
        a = self.a
        while need > self.next and not (self.next % TOT == SCR and not self.open and need <= self.next + P2S - SCR):
            self.step()
            self.late = getattr(self, "late", 0) + 1
        a.wait_both(lambda t: isdma(t) and t[1] < need, lambda t: isfl(t) and t[1] < need)
        a.e("s_barrier")
        out = [t[1] for t in a.vm_tags() if isdma(t)] + [t[1] for t in flat_tags(a.lgq) if isfl(t)] + [self.next]
        self.pub = min(out)
        if self.pub % TOT == SCR:
            self.pub += P2S - SCR
        self.freed = max(self.freed, self.cons)

    def read(self, pos, reg):
        assert pos < self.pub, (pos, self.pub)
        addr = (pos % RING) * 1024
        base = (V_L16, V_L16B, V_L16C)[addr >> 16]
        self.a.ds(f"ds_read_b128 v[{reg}:{reg+3}], v{base} offset:{addr & 0xffff}", ("frag", pos))


class Seq:
    def __init__(self, items, force=False, maxper=99):
        self.items = list(items)
        self.force = force
        self.maxper = maxper

    def take(self, sc, g, kinds):
        n = 0
        while self.items and n < self.maxper:
            fn, slots, early, kind = self.items[0]
            if kind not in kinds or early > g:
                return
            if not self.force:
                if slots > sc.free and not (sc.fresh and slots > sc.budget):
                    return
                if kind == "vm" and not sc.vm_ok(g):
                    return
            fn()
            sc.use(slots, kind, g)
            self.items.pop(0)
            n += 1

    def done(self):
        return not self.items

    def flush(self):
        for it in self.items:
            it[0]()
        self.items = []


class Dag:
    def __init__(self, a, ops):
        self.a, self.ops = a, ops
        self.left = list(range(len(ops)))
        self.at = {}
        self.off = 0
        self.keep = False

    def emit(self, k):
        t = self.ops[k][0]
        t() if callable(t) else self.a.e(t)

    def take(self, sc, g, kinds):
        g += self.off
        for k in list(self.left)[:80]:
            text, deps, tr, early = self.ops[k]
            kind = "vm" if callable(text) else ("s" if text.startswith("s_") else "v")
            if early > g or kind not in kinds or any(d not in self.at or self.at[d] >= g for d in deps):
                continue
            slots = 3 if kind == "vm" else (2 if tr else 1)
            if slots > sc.free:
                continue
            self.emit(k)
            sc.use(slots, kind, g - self.off)
            self.at[k] = g
            self.left.remove(k)

    def done(self):
        return not self.left

    def flush(self):
        if self.keep:
            return
        g = 10 ** 6
        while self.left:
            g += 1
            n = 0
            for k in list(self.left):
                if n < 6 and all(d in self.at and self.at[d] < g for d in self.ops[k][1]):
                    self.emit(k)
                    self.at[k] = g
                    self.left.remove(k)
                    n += 1


class RingFill:
    def __init__(self, ring, early=0, limit=INF, park=None, park_early=0, maxn=INF, cheap=False):
        self.cheap = cheap
        self.ring, self.early, self.limit, self.park, self.park_early, self.maxn = ring, early, limit, park, park_early, maxn

    def take(self, sc, g, kinds):
        if "vm" not in kinds:
            return
        r = self.ring
        if g >= self.early and self.maxn > 0:
            p = r.plan(self.limit)
            if p and p[0] == "flush":
                if (p[1] <= sc.free or sc.fresh) and g >= sc.fl_t:
                    r.step(self.limit)
                    sc.use(p[1], "s", g)
                    sc.fl_t = g + sc.fl_per
            elif p and sc.vm_ok(g) and (p[1] <= sc.free or sc.fresh or self.cheap):
                r.step(self.limit)
                sc.use(0 if self.cheap else p[1], "vm", g)
                self.maxn -= 1
                return
        if self.park is not None and g >= self.park_early and r.park_ready(self.park) and sc.vm_ok(g) and (3 <= sc.free or sc.fresh or self.cheap):
            r.park(self.park)
            sc.use(0 if self.cheap else 3, "vm", g)

    def done(self):
        return True

    def flush(self):
        pass


class Sched:
    def __init__(self, streams, budget, period, fl_per=3):
        self.streams, self.budget, self.period = streams, budget, period
        self.vm_t = 0.0
        self.fl_t, self.fl_per = 0, fl_per

    def vm_ok(self, g):
        return self.vm_t <= g

    def use(self, slots, kind, g):
        self.free -= slots
        self.fresh = False
        if kind == "vm":
            per = self.period(g) if callable(self.period) else self.period
            self.vm_t = max(self.vm_t, g - 1.0) + per

    def gap(self, g, used):
        self.free = self.budget - used
        self.fresh = True
        for s in self.streams:
            s.take(self, g, ("vm", "s"))
        for s in self.streams:
            s.take(self, g, ("v", "s"))
            assert g < getattr(s, "deadline", INF) or s.done(), ("deadline", g)

    def finish(self):
        for s in self.streams:
            s.flush()


def run_pass(a, ring, mf, sc, bars, depth, group, hook=None, fifo=V_FIFO, stamps=None, ver=None):
    n = len(mf)
    starts = {}
    m = 0
    while m < n:
        g = group(m) if callable(group) else group
        starts[m] = min(m + g, n) - 1
        m += g
    tags_of = lambda m: {mf[k][1] for k in range(m, starts[m] + 1)}

    def rd(m):
        if m in bars:
            ring.barrier(bars[m])
        ring.read(mf[m][0], fifo + 4 * (m % depth))

    for m in range(min(depth - 1, n)):
        rd(m)
    if hook:
        hook()
    if ver:
        t0 = tags_of(0)
        a.wait_vm(lambda t: t in t0)
        ver.compare(ver.fresh(t0))
        ver.branch()
    todo = []
    for m in range(n):
        if m in starts:
            last = starts[m]
            tags = tags_of(m)
            if ver:
                assert not ver.fresh(tags) and not ver.pending
                tags = tags_of(last + 1) if last + 1 < n else set()
                todo = ver.fresh(tags)
            a.wait_both(lambda t: t in tags, ("frag", mf[last][0]))
            ring.cons = mf[last][0] + 1
        mf[m][2](fifo + 4 * (m % depth))
        used = 0
        if m + depth - 1 < n:
            used += 3 if (m + depth - 1) in bars else 1
            rd(m + depth - 1)
        if m + 1 in starts:
            used += 1
        if ver and ver.pending:
            ver.branch()
            used += 1
        if todo:
            used += ver.cost(todo)
        sc.gap(m, used)
        if todo:
            ver.compare(todo)
            todo = []
        if stamps and m in stamps:
            stamps[m]()
    sc.finish()


class Verifier:
    def __init__(self, a, cfg, rel_sgpr, const, both=lambda s: False):
        self.inc = {L.X: 1, L.O: 1 << 16, L.X1: 1 << 24}[const]
        self.a, self.cfg, self.rel, self.const, self.both = a, cfg, rel_sgpr, const, both
        self.done = set()
        self.pending = None

    def fresh(self, tags):
        return sorted(t[1] for t in tags if isinstance(t, tuple) and t[1] not in self.done)

    def regs(self, steps):
        return [4 * s + d for s in steps for d in ((0, 2) if self.both(s) else (0,))]

    def cost(self, steps):
        return 2 * len(self.regs(steps))

    def cmp_text(self, steps):
        r = self.regs(steps)
        t = [f"v_accvgpr_read_b32 v{V_CHK}, a{r[0]}"]
        for x in r[1:]:
            t += [f"v_accvgpr_read_b32 v23, a{x}", f"v_max_u32 v{V_CHK}, v23, v{V_CHK}"]
        t += [f"v_cmp_eq_u32 vcc, -1, v{V_CHK}"]
        return "\n".join(t)

    def compare(self, steps):
        self.a.e(self.cmp_text(steps))
        self.pending = steps
        self.done.update(steps)

    def branch(self):
        a = self.a
        lr, lb = a.label("Lre"), a.label("Lbk")
        a.e(f"s_cbranch_vccnz {lr}\n{lb}:")
        t = [f"{lr}:", f"s_mov_b32 s{S_RT+1}, 0", f"{lr}_l:"]
        if self.cfg.get("timing"):
            t += [f"s_add_u32 s87, s87, {self.inc}"]
        for s in self.pending:
            t += [f"s_add_u32 s{S_RT}, s{S_LOFF}, s{self.rel}", f"s_add_u32 s{S_RT}, s{S_RT}, {self.const + s * 1024}",
                  f"buffer_load_dwordx4 a[{4*s}:{4*s+3}], v{V_L16}, s[{SRD_WS}:{SRD_WS+3}], s{S_RT} offen sc1"]
        t += ["s_waitcnt vmcnt(0)", self.cmp_text(self.pending), f"s_add_u32 s{S_RT+1}, s{S_RT+1}, 1",
              f"s_cbranch_vccz {lb}", f"s_cmp_lt_u32 s{S_RT+1}, {RETRY}", f"s_cbranch_scc1 {lr}_l", f"s_branch {lb}"]
        self.cfg["_cold"].append("\n".join(t))
        self.pending = None


def vseq(fns, early, kind="v", slots=1):
    return [(f, slots, early, kind) for f in fns]


def aload(a, s, sbase_setup, reg=None, tag="A"):
    if s % 4 == 0:
        sbase_setup(s)
    r = 4 * s if reg is None else reg
    a.vm(f"buffer_load_dwordx4 a[{r}:{r+3}], v{V_L16}, s[{SRD_WS}:{SRD_WS+3}], s{S_A} offen offset:{(s%4)*1024} sc1", (tag, s))


def lines(a, text):
    return [(lambda t=t: a.e(t)) for t in text.strip().split("\n") if t.strip()]


def cnt_off(a, dst, kind, sidx, nextlayer=False):
    c = (kind * 64 + (L.CNT_PER_LAYER if nextlayer else 0)) * L.CNT_STRIDE
    a.e(f"s_lshl_b32 s{dst}, s{sidx}, 8\ns_add_u32 s{dst}, s{dst}, s{S_COFF}")
    if c:
        a.e(f"s_add_u32 s{dst}, s{dst}, {c}")


def signal(a, kind, sidx, nextlayer=False, inc=S_ONE):
    cnt_off(a, S_T + 13, kind, sidx, nextlayer)
    a.e(f"s_atomic_add s{inc}, s[12:13], s{S_T+13}")


def chaos(a, cfg, kind, sidx, nextlayer=False):
    if not cfg.get("chaos"):
        return
    signal(a, kind, sidx, nextlayer)
    lb = a.label("Lchaos")
    a.e(f"s_and_b32 s{S_RT}, s2, {cfg['chaos']}\ns_cbranch_scc0 {lb}\ns_sleep 100\n{lb}:")


def esignal(a, cfg, kind, sidx, nextlayer=False):
    if cfg.get("qwait", False):
        a.wait_vm(lambda t: t not in ("xst", "ost", "kvst"))
    if cfg.get("sdelay"):
        a.e(f"s_sleep {cfg['sdelay']}")
    if not cfg.get("chaos"):
        signal(a, kind, sidx, nextlayer)


def poll_issue(a, kind, sidx):
    cnt_off(a, S_T + 12, kind, sidx)
    a.e(f"s_mov_b32 s{S_POLL}, 0")
    a.e(f"s_atomic_add s{S_POLL}, s[12:13], s{S_T+12} glc")


def poll_check(a, shift=0, target=16):
    lp, ok = a.label("Lpoll"), a.label("Lok")
    a.e(f"s_mov_b32 s{S_T+11}, 0")
    a.e(f"{lp}:")
    a.e("s_waitcnt lgkmcnt(0)")
    a.lgq = []
    a.e(f"s_bfe_u32 s{S_POLL}, s{S_POLL}, {(8 << 16) | shift}")
    a.e(f"s_cmp_ge_u32 s{S_POLL}, {target}\ns_cbranch_scc1 {ok}")
    a.e(f"s_mov_b32 s{S_POLL}, 0")
    a.e(f"s_atomic_add s{S_POLL}, s[12:13], s{S_T+12} glc")
    a.e(f"s_add_u32 s{S_T+11}, s{S_T+11}, 1")
    a.e(f"s_cmp_lt_u32 s{S_T+11}, {SPIN}\ns_cbranch_scc1 {lp}")
    a.e("s_waitcnt lgkmcnt(0)")
    a.e(f"{ok}:")


def poll2_a(a, kind, sidx):
    cnt_off(a, S_PADDR, kind, sidx)
    a.e(f"s_mov_b32 s{S_PA}, 0\ns_mov_b32 s{S_PB}, 0")
    a.e(f"s_atomic_umax s{S_PA}, s[12:13], s{S_PADDR} glc")


def poll2_check(a, cfg, target=16):
    lp, ok = a.label("Lpoll"), a.label("Lok")
    T_ = S_T + 11
    n_lds = len(a.lgq)
    a.e(f"s_atomic_umax s{S_PB}, s[12:13], s{S_PADDR} glc")
    a.e(f"s_mov_b32 s{T_}, 0")
    a.e(f"{lp}:")
    for r in (S_PA, S_PB):
        a.e("s_waitcnt lgkmcnt(1)")
        a.e(f"s_max_u32 s{S_RT}, s{S_PA}, s{S_PB}\ns_and_b32 s{S_RT}, s{S_RT}, 0xff")
        a.e(f"s_cmp_ge_u32 s{S_RT}, {target}\ns_cbranch_scc1 {ok}")
        a.e(f"s_atomic_umax s{r}, s[12:13], s{S_PADDR} glc")
    a.e(f"s_add_u32 s{T_}, s{T_}, 1\ns_cmp_lt_u32 s{T_}, {SPIN}\ns_cbranch_scc1 {lp}")
    a.e(f"{ok}:")
    a.lgq = a.lgq[-1:]


def gap_issue(a, cfg, kind, sidx):
    (poll2_a if cfg.get("dual", True) else poll_issue)(a, kind, sidx)


def gap_check(a, cfg):
    if cfg.get("dual", True):
        if cfg.get("dsleep"):
            a.e(f"s_sleep {cfg['dsleep']}")
        poll2_check(a, cfg)
    else:
        poll_check(a)


def poll(a, kind, sidx, shift=0):
    poll_issue(a, kind, sidx)
    poll_check(a, shift)


def a_setup(a, rel_sgpr, const):
    def f(s):
        if s == 0:
            a.e(f"s_add_u32 s{S_A}, s{S_LOFF}, s{rel_sgpr}\ns_add_u32 s{S_A}, s{S_A}, {const}")
        else:
            a.e(f"s_add_u32 s{S_A}, s{S_A}, 4096")
    return f


def stats_load(a, const):
    a.e(f"s_add_u32 s{S_T}, s{S_LOFF}, s{S_STA}\ns_add_u32 s{S_T}, s{S_T}, {const}")
    for n in range(4):
        a.vm(f"buffer_load_dwordx2 v[{V_ST+2*n}:{V_ST+2*n+1}], v{V_STL}, s[{SRD_WS}:{SRD_WS+3}], s{S_T} offen offset:{n*256} sc1", "st")


def stats_math(a, t):
    S = V_ST
    f = [lambda: a.wait_vm("st")]
    f += lines(a, f"""
v_add_f32 v{t}, v{S}, v{S+2}
v_add_f32 v{t+1}, v{S+4}, v{S+6}
v_add_f32 v{t}, v{t}, v{t+1}
v_mov_b32 v{t+1}, v{t}
v_permlane32_swap_b32 v{t}, v{t+1}
v_add_f32 v{t}, v{t}, v{t+1}
v_mul_f32 v{t}, {f32bits(-0.125)}, v{t}
""")
    for n in range(4):
        f += lines(a, f"""
v_add_f32 v{t+1}, v{S+2*n}, v{t}
v_mul_f32 v{t+1}, v{t+1}, v{t+1}
v_fmac_f32 v{S+2*n+1}, {f32bits(80.0)}, v{t+1}
""")
    f += lines(a, f"""
v_add_f32 v{t+1}, v{S+1}, v{S+3}
v_add_f32 v{t+2}, v{S+5}, v{S+7}
v_add_f32 v{t+1}, v{t+1}, v{t+2}
v_mov_b32 v{t+2}, v{t+1}
v_permlane32_swap_b32 v{t+1}, v{t+2}
v_add_f32 v{t+1}, v{t+1}, v{t+2}
v_mov_b32 v{t+2}, {f32bits(1e-5)}
v_fmac_f32 v{t+2}, {f32bits(1.0/640)}, v{t+1}
v_rsq_f32 v{S}, v{t+2}
v_cvt_pk_bf16_f32 v{t+1}, v{t}, v{t}
v_and_b32 v{t+1}, 0xffff0000, v{t+1}
v_sub_f32 v{t+1}, v{t}, v{t+1}
v_cvt_pk_bf16_f32 v{V_MF}, v{t}, v{t+1}
v_mov_b32 v{V_MF+1}, v{V_MF}
v_mov_b32 v{V_MF+2}, v{V_MF}
v_mov_b32 v{V_MF+3}, v{V_MF}
""")
    return f


def stamp(a, name, cfg, level=1, real=False):
    if cfg.get("spin"):
        if name == "start":
            a.e("s_memrealtime s[100:101]\ns_waitcnt lgkmcnt(0)")
        elif name == cfg["spin"][0] and not cfg.get("_spun"):
            cfg["_spun"] = True
            lp = a.label("Lspin")
            a.e(f"{lp}:\ns_memrealtime s[90:91]\ns_waitcnt lgkmcnt(0)\ns_sub_u32 s90, s90, s100\ns_cmp_lt_u32 s90, {cfg['spin'][1]}\ns_cbranch_scc1 {lp}")
            a.lgq = []
        return
    if not cfg.get("timing") or level > cfg.get("level", 1):
        return
    if (name in ("start", "end") or cfg.get("allrt")) and not real:
        stamp(a, name, cfg, level, True)
        if cfg.get("allrt") and name not in ("start", "end"):
            return
    names = cfg["_stamps"]
    key = ("rt_" if real else "") + name
    if key not in names:
        names.append(key)
    n = names.index(key)
    pend = cfg["_pend"]
    k = cfg["_k"][0]
    cfg["_k"][0] += 1
    pair = 90 + 2 * (k % 3)
    if len(pend) == 2:
        p, idx = pend.pop(0)
        a.e(f"v_writelane_b32 v31, s{p}, {idx}")
    a.e(f"{'s_memrealtime' if real else 's_memtime'} s[{pair}:{pair+1}]")
    pend.append((pair, n))
    if name == "end" and not real:
        stamp_flush(a, cfg, True)


def stamp_flush(a, cfg, store=False):
    if not cfg.get("timing"):
        return
    a.e("s_waitcnt lgkmcnt(0)")
    a.lgq = []
    while cfg["_pend"]:
        p, idx = cfg["_pend"].pop(0)
        a.e(f"v_writelane_b32 v31, s{p}, {idx}")
    cfg["_k"][0] = 0
    if store:
        a.e("v_writelane_b32 v31, s87, 63\ns_mov_b32 s87, 0")
        a.e(f"s_add_u32 s{S_TS+1}, s{S_TS+2}, {256 * cfg['_slot']}")
        a.vm(f"buffer_store_dword v31, v30, s[72:75], s{S_TS+1} offen", "stamp")
        a.e("s_nop 1\nv_mov_b32 v31, 0")


def phi_tile(a, acc, dst, R, RL, t, mixed):
    f = []
    for p in range(8):
        r = 2 * p
        u, e = t + 4 * (p & 1), t + 4 * (p & 1) + 2
        if mixed:
            f += lines(a, f"""
v_pk_fma_f32 v[{e}:{e+1}], v[{acc+r}:{acc+r+1}], v[{RL+r}:{RL+r+1}], v[{V_C2}:{V_C2+1}] op_sel_hi:[1,1,0]
v_pk_fma_f32 v[{u}:{u+1}], v[{acc+r}:{acc+r+1}], v[{R+r}:{R+r+1}], v[{V_C3}:{V_C3+1}] op_sel_hi:[1,1,0]
v_exp_f32 v{e}, v{e} clamp
v_exp_f32 v{e+1}, v{e+1} clamp
v_max_f32 v{u}, v{V_LO}, v{u}
v_max_f32 v{u+1}, v{V_LO}, v{u+1}
""")
        else:
            f += lines(a, f"""
v_pk_mul_f32 v[{e}:{e+1}], v[{acc+r}:{acc+r+1}], v[{RL+r}:{RL+r+1}]
v_pk_fma_f32 v[{u}:{u+1}], v[{acc+r}:{acc+r+1}], v[{R+r}:{R+r+1}], s[{S_EPS2}:{S_EPS2+1}]
v_exp_f32 v{e}, v{e} clamp
v_exp_f32 v{e+1}, v{e+1} clamp
v_max_f32 v{u}, s{S_EPS2}, v{u}
v_max_f32 v{u+1}, s{S_EPS2}, v{u+1}
""")
        f += lines(a, f"""
v_pk_add_f32 v[{u}:{u+1}], v[{u}:{u+1}], v[{e}:{e+1}]
v_cvt_pk_bf16_f32 v{dst+p}, v{u}, v{u+1}
""")
    return f


def set_exec(a, lo, hi):
    a.e(f"s_mov_b32 exec_lo, {lo:#x}\ns_mov_b32 exec_hi, {hi:#x}")


def lanemask(fn):
    m = 0
    for l in range(64):
        if fn(l):
            m |= 1 << l
    return m & 0xffffffff, m >> 32


T32 = [V_ACC + 16 * t for t in range(6)]
P1_R, P1_RL = V_TMP, V_TMP + 16
P1_PT = [144, 152, 240]
P1_TT = 248
PK3 = P3S + 156
PK3A = P3S + 52
G32 = lambda m: 3 if m < 60 else (4 if m < 100 else (2 if m == 100 else 3))


def mk32(a, pos, t, s, wfirst):
    def f(b):
        x = f"a[{4*s}:{4*s+3}]" if s < 40 else f"v[{V_MF}:{V_MF+3}]"
        c = "0" if s == 0 else f"v[{T32[t]}:{T32[t]+15}]"
        w = f"v[{b}:{b+3}]"
        p, q = (w, x) if wfirst else (x, w)
        a.e(f"v_mfma_f32_32x32x16_bf16 v[{T32[t]}:{T32[t]+15}], {p}, {q}, {c}")
    return (pos, ("A", s) if s < 40 else "none", f)


def panel(a, base, tiles, wfirst):
    return sorted((mk32(a, base + L.fragpos(t, s), t, s, wfirst) for t in tiles for s in range(41)), key=lambda x: x[0])


def poison_items(a, what, early, step=3):
    W = f"s[{SRD_WS}:{SRD_WS+3}]"
    P4, P2 = f"v[{V_POI}:{V_POI+3}]", f"v[{V_POI}:{V_POI+1}]"
    T_ = S_T + 10
    tag = ("poison", what)
    if what == "kv":
        def f():
            a.e(f"s_add_u32 s{T_}, s{S_LOFF}, s{S_KVS}\ns_mov_b64 exec, s[{S_M210}:{S_M210+1}]")
            a.vm(f"buffer_store_dwordx2 {P2}, v{V_T8}, {W}, s{T_} offen sc1", tag)
            a.e("s_mov_b64 exec, -1")
        fs = [f]
    elif what == "o":
        def f0():
            a.e(f"s_add_u32 s{T_}, s{S_LOFF}, s{S_OS}")
            a.vm(f"buffer_store_dwordx4 {P4}, v{V_OST}, {W}, s{T_} offen sc1", tag)
        fs = [f0, lambda: a.vm(f"buffer_store_dwordx4 {P4}, v{V_OST}, {W}, s{T_} offen offset:512 sc1", tag),
              lambda: a.vm(f"buffer_store_dwordx4 {P4}, v{V_OST}, {W}, s{T_} offen offset:768 sc1", tag)]
    else:
        const = L.X1 if what == "x1" else L.LSTR + L.X
        srd = W if what == "x1" else f"s[{SRD_NX}:{SRD_NX+3}]"

        def f0():
            a.e(f"s_add_u32 s{T_}, s{S_LOFF}, s{S_XS}\ns_add_u32 s{T_}, s{T_}, {const}")
            a.vm(f"buffer_store_dwordx4 {P4}, v{V_XS1}, {srd}, s{T_} offen sc1", tag)
        fs = [f0, lambda: a.vm(f"buffer_store_dwordx4 {P4}, v{V_XS1}, {srd}, s{T_} offen offset:2048 sc1", tag),
              lambda: a.vm(f"buffer_store_dwordx2 {P2}, v{V_XS2}, {srd}, s{T_} offen sc1", tag)]
    return [(f_, 4, early + step * k, "vm") for k, f_ in enumerate(fs)]


def stats_seq(a, cfg, kind, const, tail, polled=True):
    it = []
    p0 = cfg.get("stp", 20)
    if polled and cfg.get("early", True):
        it += [(lambda: (a.wait_vm(lambda t: t in ("sst", "old")), a.e(f"s_atomic_add s{S_C256}, s[12:13], s{S_T+9}")), 2, 0, "s")]
    if polled:
        it += [(lambda: poll_issue(a, kind, S_TB32), 5, p0, "s"),
               (lambda: poll_check(a, 8), 6, p0 + 24, "s"),
               (lambda: stats_load(a, const), 10, p0 + 25, "s")]
    m = Seq(vseq(stats_math(a, P1_TT) + tail, cfg.get("stm", 74)), maxper=3)
    m.deadline = 97
    return [Seq(it, force=True, maxper=1), m]


def phi_ops(acc, dst, R, RL, tmp, early):
    ops = []
    last = {}
    for r in range(16):
        e = tmp + r % 8
        x = acc + r
        b = len(ops)
        ops.append((f"v_mul_f32 v{e}, v{x}, v{RL+r}", [last[e]] if e in last else [], False, early))
        ops.append((f"v_exp_f32 v{e}, v{e} clamp", [b], True, early))
        ops.append((f"v_fma_f32 v{x}, v{x}, v{R+r}, s{S_EPS2}", [b], False, early))
        ops.append((f"v_max_f32 v{x}, s{S_EPS2}, v{x}", [b + 2], False, early))
        ops.append((f"v_add_f32 v{x}, v{x}, v{e}", [b + 1, b + 3], False, early))
        last[e] = b + 4
        if r & 1:
            ops.append((f"v_cvt_pk_bf16_f32 v{dst + (r >> 1)}, v{x-1}, v{x}", [b - 1, b + 4], False, early))
    return ops


def phase1(a, ring, cfg, first):
    AW = cfg.get("aw", 10)
    T, R, RL, PT, tt = T32, P1_R, P1_RL, P1_PT, P1_TT
    park = True
    early = cfg.get("early", True)
    ver = None
    pz = Seq(poison_items(a, "kv", cfg.get("pz1", 76)) + poison_items(a, "o", cfg.get("pz1", 76) + 4) if early else [], force=True, maxper=1)
    setup = a_setup(a, S_XA, L.X)
    mf = panel(a, P1S, (0, 1, 2), False)
    tail = lines(a, f"v_mul_f32 v{tt}, {f32bits(LOG2E)}, v{V_ST}\nv_cndmask_b32 v{tt}, v{tt}, v{V_ST}, s[{S_LO32}:{S_LO32+1}]")
    tail += [lambda: a.ds(f"ds_write_b32 v{V_RSW}, v{tt}", "rs")]
    for i in range(4):
        tail += [lambda i=i: a.ds(f"ds_read_b128 v[{R+4*i}:{R+4*i+3}], v{V_RSR} offset:{32*i}", "rs")]
        tail += [lambda i=i: a.ds(f"ds_read_b128 v[{RL+4*i}:{RL+4*i+3}], v{V_RSR} offset:{128+32*i}", "rs")]
    z = vseq(lines(a, f"v_mov_b32 v{tt+4}, 0\nv_mov_b32 v{tt+5}, 0\nv_mov_b32 v{tt+6}, 0\nv_mov_b32 v{tt+7}, 0"), 50)
    z += [(lambda: a.ds(f"ds_write_b128 v{V_T16}, v[{tt+4}:{tt+7}] offset:{GB_OFF}", "z"), 5, 66, "v"),
          (lambda: a.ds(f"ds_write_b128 v{V_T16}, v[{tt+4}:{tt+7}] offset:{GB_OFF+1024}", "z"), 5, 68, "v")]
    zs = Seq(z, maxper=3, force=True)
    d0 = Dag(a, [(lambda: a.wait_ds("rs"), [], False, 101)] + [(t_, [0] + [d + 1 for d in dp], tr, e) for t_, dp, tr, e in phi_ops(T[0], PT[0], R, RL, 112, 102)])
    if first:
        LA = cfg.get("la0", 3)
        ring.maxg = 12
        it = []
        done_a = cfg["_a0"]
        for blk in range(LA, 11):
            e = 12 * (blk - LA)
            need = [s for s in range(done_a, 40) if L.fragpos(0, s) < 12 * blk + 12]
            done_a += len(need)
            ops = [((lambda b=blk: ring.step(min(12 * b + 12, 124))), 4) for k in range(3 if blk < 10 else 1)]
            ops += [((lambda s=s: aload(a, s, setup)), 2) for s in need]
            it += [(f_, sl, e + int(k * 12 / len(ops)), "vm") for k, (f_, sl) in enumerate(ops)]
        pp = []
        if cfg.get("fuse", True):
            def chk(target, gate):
                def f():
                    poll_check(a, 0, target)
                    ring.gate = gate
                return f
            g0 = cfg.get("pkpoll", 30)
            for n_, (kind, idx, target, gate) in enumerate(((L.C_PWO, S_CW, 20, P3S), (L.C_PW13, S_KVC, 24, P4S), (L.C_PW2, S_CW, 48, INF))):
                pp += [((lambda kind=kind, idx=idx: poll_issue(a, kind, idx)), 5, g0 + 22 * n_, "s"), (chk(target, gate), 6, g0 + 22 * n_ + 20, "s")]
        sc = Sched([Seq(it, force=True, maxper=2), Seq(pp, force=True, maxper=1), pz, d0, RingFill(ring, 12 * (11 - LA), 164), zs] +
                   stats_seq(a, cfg, None, L.ST, tail, polled=False), 6, 2.0)
        bars = {12 * k: min(12 * k + 12, 123) for k in range(11)}
        hook = None
    else:
        ap = cfg.get("aper", 2.3)
        al = Seq([((lambda s=s: aload(a, s, setup)), 2, int(ap * (s - AW)), "vm") for s in range(AW, 40)], force=True, maxper=1)
        if early:
            ver = Verifier(a, cfg, S_XA, L.X, lambda s_: s_ % 5 == 4)
        sc = Sched([al, pz, d0] + stats_seq(a, cfg, L.C_X, L.ST, tail) + [RingFill(ring, 0, cfg.get("lim1a", 240), PK3 if park else None, 60, cheap=True), zs], 6, cfg.get("per1", 2.3))
        bars = {0: 48, 48: 72, 72: 96, 96: 123}

        def hook():
            gap_check(a, cfg)
            cfg["_slot"] = 0
            stamp(a, "end", cfg, 0)
            for s in range(AW):
                aload(a, s, setup)
    run_pass(a, ring, mf, sc, bars, cfg.get("d32", 9), G32, hook, ver=ver)
    ring.maxg = 16
    assert ring.freed >= P2S - RING, ring.freed
    cfg["_info"].append(f"P1a({first}): ring.next {ring.next} parked {ring.parked} late {getattr(ring, 'late', 0)}")
    stamp(a, "P1a done", cfg)
    if first:
        P = 128
        a.wait_vm("res")
        for p in range(10):
            a.e(f"v_lshlrev_b32 v{V_RES+2*p}, 16, v{P+p}\nv_and_b32 v{V_RES+2*p+1}, 0xffff0000, v{P+p}")
    KVA = [80, 64, 96, 128]
    pairs = [(0, 2), (0, 1), (1, 2), (1, 1)]

    def kvm(b, u):
        x, y = pairs[b]
        c = "0" if u == 0 else f"v[{KVA[b]}:{KVA[b]+15}]"
        a.e(f"v_mfma_f32_32x32x16_bf16 v[{KVA[b]}:{KVA[b]+15}], v[{PT[x]+4*u}:{PT[x]+4*u+3}], v[{PT[y]+4*u}:{PT[y]+4*u+3}], {c}")
    f = phi_tile(a, T[1], PT[1], R, RL, tt, True)
    for k, g in enumerate(f):
        g()
        if k % cfg.get("pk_every", 14) == 0:
            ring.any_step((PK3,))
    stamp(a, "phi done", cfg, 3)
    for n, (b, u) in enumerate(((1, 0), (1, 1), (3, 0), (3, 1))):
        kvm(b, u)
        if n & 1 and cfg.get("pk_kv", 1):
            ring.any_step((PK3,))
        for p in (2 * n, 2 * n + 1):
            a.e(f"v_mul_f32 v{T[2]+2*p}, v{T[2]+2*p}, v{R+2*p}\nv_mul_f32 v{T[2]+2*p+1}, v{T[2]+2*p+1}, v{R+2*p+1}")
        for p in (2 * n, 2 * n + 1):
            a.e(f"v_cvt_pk_bf16_f32 v{PT[2]+p}, v{T[2]+2*p}, v{T[2]+2*p+1}")
    rho = lambda l, i: 8 * i + 4 * (l >> 5)
    for i, (b, u) in enumerate(((0, 0), (0, 1), (2, 0), (2, 1))):
        if i:
            a.e("s_mov_b64 exec, -1")
        kvm(b, u)
        if cfg.get("pk_kv", 1):
            ring.any_step((PK3,))
        set_exec(a, *lanemask(lambda l: (l & 31) == 24 or (8 <= (l & 31) < 16 and rho(l, i) >= 20)))
        a.ds(f"ds_write_b128 v{V_G1}, v[{KVA[1]+4*i}:{KVA[1]+4*i+3}] offset:{32*i}", "g")
    set_exec(a, *lanemask(lambda l: 8 <= (l & 31) < 16 or (l & 31) == 24))
    a.ds(f"ds_write_b128 v{V_G1}, v[{KVA[3]}:{KVA[3]+3}] offset:128", "g")
    for i in range(4):
        set_exec(a, *lanemask(lambda l: ((l & 31) < 20) == (rho(l, i) < 20)))
        a.ds(f"ds_write_b128 v{V_G0}, v[{KVA[0]+4*i}:{KVA[0]+4*i+3}] offset:{32*i}", "g")
    set_exec(a, *lanemask(lambda l: (l & 31) >= 20))
    a.ds(f"ds_write_b128 v{V_G0}, v[{KVA[2]}:{KVA[2]+3}] offset:128", "g")
    a.e("s_mov_b64 exec, -1")
    a.wait_ds_all()
    stamp(a, "G written", cfg, 3)
    ring.barrier(P1S + 164)
    for w in range(4):
        a.ds(f"ds_read_b128 v[{64+4*w}:{67+4*w}], v{V_T16} offset:{GC_OFF + w*GC_STR}", "g")
    a.e(f"s_add_u32 s{S_T}, s{S_LOFF}, s{S_KVS}")

    def kvstore():
        a.wait_ds("g")
        a.e("v_pk_add_f32 v[64:65], v[64:65], v[68:69]\nv_pk_add_f32 v[66:67], v[66:67], v[70:71]")
        a.e("v_pk_add_f32 v[72:73], v[72:73], v[76:77]\nv_pk_add_f32 v[74:75], v[74:75], v[78:79]")
        a.e("v_pk_add_f32 v[64:65], v[64:65], v[72:73]\nv_pk_add_f32 v[66:67], v[66:67], v[74:75]")
        a.e("v_cvt_pk_bf16_f32 v68, v64, v65\nv_cvt_pk_bf16_f32 v69, v66, v67")
        a.wait_vm(("poison", "kv"))
        chaos(a, cfg, L.C_KV, S_KVC)
        a.e(f"s_mov_b64 exec, s[{S_M210}:{S_M210+1}]")
        a.vm(f"buffer_store_dwordx2 v[68:69], v{V_T8}, s[{SRD_WS}:{SRD_WS+3}], s{S_T} offen sc1", "kvst")
        if early:
            esignal(a, cfg, L.C_KV, S_KVC)
        set_exec(a, 0x00FF0000, 0x00FF0000)
        for i in range(4):
            a.ds(f"ds_write_b64 v{V_QW1}, v[{PT[1]+2*i}:{PT[1]+2*i+1}] offset:{16*i}", "q")
        a.e("s_mov_b64 exec, -1")
        stamp(a, "kv stored", cfg)
    mf = panel(a, P1S, (3,), False)
    if early:
        sg = Seq(poison_items(a, "x1", 2) + [(lambda: poll_issue(a, L.C_KV, S_KVC), 5, cfg.get("kvp", 18), "s")], force=True, maxper=1)
    else:
        sg = Seq([(lambda: (a.wait_vm("kvst"), signal(a, L.C_KV, S_KVC)), 5, cfg.get("kvsig", 22), "s")], force=True)
    sc = Sched([sg, RingFill(ring, 0, INF, PK3 if park else None, 0, maxn=cfg.get("n1b", 17))], 6, cfg.get("per1b", 2.4))
    run_pass(a, ring, mf, sc, {cfg.get("b1b", 24): 0}, cfg.get("d32", 9), 3, kvstore)

    def kvload():
        a.e(f"s_add_u32 s{S_T}, s{S_LOFF}, s{S_KVR}")
        a.e(f"s_mov_b64 exec, s[{S_MKV}:{S_MKV+1}]")
        for i in range(8):
            a.vm(f"buffer_load_dwordx4 v[{72+4*i}:{75+4*i}], v{V_KVL}, s[{SRD_WS}:{SRD_WS+3}], s{S_T} offen sc1", ("kv", i))
            if i < 7:
                a.e(f"s_add_u32 s{S_T}, s{S_T}, {2 * L.KV_STR}")
        a.e("s_mov_b64 exec, -1")
    if early:
        stamp(a, "P1b done", cfg)
        poll_check(a)
        stamp(a, "kv polled", cfg)
        kvload()
    f = phi_tile(a, T[3], PT[0], R, RL, tt, False)
    for k, g in enumerate(f):
        g()
        if not early and k == cfg.get("kvpoll", 8):
            poll_issue(a, L.C_KV, S_KVC)
        if k % cfg.get("pk_t3", 16) == 12:
            ring.any_step((PK3A, PK3), P2S + 100)
    for i in range(4):
        a.ds(f"ds_write_b64 v{V_QW3}, v[{PT[0]+2*i}:{PT[0]+2*i+1}] offset:{16*i}", "q")
    if not early:
        stamp(a, "P1b done", cfg)
        poll_check(a)
        stamp(a, "kv polled", cfg)
        kvload()
    PQ = 144
    for s in range(2):
        for u in range(2):
            a.ds(f"ds_read_b64_tr_b16 v[{PQ+4*s+2*u}:{PQ+4*s+2*u+1}], v{V_QR} offset:{(16*s+4*u)*72}", "pq")
    for u in range(2):
        a.ds(f"ds_read_b64_tr_b16 v[{PQ+8+2*u}:{PQ+8+2*u+1}], v{V_QR2} offset:{4*u*72}", "pq")
    for k in range(cfg.get("dmakv", 2)):
        ring.any_step((PK3A, PK3), P2S + 100)
    stamp(a, "kv issued", cfg, 3)
    lsum, lre = a.label("Lkvsum"), a.label("Lkvre")
    a.e(f"s_mov_b32 s{S_RT+1}, 0\n{lsum}:")
    for i in range(8):
        if i % 2 == 0:
            a.wait_vm(("kv", i + 1))
            if i in (0, 6):
                stamp(a, f"kv got{i}", cfg, 3)
        for c in range(4):
            src = 72 + 4 * i + c
            if i == 0:
                a.e(f"v_lshlrev_b32 v{64+2*c}, 16, v{src}\nv_and_b32 v{65+2*c}, 0xffff0000, v{src}")
            else:
                t_ = 104 + 2 * c
                a.e(f"v_lshlrev_b32 v{t_}, 16, v{src}\nv_and_b32 v{t_+1}, 0xffff0000, v{src}")
        if i:
            for c in range(4):
                a.e(f"v_pk_add_f32 v[{64+2*c}:{65+2*c}], v[{64+2*c}:{65+2*c}], v[{104+2*c}:{105+2*c}]")
    if early:
        a.e("v_max_u32 v112, v72, v74")
        for i in range(1, 8):
            a.e(f"v_max3_u32 v112, v{72+4*i}, v{74+4*i}, v112")
        a.e(f"v_cmp_eq_u32 vcc, -1, v112\ns_and_b64 vcc, vcc, s[{S_MKV}:{S_MKV+1}]\ns_cbranch_scc1 {lre}\n{lre}_b:")
        b = Asm()
        b.e(f"{lre}:\n" + ("s_add_u32 s87, s87, 256\n" if cfg.get("timing") else "") + f"s_add_u32 s{S_RT+1}, s{S_RT+1}, 1\ns_cmp_ge_u32 s{S_RT+1}, {RETRY}\ns_cbranch_scc1 {lre}_b")
        keep, a.out = a.out, b.out
        svq = list(a.vmq)
        kvload()
        a.e(f"s_waitcnt vmcnt(0)\ns_branch {lsum}")
        a.vmq = svq
        cfg["_cold"].append("\n".join(x.text for x in a.out))
        a.out = keep
    for k in range(cfg.get("dmasum", 6)):
        ring.any_step((PK3A, PK3), P2S + 100)
    for k in range(4):
        a.e(f"v_permlane32_swap_b32 v{64+k}, v{68+k}")
    a.e("v_pk_add_f32 v[64:65], v[64:65], v[68:69]\nv_pk_add_f32 v[66:67], v[66:67], v[70:71]")
    a.e("v_cvt_pk_bf16_f32 v68, v64, v65\nv_cvt_pk_bf16_f32 v69, v66, v67")
    a.e(f"s_mov_b64 exec, s[{S_MKV}:{S_MKV+1}]")
    a.ds(f"ds_write_b64 v{V_GBW}, v[68:69]", "gb")
    a.e("s_mov_b64 exec, -1")
    a.wait_ds_all()
    stamp(a, "kv summed", cfg)
    stamp_flush(a, cfg)
    ring.barrier(0)
    GX, GY, DX, DY = 208, 220, 64, 80
    for s in range(3):
        a.ds(f"ds_read_b128 v[{GY+4*s}:{GY+4*s+3}], v{V_GBY} offset:{32*s}", ("gy", s))
    for s in range(3):
        a.ds(f"ds_read_b128 v[{GX+4*s}:{GX+4*s+3}], v{V_GBX} offset:{32*s}", ("gx", s))
    for s in range(3):
        a.wait_ds(("gy", s))
        c = "0" if s == 0 else f"v[{DY}:{DY+15}]"
        a.e(f"v_mfma_f32_32x32x16_bf16 v[{DY}:{DY+15}], v[{GY+4*s}:{GY+4*s+3}], v[{PQ+4*s}:{PQ+4*s+3}], {c}")
    for s in range(3):
        a.wait_ds(("gx", s))
        c = "0" if s == 0 else f"v[{DX}:{DX+15}]"
        a.e(f"v_mfma_f32_32x32x16_bf16 v[{DX}:{DX+15}], v[{GX+4*s}:{GX+4*s+3}], v[{PQ+4*s}:{PQ+4*s+3}], {c}")
    a.e(f"s_add_u32 s{S_T}, s{S_LOFF}, s{S_OS}")
    r0, r1 = 232, 234
    a.e(f"v_add_f32 v{r0}, s{S_EPS2}, v{DY+8}\nv_add_f32 v{r1}, s{S_EPS2}, v{DY+9}")
    a.e(f"v_rcp_f32 v{r0}, v{r0}\nv_rcp_f32 v{r1}, v{r1}")
    OP = 236
    a.wait_vm(("poison", "o"))
    chaos(a, cfg, L.C_O, S_TB32)
    for (src, rr, dst, off) in ((DY, (r0, r1), OP + 8, 512), (DX, (r0, r0), OP, 0), (DX + 8, (r1, r1), OP + 4, 768)):
        for p in range(4):
            r = rr[p >> 1]
            a.e(f"v_pk_mul_f32 v[{src+2*p}:{src+2*p+1}], v[{src+2*p}:{src+2*p+1}], v[{r}:{r+1}] op_sel_hi:[1,0]")
        for p in range(4):
            a.e(f"v_cvt_pk_bf16_f32 v{dst+p}, v{src+2*p}, v{src+2*p+1}")
        if off == 512:
            a.e("s_mov_b32 exec_hi, 0")
        a.vm(f"buffer_store_dwordx4 v[{dst}:{dst+3}], v{V_OST}, s[{SRD_WS}:{SRD_WS+3}], s{S_T} offen offset:{off} sc1", "ost")
        if off == 512:
            a.e("s_mov_b64 exec, -1")
    stamp(a, "o stored", cfg)
    if not early:
        ring.steps(cfg.get("dmao", 8))
        a.wait_vm("ost")
    esignal(a, cfg, L.C_O, S_TB32)
    stamp(a, "o sig", cfg, 3)
    n = ring.steps(limit=P2S + 100)
    n1, n2 = cfg.get("eo0" if first else "eo", (2, 4))
    for k in range(n1):
        ring.park(PK3A) if ring.park_ready(PK3A) else ring.any_step((PK3,))
    gap_issue(a, cfg, L.C_O, S_TB32P)
    for k in range(n2):
        ring.park(PK3A) if ring.park_ready(PK3A) else ring.any_step((PK3,))
    cfg["_info"].append(f"P1({first}) end: ring.next {ring.next} late parks {n}")
    ring.cons = P2S
    a.wait_vm(lambda t: isdma(t) and t[1] < P2S + 100)
    stamp(a, "o signalled", cfg, 4)


def next_layer(a):
    a.e(f"s_mov_b32 s{S_LAY}, 1\ns_mov_b32 s{S_LOFF}, {L.LBASE + L.LSTR}\ns_mov_b32 s{S_COFF}, {L.CNT_PER_LAYER * L.CNT_STRIDE}")


def out_epilogue(a, ring, cfg, xconst, stconst, kind, nextlayer, final_branch):
    P = V_TMP
    a.e(f"s_add_u32 s{S_T}, s{S_LOFF}, s{S_XS}\ns_add_u32 s{S_T}, s{S_T}, {xconst}")
    for p in range(10):
        a.e(f"v_cvt_pk_bf16_f32 v{P+p}, v{V_RES+2*p}, v{V_RES+2*p+1}")
    if final_branch:
        cfg["_final"] = (list(cfg["_pend"]), cfg["_k"][0])
        a.e(f"s_cmp_eq_u32 s{S_LAY}, 1\ns_cbranch_scc1 L_final")
    early = cfg.get("early", True)
    a.wait_vm(("poison", "x2" if nextlayer else "x1"))
    chaos(a, cfg, kind, S_TB32P, nextlayer)
    a.vm(f"buffer_store_dwordx4 v[{P}:{P+3}], v{V_XS1}, s[{SRD_WS}:{SRD_WS+3}], s{S_T} offen sc1", "xst")
    a.vm(f"buffer_store_dwordx4 v[{P+4}:{P+7}], v{V_XS1}, s[{SRD_WS}:{SRD_WS+3}], s{S_T} offen offset:2048 sc1", "xst")
    a.vm(f"buffer_store_dwordx2 v[{P+8}:{P+9}], v{V_XS2}, s[{SRD_WS}:{SRD_WS+3}], s{S_T} offen sc1", "xst")
    if early:
        esignal(a, cfg, kind, S_TB32P, nextlayer)
        if cfg.get("ebar", True):
            ring.barrier(0)
    f = []
    for p in range(10):
        f += lines(a, f"v_lshlrev_b32 v{V_RES+2*p}, 16, v{P+p}\nv_and_b32 v{V_RES+2*p+1}, 0xffff0000, v{P+p}")
    t = V_TMP + 16
    f += lines(a, f"v_pk_add_f32 v[{t}:{t+1}], v[{V_RES}:{V_RES+1}], v[{V_RES+2}:{V_RES+3}]")
    f += lines(a, f"v_pk_add_f32 v[{t+2}:{t+3}], v[{V_RES+4}:{V_RES+5}], v[{V_RES+6}:{V_RES+7}]")
    for p in range(4, 10):
        d = t + 2 * (p & 1)
        f += lines(a, f"v_pk_add_f32 v[{d}:{d+1}], v[{d}:{d+1}], v[{V_RES+2*p}:{V_RES+2*p+1}]")
    f += lines(a, f"v_pk_add_f32 v[{t}:{t+1}], v[{t}:{t+1}], v[{t+2}:{t+3}]\nv_add_f32 v{t}, v{t}, v{t+1}")

    def red(x, y):
        return lines(a, f"v_mov_b32 v{y}, v{x}\nv_permlane16_swap_b32 v{x}, v{y}\nv_add_f32 v{x}, v{x}, v{y}\n"
                        f"v_mov_b32 v{y}, v{x}\nv_permlane32_swap_b32 v{x}, v{y}\nv_add_f32 v{x}, v{x}, v{y}")
    f += red(t, t + 1)
    f += lines(a, f"v_mul_f32 v{t}, {f32bits(1.0/80)}, v{t}")
    q = t + 4
    for p in range(10):
        d = t + 8 + 2 * (p & 3)
        f += lines(a, f"v_pk_add_f32 v[{d}:{d+1}], v[{V_RES+2*p}:{V_RES+2*p+1}], v[{t}:{t+1}] op_sel_hi:[1,0] neg_lo:[0,1] neg_hi:[0,1]")
        qq = q + 2 * (p & 1)
        if p < 2:
            f += lines(a, f"v_pk_mul_f32 v[{qq}:{qq+1}], v[{d}:{d+1}], v[{d}:{d+1}]")
        else:
            f += lines(a, f"v_pk_fma_f32 v[{qq}:{qq+1}], v[{d}:{d+1}], v[{d}:{d+1}], v[{qq}:{qq+1}]")
    f += lines(a, f"v_pk_add_f32 v[{q}:{q+1}], v[{q}:{q+1}], v[{q+2}:{q+3}]\nv_add_f32 v{t+1}, v{q}, v{q+1}")
    f += red(t + 1, t + 2)
    for k, g in enumerate(f):
        g()
        p_ = ring.plan()
        if p_ and k % (cfg.get("fl_every", 4) if p_[0] == "flush" else cfg.get("epi_every", 10)) == 2:
            ring.steps(1)
        if not nextlayer and k % cfg.get("epi_every", 10) == 5:
            for pk in (PK3A, PK3):
                if ring.park_ready(pk):
                    ring.park(pk)
                    break
        if early and k == cfg.get("xpoll", 40):
            if nextlayer:
                a.e(f"s_mov_b32 s{S_COFF}, {L.CNT_PER_LAYER * L.CNT_STRIDE}")
            gap_issue(a, cfg, kind, S_TB32)
            if nextlayer:
                a.e(f"s_mov_b32 s{S_COFF}, 0")
    a.e(f"s_add_u32 s{S_T}, s{S_LOFF}, s{S_STS}\ns_add_u32 s{S_T}, s{S_T}, {stconst}")
    a.e("s_mov_b64 exec, 0xffff")
    a.vm(f"buffer_store_dwordx2 v[{t}:{t+1}], v{V_STS}, s[{SRD_WS}:{SRD_WS+3}], s{S_T} offen sc1", "sst")
    a.e("s_mov_b64 exec, -1")
    key = "x2" if nextlayer else "x1"
    if early:
        if not cfg.get("ebar", True):
            ring.barrier(0)
        n1, n2 = cfg.get("e" + key, (0, 8) if nextlayer else (0, INF))
        ring.steps(n1)
        stamp(a, key + " epi end", cfg, 1)
        cnt_off(a, S_T + 9, kind, S_TB32P, nextlayer)
        if nextlayer:
            ring.steps(n2)
        else:
            while ring.any_step((PK3A, PK3), PK3):
                pass
        while ring.open:
            ring.step()
        if nextlayer:
            next_layer(a)
    else:
        ring.steps(cfg.get("dma_after_st", 2))
        a.wait_vm("xst")
        signal(a, kind, S_TB32P, nextlayer)
        ring.barrier(0)
        n1, n2, n3 = cfg.get("gap" + key, (5, 3, 4) if nextlayer else (5, 3, INF))
        ring.steps(n1)
        a.wait_vm("sst")
        signal(a, kind, S_TB32P, nextlayer, S_C256)
        ring.steps(n2)
        stamp(a, key + " epi end", cfg, 1)
        if nextlayer:
            next_layer(a)
        gap_issue(a, cfg, kind, S_TB32)
        ring.steps(n3)
        while ring.open:
            ring.step()
    cfg["_info"].append(f"epilogue end: ring.next {ring.next}")


def mk16(a, pos, t, s, reg, tag):
    def f(b):
        c = V_RES + 4 * t
        a.e(f"v_mfma_f32_16x16x32_bf16 v[{c}:{c+3}], v[{b}:{b+3}], a[{reg}:{reg+3}], v[{c}:{c+3}]")
    return (pos, (tag, s), f)


class ParkFill:
    def __init__(self, ring, early, order, limit):
        self.ring, self.early, self.order, self.limit = ring, early, order, limit

    def take(self, sc, g, kinds):
        if "vm" not in kinds or g < self.early or not sc.vm_ok(g):
            return
        r = self.ring
        if r.park_ready(PK3A):
            r.park(PK3A)
        elif not r.any_step(self.order, self.limit):
            return
        sc.use(3, "vm", g)

    def done(self):
        return True

    def flush(self):
        pass


def phase2(a, ring, cfg, first):
    AW = cfg.get("aw2", 12)
    setup = a_setup(a, S_OA, L.O)
    mf = [mk16(a, P2S + 5 * s + t, t, s, 4 * s, "A") for s in range(20) for t in range(5)]
    al = Seq([((lambda s=s: aload(a, s, setup)), 2, 4 * (s - AW), "vm") for s in range(AW, 20)], force=True, maxper=1)
    sc = Sched([al, ParkFill(ring, cfg.get("dma2", 34), (PK3,), PK3A if PK3A in ring.parks else INF)], 2, cfg.get("per2", 4.5))

    def hook():
        gap_check(a, cfg)
        stamp(a, "P2 polled", cfg)
        for s in range(AW):
            aload(a, s, setup)
    bars = {0: P2S + 100}
    if cfg.get("b2", 0):
        bars[cfg.get("b2", 0)] = 0
    ver = Verifier(a, cfg, S_OA, L.O) if cfg.get("early", True) else None
    run_pass(a, ring, mf, sc, bars, cfg.get("d16", 15), 5, hook, V_ACC, ver=ver)
    stamp(a, "P2 done", cfg)
    out_epilogue(a, ring, cfg, L.X1, L.ST1, L.C_X1, False, False)


def silu_ops(a):
    NRL, VA = V_ST + 2, V_ST + 4
    ops = []
    last_e = {}
    k = 0
    for t in range(6):
        early = L.fragpos(t, 40) + 2
        acc, dst = T32[t], V_TMP + 4 * t
        cv = []
        for r in range(8):
            g, u = acc + r, acc + 8 + r
            e = V_TMP + 24 + k % 16
            k += 1
            b = len(ops)
            ops.append((f"v_mul_f32 v{e}, v{g}, v{NRL}", [last_e[e]] if e in last_e else [], False, early))
            ops.append((f"v_exp_f32 v{e}, v{e}", [b], True, early))
            ops.append((f"v_mul_f32 v{g}, v{g}, v{u}", [b], False, early))
            ops.append((f"v_fma_f32 v{e}, v{e}, v{VA}, v{VA}", [b + 1], False, early))
            ops.append((f"v_rcp_f32 v{e}, v{e}", [b + 3], True, early))
            ops.append((f"v_mul_f32 v{g}, v{g}, v{e}", [b + 2, b + 4], False, early))
            last_e[e] = b + 5
            if r & 1:
                ops.append((f"v_cvt_pk_bf16_f32 v{dst + (r >> 1)}, v{g-1}, v{g}", [b - 1, b + 5], False, early))
                cv.append(len(ops) - 1)

        def st(d=dst, t=t):
            a.e(f"s_add_u32 s{S_T+1}, s{S_LOFF}, s{S_HS[t >> 1]}")
            a.vm(f"buffer_store_dwordx4 v[{d}:{d+3}], v{V_HST}, s[{SRD_WS}:{SRD_WS+3}], s{S_T+1} offen offset:{512*(t & 1)} sc1", ("hst", t))
        ops.append((st, cv, False, early))
    return ops


A4REG = lambda s: (160 + 4 * s) if s < 24 else 4 * (s - 24)


def phase34(a, ring, cfg):
    AW = cfg.get("aw", 10)
    setup = a_setup(a, S_XA, L.X1)
    setup4 = a_setup(a, S_HA, L.H)
    mf = panel(a, P3S, range(6), True)
    ap = cfg.get("aper", 2.3)
    al = Seq([((lambda s=s: aload(a, s, setup)), 2, int(ap * (s - AW)), "vm") for s in range(AW, 40)], force=True, maxper=1)
    tail = lines(a, f"v_mul_f32 v{V_ST+2}, {f32bits(-LOG2E)}, v{V_ST}\nv_mov_b32 v{V_ST+4}, v{P1_TT+2}")
    d = Dag(a, silu_ops(a))
    d.keep = True

    def sig(inst):
        def f():
            stores = [k for k, o in enumerate(d.ops) if callable(o[0])]
            assert stores[2 * inst] in d.at and stores[2 * inst + 1] in d.at, ("h signal before its stores", inst)
            a.wait_vm(lambda t: t in (("hst", 2 * inst), ("hst", 2 * inst + 1)))
            signal(a, L.C_H0 + inst, S_TB32)
        return f

    def a4(s):
        def f():
            if s < 24:
                assert not any(isfl(t) for t in flat_tags(a.lgq)) and (ring.next >= P4S or PK3 not in ring.parks), "parked registers still in use"
            aload(a, s, setup4, A4REG(s), "H")
        return f
    h0s, h0p, h0c = cfg.get("h0", (166, 190, 212))
    h1s, h1p = cfg.get("h1", (212, 236))
    sg = Seq([(sig(0), 5, h0s, "s"), (lambda: poll_issue(a, L.C_H0, S_TB32P), 5, h0p, "s"),
              (lambda: poll_check(a), 6, h0c, "s"), (sig(1), 5, h1s, "s")], force=True)
    a4p = cfg.get("a4per", 2.6)
    n_early = min(16, int((246 - h0c - 1) / a4p) + 1)
    a4s = Seq([(a4(s), 2, h0c + 1 + int(a4p * s), "vm") for s in range(n_early)], force=True, maxper=1)
    pe = cfg.get("per3e", 3.5)
    period = lambda g: pe if 102 <= g < cfg.get("e0end", 140) else cfg.get("per3", 2.3)
    early = cfg.get("early", True)
    ver = Verifier(a, cfg, S_XA, L.X1, lambda s_: s_ % 5 == 4) if early else None
    pz = Seq(poison_items(a, "x2", cfg.get("pz3", 192)) if early else [], force=True, maxper=1)
    sc = Sched([al, sg, a4s, pz, d] + stats_seq(a, cfg, L.C_X1, L.ST1, tail) + [RingFill(ring, 0)], 6, period, cfg.get("fl3", 3))
    bars = {0: P3S + 48}
    for b in range(24, 246, cfg.get("b3", 24)):
        bars[b] = min(P3S + b + cfg.get("b3", 24), P3S + 246)
    st = {idx: (lambda n=n: stamp(a, f"P3.{n}", cfg, 2)) for n, idx in enumerate((0, 40, 80, 122, 163, 204))}

    assert PK3A not in ring.parks or ring.next >= ring.parks[PK3A][0]

    def hook():
        gap_check(a, cfg)
        stamp(a, "P3 polled", cfg)
        for s in range(AW):
            aload(a, s, setup)
    run_pass(a, ring, mf, sc, bars, cfg.get("d32", 9), G32, hook, stamps=st, ver=ver)
    stores = [d.at.get(k) for k, o in enumerate(d.ops) if callable(o[0])]
    cfg["_info"].append(f"P3: h stores at {stores} ring.next {ring.next - P4S} early A4 {n_early} late {getattr(ring, 'late', 0)}")
    stamp(a, "P3 done", cfg)
    ring.cons = P4S
    poll_issue(a, L.C_H1, S_TB32P)
    d.off = 250
    AW4 = max(n_early, min(16, cfg.get("aw4", 16)))
    sc0 = Sched([Seq([(a4(s), 2, 2 * (s - n_early), "vm") for s in range(n_early, AW4)], force=True, maxper=1), d, RingFill(ring, 0, TOT)], 8, 2.3)
    g = 0
    while not (sc0.streams[0].done() and d.done()):
        sc0.gap(g, 0)
        g += 1
    stamp(a, "h epi end", cfg)
    mf = [mk16(a, P4S + 5 * s + t, t, s, A4REG(s), "H") for s in range(48) for t in range(5)]
    lead = cfg.get("lead4", 12)
    it = []
    for s in range(AW4, 48):
        k = max(5 * (s - lead), cfg.get("h1c", 0) + 4 * (s - 16))
        if s in (16, 32):
            it.append((lambda: poll_check(a), 6, k, "s"))
        it.append((a4(s), 2, k, "vm"))
    k32 = max(5 * (32 - lead), cfg.get("h1c", 0) + 64)
    sg = Seq([(sig(2), 5, cfg.get("h2sig", 30), "s"),
              (lambda: poll_issue(a, L.C_H2, S_TB32P), 5, k32 - cfg.get("plead", 35), "s")], force=True)
    sc = Sched([Seq(it, force=True, maxper=2), sg, RingFill(ring, 0, TOT), RingFill(ring, cfg.get("nx4", 170))], 2, cfg.get("per4", 2.5), cfg.get("fl4", 4))
    bars = {}
    for b in range(0, 240, 30):
        bars[b] = min(P4S + b + 30, P4S + 240)
    st = {idx: (lambda n=n: stamp(a, f"P4.{n}", cfg, 2)) for n, idx in enumerate((0, 40, 80, 120, 160, 200))}
    run_pass(a, ring, mf, sc, bars, cfg.get("d16", 15), 5, None, V_ACC, stamps=st)
    cfg["_info"].append(f"P4: ring.next {ring.next - TOT} late {getattr(ring, 'late', 0)}")
    stamp(a, "P4 done", cfg)
    out_epilogue(a, ring, cfg, L.LSTR + L.X, L.LSTR + L.ST, L.C_X, True, True)


def merge_q(x, y):
    flat = lambda t: set(t) if isinstance(t, frozenset) else {t}
    n = min(len(x), len(y))
    out = [flat(x[len(x) - n + k]) | flat(y[len(y) - n + k]) for k in range(n)]
    extra = set()
    for t in x[:len(x) - n] + y[:len(y) - n]:
        extra |= flat(t)
    return ([frozenset(extra)] if extra else []) + [frozenset(o) for o in out]


def gen_main(name="main_kernel", cfg=None):
    cfg = cfg or {}
    a = Asm()
    parks = {}
    if cfg.get("park", False):
        parks[PK3] = (PK3 + 4 * cfg.get("npk", 23), 160)
    if cfg.get("parka", True):
        parks[PK3A] = (PK3A + 4 * cfg.get("npka", 20), 80)
    ring = Ring(a, parks)
    cfg["_info"] = []
    cfg["_stamps"] = []
    cfg["_pend"] = []
    cfg["_cold"] = []
    cfg["_spun"] = False
    cfg["_k"] = [0]
    a.e(f".globl {name}\n.p2align 8\n.type {name},@function\n{name}:")
    a.e("s_cmp_ge_u32 s2, 256\ns_cbranch_scc1 L_end")
    fuse = cfg.get("fuse", True)
    late = cfg.get("late", True)
    a.e(f"s_load_dwordx2 s[44:45], s[0:1], {0 if fuse else 56}\ns_load_dwordx2 s[12:13], s[0:1], 72\ns_load_dwordx2 s[68:69], s[0:1], 64")
    a.e(f"v_and_b32 v{V_LANE}, 63, v0\nv_lshlrev_b32 v{V_L16}, 4, v{V_LANE}\nv_lshlrev_b32 v{V_T16}, 4, v0")
    a.e(f"v_lshrrev_b32 v30, 6, v0\nv_readfirstlane_b32 s{S_W}, v30")
    a.e("s_waitcnt lgkmcnt(0)")
    for d in (SRD_WS, SRD_NX):
        a.e(f"s_mov_b32 s{d}, s12\ns_and_b32 s{d+1}, s13, 0xffff\ns_mov_b32 s{d+2}, {L.WS_USED}\ns_mov_b32 s{d+3}, 0x20000")
    a.e(f"s_mov_b32 s8, s44\ns_and_b32 s9, s45, 0xffff\ns_mov_b32 s10, {2048*1280}\ns_mov_b32 s11, 0x20000")
    a.e(f"s_mov_b32 s{S_LAY}, 0\ns_mov_b32 s{S_LOFF}, {L.LBASE}\ns_mov_b32 s{S_COFF}, 0")
    if cfg.get("timing"):
        a.e(f"s_add_u32 s72, s12, {cfg['timing']}\ns_addc_u32 s73, s13, 0\ns_and_b32 s73, s73, 0xffff\ns_mov_b32 s74, {1024*512}\ns_mov_b32 s75, 0x20000")
        a.e(f"s_lshl_b32 s{S_TS+2}, s2, 2\ns_add_u32 s{S_TS+2}, s{S_TS+2}, s{S_W}\ns_lshl_b32 s{S_TS+2}, s{S_TS+2}, 9\nv_lshlrev_b32 v30, 2, v{V_LANE}\nv_mov_b32 v31, 0\ns_mov_b32 s87, 0")
    stamp(a, "start", cfg, 0)
    if fuse:
        ring.gate, ring.wflag = SCR, "sc1"
        S0.part1(a, name, late)
    rb = cfg.get("xr", 2)
    cb = rb - 1
    a.e(f"s_and_b32 s46, s2, 7\ns_lshr_b32 s46, s46, {cb}\ns_lshl_b32 s46, s46, {rb}\ns_lshr_b32 s47, s2, 3\ns_and_b32 s47, s47, {(1 << rb) - 1}\ns_add_u32 s{S_I}, s46, s47")
    a.e(f"s_and_b32 s46, s2, {(1 << cb) - 1}\ns_lshl_b32 s46, s46, {5 - rb}\ns_lshr_b32 s47, s2, {3 + rb}\ns_add_u32 s{S_J}, s46, s47")
    a.e(f"s_lshl_b32 s{S_W1K}, s{S_W}, 10")
    a.e(f"s_lshr_b32 s48, s{S_J}, 1\ns_and_b32 s49, s{S_J}, 1")
    a.e(f"s_mul_i32 s20, s{S_J}, {L.WQKV_STR}\ns_add_u32 s20, s20, {L.WQKV}")
    a.e(f"s_mul_i32 s21, s48, {L.WO_STR}\ns_add_u32 s21, s21, {L.WO}")
    a.e(f"s_mul_i32 s22, s{S_J}, {L.W13_STR}\ns_add_u32 s22, s22, {L.W13}")
    a.e(f"s_mul_i32 s23, s48, {L.W2_STR}\ns_add_u32 s23, s23, {L.W2}")
    a.e(f"s_lshl_b32 s{S_CW}, s48, 2\ns_add_u32 s{S_CW}, s{S_CW}, s{S_W}")
    ring.freed = 0
    a.e(f"s_lshl_b32 s{S_TB32}, s{S_I}, 2\ns_add_u32 s{S_TB32}, s{S_TB32}, s{S_W}")
    a.e(f"s_mul_i32 s{S_XA}, s{S_TB32}, 40960\ns_lshl_b32 s{S_STA}, s{S_TB32}, 11")
    setup0 = a_setup(a, S_XA, L.X)
    a.e(f"s_lshl_b32 s{S_WG[8]}, s{S_W}, 11\ns_mul_i32 s{S_WG[12]}, s{S_W}, 3072\ns_lshl_b32 s{S_WG[16]}, s{S_W}, 12")
    for g_ in (8, 12, 16):
        a.e(f"v_add_u32 v{V_TG[g_]}, s{S_WG[g_]}, v{V_L16}")
    a.e(f"v_add_u32 v{V_T16B}, 0x10000, v{V_T16}\nv_add_u32 v{V_T16C}, 0x20000, v{V_T16}\nv_lshlrev_b32 v{V_T8}, 3, v0")

    def first_loads():
        ring.maxg = 12
        for blk in range(cfg.get("la0", 3)):
            for k in range(3):
                ring.step(12 * blk + 12)
            for s_ in range(4 * blk, 4 * blk + 4):
                aload(a, s_, setup0)
                cfg["_a0"] = s_ + 1
    if not fuse:
        first_loads()
    a.e(f"s_lshl_b32 s{S_TB16}, s{S_I}, 3\ns_lshl_b32 s46, s49, 2\ns_add_u32 s{S_TB16}, s{S_TB16}, s46\ns_add_u32 s{S_TB16}, s{S_TB16}, s{S_W}")
    a.e(f"s_lshr_b32 s{S_TB32P}, s{S_TB16}, 1")
    a.e(f"s_mul_i32 s{S_OA}, s{S_TB16}, 20480\ns_mul_i32 s{S_HA}, s{S_TB16}, 49152")
    a.e(f"s_and_b32 s50, s{S_TB16}, 1")
    a.e(f"s_mul_i32 s{S_XS}, s{S_TB32P}, 40960\ns_mul_i32 s46, s48, 5120\ns_add_u32 s{S_XS}, s{S_XS}, s46\ns_lshl_b32 s46, s50, 8\ns_add_u32 s{S_XS}, s{S_XS}, s46")
    a.e(f"s_lshl_b32 s{S_STS}, s{S_TB32P}, 11\ns_lshl_b32 s46, s48, 8\ns_add_u32 s{S_STS}, s{S_STS}, s46\ns_lshl_b32 s46, s50, 7\ns_add_u32 s{S_STS}, s{S_STS}, s46")
    a.e(f"s_mul_i32 s{S_OS}, s{S_TB32}, 40960\ns_mul_i32 s46, s{S_J}, 1280\ns_add_u32 s{S_OS}, s{S_OS}, s46\ns_add_u32 s{S_OS}, s{S_OS}, {L.O}")
    a.e(f"s_mul_i32 s47, s{S_TB32}, {2*49152}\ns_add_u32 s47, s47, {L.H}")
    a.e(f"s_lshl_b32 s46, s{S_J}, 10\ns_add_u32 s{S_HS[0]}, s47, s46")
    a.e(f"s_add_u32 s{S_HS[1]}, s{S_HS[0]}, {32*512}\ns_add_u32 s{S_HS[2]}, s{S_HS[0]}, {64*512}")
    a.e(f"s_mul_i32 s{S_KVR}, s{S_J}, {16*L.KV_STR}\ns_add_u32 s{S_KVR}, s{S_KVR}, {L.KV}")
    a.e(f"s_mul_i32 s46, s{S_I}, {L.KV_STR}\ns_add_u32 s{S_KVS}, s{S_KVR}, s46")
    a.e(f"s_mul_i32 s{S_OUT}, s{S_TB16}, {16*1280}\ns_mul_i32 s46, s48, 160\ns_add_u32 s{S_OUT}, s{S_OUT}, s46")
    a.e(f"s_lshl_b32 s{S_KVC}, s{S_J}, 2\ns_add_u32 s{S_KVC}, s{S_KVC}, s{S_W}")
    a.e(f"s_mov_b32 s{S_ONE}, 1\ns_mov_b32 s{S_C256}, 256\ns_mov_b32 s{S_LO32}, -1\ns_mov_b32 s{S_LO32+1}, 0")
    for r_ in range(4):
        a.e(f"v_mov_b32 v{V_POI+r_}, -1")
    a.e(f"s_mov_b32 s{S_EPS2}, {f32bits(1e-6)}\ns_mov_b32 s{S_EPS2+1}, {f32bits(1e-6)}\ns_mov_b32 s{S_ONE2}, 1.0\ns_mov_b32 s{S_ONE2+1}, 1.0")
    a.e(f"v_mov_b32 v216, 210\nv_cmp_gt_u32 s[{S_M210}:{S_M210+1}], v216, v0")
    tok, hf, t16, g, x, y, z = 208, 209, 210, 211, 212, 213, 214
    ln = V_LANE
    a.e(f"v_add_u32 v{V_L16B}, 0x10000, v{V_L16}\nv_add_u32 v{V_L16C}, 0x20000, v{V_L16}")
    a.e(f"v_and_b32 v{tok}, 31, v{ln}\nv_lshrrev_b32 v{hf}, 5, v{ln}\nv_and_b32 v{t16}, 15, v{ln}\nv_lshrrev_b32 v{g}, 4, v{ln}")
    a.e(f"v_lshlrev_b32 v{x}, 10, v{hf}\nv_lshl_add_u32 v{V_STL}, v{tok}, 3, v{x}")
    a.e(f"v_lshlrev_b32 v{x}, 8, v{hf}\nv_lshl_add_u32 v{x}, v{t16}, 4, v{x}\nv_bfe_u32 v{y}, v{ln}, 4, 1")
    a.e(f"v_mul_u32_u24 v{z}, 20480, v{y}\nv_add_u32 v{V_OST}, v{x}, v{z}")
    a.e(f"v_mul_u32_u24 v{z}, 49152, v{y}\nv_add_u32 v{V_HST}, v{x}, v{z}")
    a.e(f"v_lshlrev_b32 v{x}, 9, v{g}\nv_lshl_add_u32 v{V_XS1}, v{t16}, 4, v{x}")
    a.e(f"v_lshlrev_b32 v{x}, 9, v{hf}\nv_lshl_add_u32 v{x}, v{t16}, 4, v{x}\nv_lshl_add_u32 v{x}, v{y}, 3, v{x}\nv_add_u32 v{V_XS2}, 4096, v{x}")
    a.e(f"v_mul_u32_u24 v{x}, 1280, v{t16}\nv_lshl_add_u32 v{V_OUT1}, v{g}, 4, v{x}\nv_lshl_add_u32 v{x}, v{g}, 3, v{x}\nv_add_u32 v{V_OUT2}, 128, v{x}")
    a.e(f"v_lshlrev_b32 v{V_STS}, 3, v{ln}")
    P = 128
    if fuse:
        a.e(f"buffer_load_dwordx4 v[{P}:{P+3}], v{V_OUT1}, s[8:11], s{S_OUT} offen")
        a.e(f"buffer_load_dwordx4 v[{P+4}:{P+7}], v{V_OUT1}, s[8:11], s{S_OUT} offen offset:64")
        a.vm(f"buffer_load_dwordx2 v[{P+8}:{P+9}], v{V_OUT2}, s[8:11], s{S_OUT} offen", "res")
        a.e("s_load_dwordx2 s[44:45], s[0:1], 56")
    else:
        a.e(f"s_add_u32 s{S_T}, s{S_XS}, {L.LBASE + L.X}")
        a.vm(f"buffer_load_dwordx4 v[{P}:{P+3}], v{V_XS1}, s[{SRD_WS}:{SRD_WS+3}], s{S_T} offen", "res")
        a.vm(f"buffer_load_dwordx4 v[{P+4}:{P+7}], v{V_XS1}, s[{SRD_WS}:{SRD_WS+3}], s{S_T} offen offset:2048", "res")
        a.vm(f"buffer_load_dwordx2 v[{P+8}:{P+9}], v{V_XS2}, s[{SRD_WS}:{SRD_WS+3}], s{S_T} offen", "res")
        stats_load(a, L.ST)
    a.e(f"s_mul_i32 s46, s{S_W}, {GC_STR}\ns_add_u32 s46, s46, {GC_OFF}")
    a.e(f"v_mul_u32_u24 v{x}, 80, v{tok}\nv_lshl_add_u32 v{x}, v{hf}, 4, v{x}\nv_add_u32 v{x}, s46, v{x}")
    a.e(f"v_subrev_u32 v{y}, 80, v{x}\nv_cmp_le_u32 vcc, 20, v{tok}\nv_cndmask_b32 v{V_G0}, v{x}, v{y}, vcc")
    a.e(f"v_add_u32 v{y}, {23*80}, v{x}\nv_add_u32 v{x}, {16*80}, v{x}\nv_cmp_gt_u32 vcc, 16, v{tok}\nv_cndmask_b32 v{V_G1}, v{x}, v{y}, vcc")
    a.e(f"s_lshl_b32 s46, s{S_W}, 5\nv_add_u32 v215, s46, v{tok}\nv_cmp_gt_u32 s[{S_MKV}:{S_MKV+1}], 0x69, v215" .replace("0x69, v215", "v216, v215").replace("v_cmp_gt", "v_mov_b32 v216, 105\nv_cmp_gt"))
    a.e(f"v_mul_u32_u24 v{x}, {L.KV_STR}, v{hf}\nv_lshl_add_u32 v{V_KVL}, v215, 4, v{x}\nv_lshl_add_u32 v215, v215, 1, v{hf}")
    a.e(f"v_mul_u32_u24 v{x}, 205, v215\nv_lshrrev_b32 v{x}, 10, v{x}\nv_mul_u32_u24 v{y}, 5, v{x}\nv_sub_u32 v{y}, v215, v{y}")
    a.e(f"v_mul_u32_u24 v{z}, 112, v{x}\nv_lshl_add_u32 v{z}, v{y}, 3, v{z}\nv_add_u32 v{z}, {GB_OFF}, v{z}\nv_add_u32 v{y}, 40, v{z}")
    a.e(f"v_cmp_le_u32 vcc, 20, v{x}\nv_cndmask_b32 v{y}, v{z}, v{y}, vcc\nv_cmp_eq_u32 vcc, 40, v{x}\nv_cndmask_b32 v{V_GBW}, v{y}, v{z}, vcc")
    a.e(f"v_lshrrev_b32 v{x}, 4, v{tok}\nv_mul_u32_u24 v{x}, 24, v{x}\nv_bfe_u32 v{y}, v{tok}, 2, 1\nv_lshl_add_u32 v{x}, v{y}, 3, v{x}")
    a.e(f"v_bfe_u32 v{y}, v{tok}, 3, 1\nv_lshl_add_u32 v{x}, v{y}, 2, v{x}\nv_and_b32 v{z}, 3, v{tok}\nv_add_u32 v{x}, v{x}, v{z}")
    a.e(f"v_mul_u32_u24 v{x}, 112, v{x}\nv_lshl_add_u32 v{x}, v{hf}, 4, v{x}\nv_add_u32 v{V_GBX}, {GB_OFF}, v{x}")
    a.e(f"v_lshl_add_u32 v{x}, v{y}, 2, v{z}\nv_add_u32 v{x}, 16, v{x}\nv_mov_b32 v{y}, 42")
    a.e(f"v_and_b32 v215, 0x14, v{tok}\nv_cmp_eq_u32 vcc, 0, v215\nv_cndmask_b32 v{y}, v{y}, v{x}, vcc")
    a.e(f"v_add_u32 v{x}, 40, v{z}\nv_and_b32 v215, 0x1a, v{tok}\nv_cmp_eq_u32 vcc, 16, v215\nv_cndmask_b32 v{y}, v{y}, v{x}, vcc")
    a.e(f"v_mul_u32_u24 v{x}, 112, v{y}\nv_lshl_add_u32 v{x}, v{hf}, 4, v{x}\nv_add_u32 v{V_GBY}, {GB_OFF}, v{x}")
    a.e(f"s_mul_i32 s46, s{S_W}, 2304\ns_add_u32 s46, s46, {QT_OFF}\ns_mul_i32 s47, s{S_W}, 576\ns_add_u32 s47, s47, {Q1_OFF}")
    a.e(f"v_mul_u32_u24 v{x}, 72, v{tok}\nv_lshl_add_u32 v{x}, v{hf}, 3, v{x}\nv_add_u32 v{V_QW3}, s46, v{x}")
    a.e(f"v_add_u32 v{x}, s47, v{x}\nv_subrev_u32 v{V_QW1}, {16*72}, v{x}")
    a.e(f"v_bfe_u32 v{x}, v{ln}, 2, 2\nv_mul_u32_u24 v{x}, 72, v{x}\nv_bfe_u32 v{y}, v{ln}, 4, 1\nv_lshl_add_u32 v{x}, v{y}, 5, v{x}")
    a.e(f"v_and_b32 v{y}, 3, v{ln}\nv_lshl_add_u32 v{x}, v{y}, 3, v{x}\nv_add_u32 v{V_QR2}, s47, v{x}")
    a.e(f"v_mul_u32_u24 v{y}, {8*72}, v{hf}\nv_add_u32 v{x}, v{x}, v{y}\nv_add_u32 v{V_QR}, s46, v{x}")
    a.e(f"v_mov_b32 v{V_C2}, 0\nv_mov_b32 v{V_C3}, 0\nv_mov_b32 v{V_LO}, 0\nv_mov_b32 v{V_C2+1}, 0\nv_mov_b32 v{V_C3+1}, 0")
    set_exec(a, 0x00FF00FF, 0x00FF00FF)
    a.e(f"v_mov_b32 v{V_C3}, s{S_EPS2}\nv_mov_b32 v{V_LO}, s{S_EPS2}")
    set_exec(a, 0x0000FF00, 0x0000FF00)
    a.e(f"v_mov_b32 v{V_C2}, 0xff800000\nv_mov_b32 v{V_LO}, 0xff800000")
    a.e("s_mov_b64 exec, -1")
    a.e(f"s_lshl_b32 s46, s{S_W}, 8\ns_add_u32 s46, s46, {RS_OFF}")
    a.e(f"v_lshlrev_b32 v{x}, 2, v{ln}\nv_add_u32 v{V_RSW}, s46, v{x}\nv_lshlrev_b32 v{x}, 4, v{hf}\nv_add_u32 v{V_RSR}, s46, v{x}")
    if fuse:
        a.e(f"s_waitcnt lgkmcnt(0)\ns_mov_b32 s8, s44\ns_and_b32 s9, s45, 0xffff")
        stamp(a, "setup done", cfg)
        S0.part2(a, SPIN, late)
        stamp(a, "packed", cfg)
        d = SRD_NX
        a.e(f"s_mov_b32 s{d}, s12\ns_and_b32 s{d+1}, s13, 0xffff\ns_mov_b32 s{d+2}, {L.WS_USED}\ns_mov_b32 s{d+3}, 0x20000")
        poll_issue(a, L.C_PQKV, S_KVC)
        poll2_a(a, L.C_X, S_TB32)
        poll_check(a, 0, 60)
        poll2_check(a, cfg, 4)
        stamp(a, "pk polled", cfg)
        first_loads()
        stats_load(a, L.ST)
    stamp(a, "P1 polled", cfg)
    phase1(a, ring, cfg, True)
    phase2(a, ring, cfg, True)
    a.e("s_branch L_join")
    j0 = (ring.next, ring.cons, ring.freed, dict(ring.parked), list(cfg["_pend"]), cfg["_k"][0])
    tags0 = list(a.vmq)
    lg0 = list(a.lgq)
    a.e("L_top:")
    cfg["_pend"][:], cfg["_k"][0] = cfg.get("_ptop", ([], 0))
    top = cfg.get("_top", ([("dma", p_) for p_ in range(0, RING, 4)], RING))
    a.vmq = list(top[0])
    a.lgq = []
    ring.next, ring.pub, ring.cons, ring.freed, ring.parked = top[1], 0, 0, 0, {}
    phase1(a, ring, cfg, False)
    phase2(a, ring, cfg, False)
    assert j0 == (ring.next, ring.cons, ring.freed, dict(ring.parked), list(cfg["_pend"]), cfg["_k"][0]), (j0, ring.next, ring.cons)
    a.e("L_join:")
    a.vmq = merge_q(tags0, a.vmq)
    a.lgq = merge_q(lg0, a.lgq)
    phase34(a, ring, cfg)
    assert ring.freed == TOT and not ring.open, (ring.next, ring.freed)
    bottom = ([((t[0], t[1] - TOT) if isdma(t) else "old") for t in a.vmq], ring.next - TOT)
    ptop = (list(cfg["_pend"]), cfg["_k"][0])
    if cfg.get("_top") != bottom or cfg.get("_ptop") != ptop:
        cfg = dict(cfg)
        cfg["_top"] = bottom
        cfg["_ptop"] = ptop
        return gen_main(name, cfg)
    import sys
    print("\n".join(cfg["_info"]), "nops", a.nops_added, file=sys.stderr)
    a.e(f"s_mov_b32 s{SRD_NX+2}, 0")
    a.e("s_branch L_top")
    a.e("L_final:")
    cfg["_pend"][:], cfg["_k"][0] = cfg["_final"]
    cfg["_slot"] = 1
    P = V_TMP
    a.e(f"buffer_store_dwordx4 v[{P}:{P+3}], v{V_OUT1}, s[8:11], s{S_OUT} offen {cfg.get('outflag', '')}")
    a.e(f"buffer_store_dwordx4 v[{P+4}:{P+7}], v{V_OUT1}, s[8:11], s{S_OUT} offen offset:64 {cfg.get('outflag', '')}")
    a.e(f"buffer_store_dwordx2 v[{P+8}:{P+9}], v{V_OUT2}, s[8:11], s{S_OUT} offen {cfg.get('outflag', '')}")
    stamp(a, "end", cfg, 0)
    a.e("s_waitcnt vmcnt(0)")
    a.e("L_end:\ns_endpgm")
    for blk in cfg["_cold"]:
        a.e(blk)
    t = a.text()
    if cfg.get("timing"):
        t += "; STAMPS " + "|".join(cfg["_stamps"]) + "\n"
    return t, kd(name, 512, 102, 256), a


if __name__ == "__main__":
    t, k, a = gen_main()
    print(t)
```

```python
from asmcore import *
import layout as L
import gen_stage0 as S0

RING = 156
P1S, SCR, P2S, P3S, P4S, TOT = 0, 164, 192, 292, 540, 780
FIX = RING * 1024
SCRB = (SCR % RING) * 1024
GC_OFF, GC_STR = SCRB, 3360
GB_OFF = GC_OFF + 4 * GC_STR
QT_OFF = GB_OFF + 5120
RS_OFF = FIX
Q1_OFF = FIX + 1024
assert QT_OFF + 4 * 2304 <= SCRB + 28 * 1024
LOG2E = 1.4426950408889634
SPIN = 400000

V_LANE, V_L16, V_T16, V_L16B, V_L16C = 1, 2, 3, 4, 5
V_STL, V_OST, V_HST, V_XS1, V_XS2, V_OUT1, V_OUT2 = 6, 7, 8, 9, 10, 11, 12
V_G0, V_G1, V_GBW, V_GBX, V_GBY = 13, 14, 15, 16, 17
V_QW3, V_QW1, V_QR, V_QR2 = 18, 19, 20, 21
V_C2, V_C3, V_LO = 22, 24, 26
V_RSW, V_RSR, V_STS = 27, 28, 29
V_RES = 32
V_MF = 52
V_ST = 56
V_ACC = 64
V_FIFO = 160
V_TMP = 208
S_W, S_I, S_J, S_LAY, S_LOFF, S_COFF, S_W1K = 3, 14, 15, 16, 17, 18, 19
S_SEG = {P1S: 20, P2S: 21, P3S: 22, P4S: 23}
S_TB32, S_TB16, S_TB32P = 24, 25, 26
S_XA, S_STA, S_OA, S_HA, S_XS, S_STS, S_OS = 27, 28, 29, 30, 31, 32, 33
S_HS = (34, 35, 36)
S_KVS, S_KVR, S_OUT, S_KVC = 38, 39, 40, 41
S_T = 44
S_M210 = 60
S_ONE = 62
S_POLL = 63
S_C256 = 42
SRD_WS, SRD_OUT, SRD_NX = 4, 8, 64
S_DBG = 68
S_A = 70
S_EPS2 = 76
S_ONE2 = 78
S_TS = 80


V_TG = {4: V_T16, 8: 196, 12: 197, 16: 198}
S_WG = {4: S_W1K, 8: 84, 12: 85, 16: 86}
V_T16B, V_T16C, V_T8, V_KVL = 199, 200, 201, 202
S_MKV = 88
S_LO32 = 96
S_RT = 98
V_POI = 204
V_CHK = 203
RETRY = 3000
S_CW = 83
S_PA, S_PB, S_PADDR = 37, 43, 71
A_PARK = 160
INF = 10 ** 9
isdma = lambda t: isinstance(t, tuple) and t[0] == "dma"
isfl = lambda t: isinstance(t, tuple) and t[0] == "flush"


def flat_tags(q):
    for t in q:
        if isinstance(t, frozenset):
            yield from t
        else:
            yield t


class Ring:
    def __init__(self, a, parks):
        self.a = a
        self.next = 0
        self.pub = 0
        self.freed = 0
        self.cons = 0
        self.open = None
        self.parks = parks
        self.parked = {}
        self.maxg = 16
        self.gate = INF
        self.wflag = ""

    def seg(self, pos):
        p = pos % TOT
        for s, e in ((P1S, SCR), (P2S, P3S), (P3S, P4S), (P4S, TOT)):
            if s <= p < e:
                return s, p - s, e - p
        return None

    def skip(self):
        if self.next % TOT == SCR:
            self.next += P2S - SCR

    def park_of(self, pos):
        for s, (e, r) in self.parks.items():
            if s <= pos < e:
                return s
        return None

    def plan(self, limit=INF):
        if self.open:
            return ("dma", 3)
        n = self.next + (P2S - SCR if self.next % TOT == SCR else 0)
        if n >= limit or n >= self.gate or n + 4 - RING > self.freed:
            return None
        pk = self.park_of(n)
        if pk is not None:
            if self.parked.get(pk, 0) <= (n - pk) // 4:
                return None
            return ("flush", 5)
        return ("dma", 5)

    def step(self, limit=INF):
        a = self.a
        p = self.plan(limit)
        assert p is not None
        if not self.open:
            self.skip()
        pos = self.next
        if p[0] == "flush":
            pk = self.park_of(pos)
            q = (pos - pk) // 4
            a.wait_vm(("park", pos))
            addr = (pos % RING) * 1024
            base = (V_T16, V_T16B, V_T16C)[addr >> 16]
            rb = self.parks[pk][1] + 4 * q
            a.ds(f"ds_write_b128 v{base}, a[{rb}:{rb+3}] offset:{addr & 0xffff}", ("flush", pos))
            self.next = pos + 4
            return
        if not self.open:
            s, rel, left = self.seg(pos)
            g = min(self.maxg, left, RING - pos % RING, (self.freed + RING - pos) // 4 * 4, max(4, (limit - pos + 3) // 4 * 4))
            for ps in self.parks:
                if pos < ps:
                    g = min(g, ps - pos)
            assert g >= 4 and g % 4 == 0
            a.e(f"s_add_u32 m0, s{S_WG[g]}, {(pos % RING) * 1024}")
            a.e(f"s_add_u32 s{S_T+15}, s{S_SEG[s]}, {rel * 1024}")
            self.open = [pos, g, 0]
        st, g, k = self.open
        srd = SRD_NX if st >= TOT else SRD_WS
        a.vm(f"buffer_load_dwordx4 v{V_TG[g]}, s[{srd}:{srd+3}], s{S_T+15} offen offset:{k*1024} {self.wflag} lds", ("dma", st))
        self.open[2] += 1
        if self.open[2] == g // 4:
            self.next = st + g
            self.open = None

    def steps(self, maxn=INF, limit=INF):
        n = 0
        while n < maxn and self.plan(limit):
            self.step(limit)
            n += 1
        while self.open and maxn == INF:
            self.step(limit)
        return n

    def park_ready(self, pk):
        return pk in self.parks and pk < self.gate and pk + 4 * self.parked.get(pk, 0) < self.parks[pk][0]

    def park(self, pk):
        a = self.a
        q = self.parked.get(pk, 0)
        pos = pk + 4 * q
        s, rel, left = self.seg(pos)
        rb = self.parks[pk][1] + 4 * q
        a.e(f"s_add_u32 s{S_T+14}, s{S_SEG[s]}, {rel * 1024}")
        a.vm(f"buffer_load_dwordx4 a[{rb}:{rb+3}], v{V_T16}, s[{SRD_WS}:{SRD_WS+3}], s{S_T+14} offen {self.wflag}", ("park", pos))
        self.parked[pk] = q + 1

    def any_step(self, pks=(), limit=INF):
        if self.plan(limit):
            self.step(limit)
            return True
        for pk in pks:
            if self.park_ready(pk):
                self.park(pk)
                return True
        return False

    def barrier(self, need):
        a = self.a
        while need > self.next and not (self.next % TOT == SCR and not self.open and need <= self.next + P2S - SCR):
            self.step()
            self.late = getattr(self, "late", 0) + 1
        a.wait_both(lambda t: isdma(t) and t[1] < need, lambda t: isfl(t) and t[1] < need)
        a.e("s_barrier")
        out = [t[1] for t in a.vm_tags() if isdma(t)] + [t[1] for t in flat_tags(a.lgq) if isfl(t)] + [self.next]
        self.pub = min(out)
        if self.pub % TOT == SCR:
            self.pub += P2S - SCR
        self.freed = max(self.freed, self.cons)

    def read(self, pos, reg):
        assert pos < self.pub, (pos, self.pub)
        addr = (pos % RING) * 1024
        base = (V_L16, V_L16B, V_L16C)[addr >> 16]
        self.a.ds(f"ds_read_b128 v[{reg}:{reg+3}], v{base} offset:{addr & 0xffff}", ("frag", pos))


class Seq:
    def __init__(self, items, force=False, maxper=99):
        self.items = list(items)
        self.force = force
        self.maxper = maxper

    def take(self, sc, g, kinds):
        n = 0
        while self.items and n < self.maxper:
            fn, slots, early, kind = self.items[0]
            if kind not in kinds or early > g:
                return
            if not self.force:
                if slots > sc.free and not (sc.fresh and slots > sc.budget):
                    return
                if kind == "vm" and not sc.vm_ok(g):
                    return
            fn()
            sc.use(slots, kind, g)
            self.items.pop(0)
            n += 1

    def done(self):
        return not self.items

    def flush(self):
        for it in self.items:
            it[0]()
        self.items = []


class Dag:
    def __init__(self, a, ops):
        self.a, self.ops = a, ops
        self.left = list(range(len(ops)))
        self.at = {}
        self.off = 0
        self.keep = False

    def emit(self, k):
        t = self.ops[k][0]
        t() if callable(t) else self.a.e(t)

    def take(self, sc, g, kinds):
        g += self.off
        for k in list(self.left)[:80]:
            text, deps, tr, early = self.ops[k]
            kind = "vm" if callable(text) else ("s" if text.startswith("s_") else "v")
            if early > g or kind not in kinds or any(d not in self.at or self.at[d] >= g for d in deps):
                continue
            slots = 3 if kind == "vm" else (2 if tr else 1)
            if slots > sc.free:
                continue
            self.emit(k)
            sc.use(slots, kind, g - self.off)
            self.at[k] = g
            self.left.remove(k)

    def done(self):
        return not self.left

    def flush(self):
        if self.keep:
            return
        g = 10 ** 6
        while self.left:
            g += 1
            n = 0
            for k in list(self.left):
                if n < 6 and all(d in self.at and self.at[d] < g for d in self.ops[k][1]):
                    self.emit(k)
                    self.at[k] = g
                    self.left.remove(k)
                    n += 1


class RingFill:
    def __init__(self, ring, early=0, limit=INF, park=None, park_early=0, maxn=INF, cheap=False):
        self.cheap = cheap
        self.ring, self.early, self.limit, self.park, self.park_early, self.maxn = ring, early, limit, park, park_early, maxn

    def take(self, sc, g, kinds):
        if "vm" not in kinds:
            return
        r = self.ring
        if g >= self.early and self.maxn > 0:
            p = r.plan(self.limit)
            if p and p[0] == "flush":
                if (p[1] <= sc.free or sc.fresh) and g >= sc.fl_t:
                    r.step(self.limit)
                    sc.use(p[1], "s", g)
                    sc.fl_t = g + sc.fl_per
            elif p and sc.vm_ok(g) and (p[1] <= sc.free or sc.fresh or self.cheap):
                r.step(self.limit)
                sc.use(0 if self.cheap else p[1], "vm", g)
                self.maxn -= 1
                return
        if self.park is not None and g >= self.park_early and r.park_ready(self.park) and sc.vm_ok(g) and (3 <= sc.free or sc.fresh or self.cheap):
            r.park(self.park)
            sc.use(0 if self.cheap else 3, "vm", g)

    def done(self):
        return True

    def flush(self):
        pass


class Sched:
    def __init__(self, streams, budget, period, fl_per=3):
        self.streams, self.budget, self.period = streams, budget, period
        self.vm_t = 0.0
        self.fl_t, self.fl_per = 0, fl_per

    def vm_ok(self, g):
        return self.vm_t <= g

    def use(self, slots, kind, g):
        self.free -= slots
        self.fresh = False
        if kind == "vm":
            per = self.period(g) if callable(self.period) else self.period
            self.vm_t = max(self.vm_t, g - 1.0) + per

    def gap(self, g, used):
        self.free = self.budget - used
        self.fresh = True
        for s in self.streams:
            s.take(self, g, ("vm", "s"))
        for s in self.streams:
            s.take(self, g, ("v", "s"))
            assert g < getattr(s, "deadline", INF) or s.done(), ("deadline", g)

    def finish(self):
        for s in self.streams:
            s.flush()


def run_pass(a, ring, mf, sc, bars, depth, group, hook=None, fifo=V_FIFO, stamps=None, ver=None):
    n = len(mf)
    starts = {}
    m = 0
    while m < n:
        g = group(m) if callable(group) else group
        starts[m] = min(m + g, n) - 1
        m += g
    tags_of = lambda m: {mf[k][1] for k in range(m, starts[m] + 1)}

    def rd(m):
        if m in bars:
            ring.barrier(bars[m])
        ring.read(mf[m][0], fifo + 4 * (m % depth))

    for m in range(min(depth - 1, n)):
        rd(m)
    if hook:
        hook()
    if ver:
        t0 = tags_of(0)
        a.wait_vm(lambda t: t in t0)
        ver.compare(ver.fresh(t0))
        ver.branch()
    todo = []
    for m in range(n):
        if m in starts:
            last = starts[m]
            tags = tags_of(m)
            if ver:
                assert not ver.fresh(tags) and not ver.pending
                tags = tags_of(last + 1) if last + 1 < n else set()
                todo = ver.fresh(tags)
            a.wait_both(lambda t: t in tags, ("frag", mf[last][0]))
            ring.cons = mf[last][0] + 1
        mf[m][2](fifo + 4 * (m % depth))
        used = 0
        if m + depth - 1 < n:
            used += 3 if (m + depth - 1) in bars else 1
            rd(m + depth - 1)
        if m + 1 in starts:
            used += 1
        if ver and ver.pending:
            ver.branch()
            used += 1
        if todo:
            used += ver.cost(todo)
        sc.gap(m, used)
        if todo:
            ver.compare(todo)
            todo = []
        if stamps and m in stamps:
            stamps[m]()
    sc.finish()


class Verifier:
    def __init__(self, a, cfg, rel_sgpr, const, both=lambda s: False):
        self.inc = {L.X: 1, L.O: 1 << 16, L.X1: 1 << 24}[const]
        self.a, self.cfg, self.rel, self.const, self.both = a, cfg, rel_sgpr, const, both
        self.done = set()
        self.pending = None

    def fresh(self, tags):
        return sorted(t[1] for t in tags if isinstance(t, tuple) and t[1] not in self.done)

    def regs(self, steps):
        return [4 * s + d for s in steps for d in ((0, 2) if self.both(s) else (0,))]

    def cost(self, steps):
        return 2 * len(self.regs(steps))

    def cmp_text(self, steps):
        r = self.regs(steps)
        t = [f"v_accvgpr_read_b32 v{V_CHK}, a{r[0]}"]
        for x in r[1:]:
            t += [f"v_accvgpr_read_b32 v23, a{x}", f"v_max_u32 v{V_CHK}, v23, v{V_CHK}"]
        t += [f"v_cmp_eq_u32 vcc, -1, v{V_CHK}"]
        return "\n".join(t)

    def compare(self, steps):
        self.a.e(self.cmp_text(steps))
        self.pending = steps
        self.done.update(steps)

    def branch(self):
        a = self.a
        lr, lb = a.label("Lre"), a.label("Lbk")
        a.e(f"s_cbranch_vccnz {lr}\n{lb}:")
        t = [f"{lr}:", f"s_mov_b32 s{S_RT+1}, 0", f"{lr}_l:"]
        if self.cfg.get("timing"):
            t += [f"s_add_u32 s87, s87, {self.inc}"]
        for s in self.pending:
            t += [f"s_add_u32 s{S_RT}, s{S_LOFF}, s{self.rel}", f"s_add_u32 s{S_RT}, s{S_RT}, {self.const + s * 1024}",
                  f"buffer_load_dwordx4 a[{4*s}:{4*s+3}], v{V_L16}, s[{SRD_WS}:{SRD_WS+3}], s{S_RT} offen sc1"]
        t += ["s_waitcnt vmcnt(0)", self.cmp_text(self.pending), f"s_add_u32 s{S_RT+1}, s{S_RT+1}, 1",
              f"s_cbranch_vccz {lb}", f"s_cmp_lt_u32 s{S_RT+1}, {RETRY}", f"s_cbranch_scc1 {lr}_l", f"s_branch {lb}"]
        self.cfg["_cold"].append("\n".join(t))
        self.pending = None


def vseq(fns, early, kind="v", slots=1):
    return [(f, slots, early, kind) for f in fns]


def aload(a, s, sbase_setup, reg=None, tag="A"):
    if s % 4 == 0:
        sbase_setup(s)
    r = 4 * s if reg is None else reg
    a.vm(f"buffer_load_dwordx4 a[{r}:{r+3}], v{V_L16}, s[{SRD_WS}:{SRD_WS+3}], s{S_A} offen offset:{(s%4)*1024} sc1", (tag, s))


def lines(a, text):
    return [(lambda t=t: a.e(t)) for t in text.strip().split("\n") if t.strip()]


def cnt_off(a, dst, kind, sidx, nextlayer=False):
    c = (kind * 64 + (L.CNT_PER_LAYER if nextlayer else 0)) * L.CNT_STRIDE
    a.e(f"s_lshl_b32 s{dst}, s{sidx}, 8\ns_add_u32 s{dst}, s{dst}, s{S_COFF}")
    if c:
        a.e(f"s_add_u32 s{dst}, s{dst}, {c}")


def signal(a, kind, sidx, nextlayer=False, inc=S_ONE):
    cnt_off(a, S_T + 13, kind, sidx, nextlayer)
    a.e(f"s_atomic_add s{inc}, s[12:13], s{S_T+13}")


def chaos(a, cfg, kind, sidx, nextlayer=False):
    if not cfg.get("chaos"):
        return
    signal(a, kind, sidx, nextlayer)
    lb = a.label("Lchaos")
    a.e(f"s_and_b32 s{S_RT}, s2, {cfg['chaos']}\ns_cbranch_scc0 {lb}\ns_sleep 100\n{lb}:")


def esignal(a, cfg, kind, sidx, nextlayer=False):
    if cfg.get("qwait", False):
        a.wait_vm(lambda t: t not in ("xst", "ost", "kvst"))
    if cfg.get("sdelay"):
        a.e(f"s_sleep {cfg['sdelay']}")
    if not cfg.get("chaos"):
        signal(a, kind, sidx, nextlayer)


def poll_issue(a, kind, sidx):
    cnt_off(a, S_T + 12, kind, sidx)
    a.e(f"s_mov_b32 s{S_POLL}, 0")
    a.e(f"s_atomic_add s{S_POLL}, s[12:13], s{S_T+12} glc")


def poll_check(a, shift=0, target=16):
    lp, ok = a.label("Lpoll"), a.label("Lok")
    a.e(f"s_mov_b32 s{S_T+11}, 0")
    a.e(f"{lp}:")
    a.e("s_waitcnt lgkmcnt(0)")
    a.lgq = []
    a.e(f"s_bfe_u32 s{S_POLL}, s{S_POLL}, {(8 << 16) | shift}")
    a.e(f"s_cmp_ge_u32 s{S_POLL}, {target}\ns_cbranch_scc1 {ok}")
    a.e(f"s_mov_b32 s{S_POLL}, 0")
    a.e(f"s_atomic_add s{S_POLL}, s[12:13], s{S_T+12} glc")
    a.e(f"s_add_u32 s{S_T+11}, s{S_T+11}, 1")
    a.e(f"s_cmp_lt_u32 s{S_T+11}, {SPIN}\ns_cbranch_scc1 {lp}")
    a.e("s_waitcnt lgkmcnt(0)")
    a.e(f"{ok}:")


def poll2_a(a, kind, sidx):
    cnt_off(a, S_PADDR, kind, sidx)
    a.e(f"s_mov_b32 s{S_PA}, 0\ns_mov_b32 s{S_PB}, 0")
    a.e(f"s_atomic_umax s{S_PA}, s[12:13], s{S_PADDR} glc")


def poll2_check(a, cfg, target=16):
    lp, ok = a.label("Lpoll"), a.label("Lok")
    T_ = S_T + 11
    n_lds = len(a.lgq)
    a.e(f"s_atomic_umax s{S_PB}, s[12:13], s{S_PADDR} glc")
    a.e(f"s_mov_b32 s{T_}, 0")
    a.e(f"{lp}:")
    for r in (S_PA, S_PB):
        a.e("s_waitcnt lgkmcnt(1)")
        a.e(f"s_max_u32 s{S_RT}, s{S_PA}, s{S_PB}\ns_and_b32 s{S_RT}, s{S_RT}, 0xff")
        a.e(f"s_cmp_ge_u32 s{S_RT}, {target}\ns_cbranch_scc1 {ok}")
        a.e(f"s_atomic_umax s{r}, s[12:13], s{S_PADDR} glc")
    a.e(f"s_add_u32 s{T_}, s{T_}, 1\ns_cmp_lt_u32 s{T_}, {SPIN}\ns_cbranch_scc1 {lp}")
    a.e(f"{ok}:")
    a.lgq = a.lgq[-1:]


def gap_issue(a, cfg, kind, sidx):
    (poll2_a if cfg.get("dual", True) else poll_issue)(a, kind, sidx)


def gap_check(a, cfg):
    if cfg.get("dual", True):
        if cfg.get("dsleep"):
            a.e(f"s_sleep {cfg['dsleep']}")
        poll2_check(a, cfg)
    else:
        poll_check(a)


def poll(a, kind, sidx, shift=0):
    poll_issue(a, kind, sidx)
    poll_check(a, shift)


def a_setup(a, rel_sgpr, const):
    def f(s):
        if s == 0:
            a.e(f"s_add_u32 s{S_A}, s{S_LOFF}, s{rel_sgpr}\ns_add_u32 s{S_A}, s{S_A}, {const}")
        else:
            a.e(f"s_add_u32 s{S_A}, s{S_A}, 4096")
    return f


def res_load(a):
    P = 128
    a.e(f"s_add_u32 s{S_T}, s{S_XS}, {L.LBASE + L.X}")
    a.vm(f"buffer_load_dwordx4 v[{P}:{P+3}], v{V_XS1}, s[{SRD_WS}:{SRD_WS+3}], s{S_T} offen sc1", "res")
    a.vm(f"buffer_load_dwordx4 v[{P+4}:{P+7}], v{V_XS1}, s[{SRD_WS}:{SRD_WS+3}], s{S_T} offen offset:2048 sc1", "res")
    a.vm(f"buffer_load_dwordx2 v[{P+8}:{P+9}], v{V_XS2}, s[{SRD_WS}:{SRD_WS+3}], s{S_T} offen sc1", "res")


def stats_load(a, const):
    a.e(f"s_add_u32 s{S_T}, s{S_LOFF}, s{S_STA}\ns_add_u32 s{S_T}, s{S_T}, {const}")
    for n in range(4):
        a.vm(f"buffer_load_dwordx2 v[{V_ST+2*n}:{V_ST+2*n+1}], v{V_STL}, s[{SRD_WS}:{SRD_WS+3}], s{S_T} offen offset:{n*256} sc1", "st")


def stats_math(a, t):
    S = V_ST
    f = [lambda: a.wait_vm("st")]
    f += lines(a, f"""
v_add_f32 v{t}, v{S}, v{S+2}
v_add_f32 v{t+1}, v{S+4}, v{S+6}
v_add_f32 v{t}, v{t}, v{t+1}
v_mov_b32 v{t+1}, v{t}
v_permlane32_swap_b32 v{t}, v{t+1}
v_add_f32 v{t}, v{t}, v{t+1}
v_mul_f32 v{t}, {f32bits(-0.125)}, v{t}
""")
    for n in range(4):
        f += lines(a, f"""
v_add_f32 v{t+1}, v{S+2*n}, v{t}
v_mul_f32 v{t+1}, v{t+1}, v{t+1}
v_fmac_f32 v{S+2*n+1}, {f32bits(80.0)}, v{t+1}
""")
    f += lines(a, f"""
v_add_f32 v{t+1}, v{S+1}, v{S+3}
v_add_f32 v{t+2}, v{S+5}, v{S+7}
v_add_f32 v{t+1}, v{t+1}, v{t+2}
v_mov_b32 v{t+2}, v{t+1}
v_permlane32_swap_b32 v{t+1}, v{t+2}
v_add_f32 v{t+1}, v{t+1}, v{t+2}
v_mov_b32 v{t+2}, {f32bits(1e-5)}
v_fmac_f32 v{t+2}, {f32bits(1.0/640)}, v{t+1}
v_rsq_f32 v{S}, v{t+2}
v_cvt_pk_bf16_f32 v{t+1}, v{t}, v{t}
v_and_b32 v{t+1}, 0xffff0000, v{t+1}
v_sub_f32 v{t+1}, v{t}, v{t+1}
v_cvt_pk_bf16_f32 v{V_MF}, v{t}, v{t+1}
v_mov_b32 v{V_MF+1}, v{V_MF}
v_mov_b32 v{V_MF+2}, v{V_MF}
v_mov_b32 v{V_MF+3}, v{V_MF}
""")
    return f


def stamp(a, name, cfg, level=1, real=False):
    if cfg.get("spin"):
        if name == "start":
            a.e("s_memrealtime s[100:101]\ns_waitcnt lgkmcnt(0)")
        elif name == cfg["spin"][0] and not cfg.get("_spun"):
            cfg["_spun"] = True
            lp = a.label("Lspin")
            a.e(f"{lp}:\ns_memrealtime s[90:91]\ns_waitcnt lgkmcnt(0)\ns_sub_u32 s90, s90, s100\ns_cmp_lt_u32 s90, {cfg['spin'][1]}\ns_cbranch_scc1 {lp}")
            a.lgq = []
        return
    if not cfg.get("timing") or level > cfg.get("level", 1):
        return
    if (name in ("start", "end") or cfg.get("allrt")) and not real:
        stamp(a, name, cfg, level, True)
        if cfg.get("allrt") and name not in ("start", "end"):
            return
    names = cfg["_stamps"]
    key = ("rt_" if real else "") + name
    if key not in names:
        names.append(key)
    n = names.index(key)
    pend = cfg["_pend"]
    k = cfg["_k"][0]
    cfg["_k"][0] += 1
    pair = 90 + 2 * (k % 3)
    if len(pend) == 2:
        p, idx = pend.pop(0)
        a.e(f"v_writelane_b32 v31, s{p}, {idx}")
    a.e(f"{'s_memrealtime' if real else 's_memtime'} s[{pair}:{pair+1}]")
    pend.append((pair, n))
    if name == "end" and not real:
        stamp_flush(a, cfg, True)


def stamp_flush(a, cfg, store=False):
    if not cfg.get("timing"):
        return
    a.e("s_waitcnt lgkmcnt(0)")
    a.lgq = []
    while cfg["_pend"]:
        p, idx = cfg["_pend"].pop(0)
        a.e(f"v_writelane_b32 v31, s{p}, {idx}")
    cfg["_k"][0] = 0
    if store:
        a.e("v_writelane_b32 v31, s87, 63\ns_mov_b32 s87, 0")
        a.e(f"s_add_u32 s{S_TS+1}, s{S_TS+2}, {256 * cfg['_slot']}")
        a.vm(f"buffer_store_dword v31, v30, s[72:75], s{S_TS+1} offen", "stamp")
        a.e("s_nop 1\nv_mov_b32 v31, 0")


def phi_tile(a, acc, dst, R, RL, t, mixed):
    f = []
    for p in range(8):
        r = 2 * p
        u, e = t + 4 * (p & 1), t + 4 * (p & 1) + 2
        if mixed:
            f += lines(a, f"""
v_pk_fma_f32 v[{e}:{e+1}], v[{acc+r}:{acc+r+1}], v[{RL+r}:{RL+r+1}], v[{V_C2}:{V_C2+1}] op_sel_hi:[1,1,0]
v_pk_fma_f32 v[{u}:{u+1}], v[{acc+r}:{acc+r+1}], v[{R+r}:{R+r+1}], v[{V_C3}:{V_C3+1}] op_sel_hi:[1,1,0]
v_exp_f32 v{e}, v{e} clamp
v_exp_f32 v{e+1}, v{e+1} clamp
v_max_f32 v{u}, v{V_LO}, v{u}
v_max_f32 v{u+1}, v{V_LO}, v{u+1}
""")
        else:
            f += lines(a, f"""
v_pk_mul_f32 v[{e}:{e+1}], v[{acc+r}:{acc+r+1}], v[{RL+r}:{RL+r+1}]
v_pk_fma_f32 v[{u}:{u+1}], v[{acc+r}:{acc+r+1}], v[{R+r}:{R+r+1}], s[{S_EPS2}:{S_EPS2+1}]
v_exp_f32 v{e}, v{e} clamp
v_exp_f32 v{e+1}, v{e+1} clamp
v_max_f32 v{u}, s{S_EPS2}, v{u}
v_max_f32 v{u+1}, s{S_EPS2}, v{u+1}
""")
        f += lines(a, f"""
v_pk_add_f32 v[{u}:{u+1}], v[{u}:{u+1}], v[{e}:{e+1}]
v_cvt_pk_bf16_f32 v{dst+p}, v{u}, v{u+1}
""")
    return f


def set_exec(a, lo, hi):
    a.e(f"s_mov_b32 exec_lo, {lo:#x}\ns_mov_b32 exec_hi, {hi:#x}")


def lanemask(fn):
    m = 0
    for l in range(64):
        if fn(l):
            m |= 1 << l
    return m & 0xffffffff, m >> 32


T32 = [V_ACC + 16 * t for t in range(6)]
P1_R, P1_RL = V_TMP, V_TMP + 16
P1_PT = [144, 152, 240]
P1_TT = 248
PK3 = P3S + 156
PK3A = P3S + 52
G32 = lambda m: 3 if m < 60 else (4 if m < 100 else (2 if m == 100 else 3))


def mk32(a, pos, t, s, wfirst):
    def f(b):
        x = f"a[{4*s}:{4*s+3}]" if s < 40 else f"v[{V_MF}:{V_MF+3}]"
        c = "0" if s == 0 else f"v[{T32[t]}:{T32[t]+15}]"
        w = f"v[{b}:{b+3}]"
        p, q = (w, x) if wfirst else (x, w)
        a.e(f"v_mfma_f32_32x32x16_bf16 v[{T32[t]}:{T32[t]+15}], {p}, {q}, {c}")
    return (pos, ("A", s) if s < 40 else "none", f)


def panel(a, base, tiles, wfirst):
    return sorted((mk32(a, base + L.fragpos(t, s), t, s, wfirst) for t in tiles for s in range(41)), key=lambda x: x[0])


def poison_items(a, what, early, step=3):
    W = f"s[{SRD_WS}:{SRD_WS+3}]"
    P4, P2 = f"v[{V_POI}:{V_POI+3}]", f"v[{V_POI}:{V_POI+1}]"
    T_ = S_T + 10
    tag = ("poison", what)
    if what == "kv":
        def f():
            a.e(f"s_add_u32 s{T_}, s{S_LOFF}, s{S_KVS}\ns_mov_b64 exec, s[{S_M210}:{S_M210+1}]")
            a.vm(f"buffer_store_dwordx2 {P2}, v{V_T8}, {W}, s{T_} offen sc1", tag)
            a.e("s_mov_b64 exec, -1")
        fs = [f]
    elif what == "o":
        def f0():
            a.e(f"s_add_u32 s{T_}, s{S_LOFF}, s{S_OS}")
            a.vm(f"buffer_store_dwordx4 {P4}, v{V_OST}, {W}, s{T_} offen sc1", tag)
        fs = [f0, lambda: a.vm(f"buffer_store_dwordx4 {P4}, v{V_OST}, {W}, s{T_} offen offset:512 sc1", tag),
              lambda: a.vm(f"buffer_store_dwordx4 {P4}, v{V_OST}, {W}, s{T_} offen offset:768 sc1", tag)]
    else:
        const = L.X1 if what == "x1" else L.LSTR + L.X
        srd = W if what == "x1" else f"s[{SRD_NX}:{SRD_NX+3}]"

        def f0():
            a.e(f"s_add_u32 s{T_}, s{S_LOFF}, s{S_XS}\ns_add_u32 s{T_}, s{T_}, {const}")
            a.vm(f"buffer_store_dwordx4 {P4}, v{V_XS1}, {srd}, s{T_} offen sc1", tag)
        fs = [f0, lambda: a.vm(f"buffer_store_dwordx4 {P4}, v{V_XS1}, {srd}, s{T_} offen offset:2048 sc1", tag),
              lambda: a.vm(f"buffer_store_dwordx2 {P2}, v{V_XS2}, {srd}, s{T_} offen sc1", tag)]
    return [(f_, 4, early + step * k, "vm") for k, f_ in enumerate(fs)]


def stats_seq(a, cfg, kind, const, tail, polled=True):
    it = []
    p0 = cfg.get("stp", 20)
    if polled and cfg.get("early", True):
        it += [(lambda: (a.wait_vm(lambda t: t in ("sst", "old")), a.e(f"s_atomic_add s{S_C256}, s[12:13], s{S_T+9}")), 2, 0, "s")]
    if polled:
        it += [(lambda: poll_issue(a, kind, S_TB32), 5, p0, "s"),
               (lambda: poll_check(a, 8), 6, p0 + 24, "s"),
               (lambda: stats_load(a, const), 10, p0 + 25, "s")]
    m = Seq(vseq(stats_math(a, P1_TT) + tail, cfg.get("stm", 74)), maxper=3)
    m.deadline = 97
    return [Seq(it, force=True, maxper=1), m]


def phi_ops(acc, dst, R, RL, tmp, early):
    ops = []
    last = {}
    for r in range(16):
        e = tmp + r % 8
        x = acc + r
        b = len(ops)
        ops.append((f"v_mul_f32 v{e}, v{x}, v{RL+r}", [last[e]] if e in last else [], False, early))
        ops.append((f"v_exp_f32 v{e}, v{e} clamp", [b], True, early))
        ops.append((f"v_fma_f32 v{x}, v{x}, v{R+r}, s{S_EPS2}", [b], False, early))
        ops.append((f"v_max_f32 v{x}, s{S_EPS2}, v{x}", [b + 2], False, early))
        ops.append((f"v_add_f32 v{x}, v{x}, v{e}", [b + 1, b + 3], False, early))
        last[e] = b + 4
        if r & 1:
            ops.append((f"v_cvt_pk_bf16_f32 v{dst + (r >> 1)}, v{x-1}, v{x}", [b - 1, b + 4], False, early))
    return ops


def phase1(a, ring, cfg, first):
    AW = cfg.get("aw", 10)
    T, R, RL, PT, tt = T32, P1_R, P1_RL, P1_PT, P1_TT
    park = True
    early = cfg.get("early", True)
    ver = None
    pz = Seq(poison_items(a, "kv", cfg.get("pz1", 76)) + poison_items(a, "o", cfg.get("pz1", 76) + 4) if early else [], force=True, maxper=1)
    setup = a_setup(a, S_XA, L.X)
    mf = panel(a, P1S, (0, 1, 2), False)
    tail = lines(a, f"v_mul_f32 v{tt}, {f32bits(LOG2E)}, v{V_ST}\nv_cndmask_b32 v{tt}, v{tt}, v{V_ST}, s[{S_LO32}:{S_LO32+1}]")
    tail += [lambda: a.ds(f"ds_write_b32 v{V_RSW}, v{tt}", "rs")]
    for i in range(4):
        tail += [lambda i=i: a.ds(f"ds_read_b128 v[{R+4*i}:{R+4*i+3}], v{V_RSR} offset:{32*i}", "rs")]
        tail += [lambda i=i: a.ds(f"ds_read_b128 v[{RL+4*i}:{RL+4*i+3}], v{V_RSR} offset:{128+32*i}", "rs")]
    z = vseq(lines(a, f"v_mov_b32 v{tt+4}, 0\nv_mov_b32 v{tt+5}, 0\nv_mov_b32 v{tt+6}, 0\nv_mov_b32 v{tt+7}, 0"), 50)
    z += [(lambda: a.ds(f"ds_write_b128 v{V_T16}, v[{tt+4}:{tt+7}] offset:{GB_OFF}", "z"), 5, 66, "v"),
          (lambda: a.ds(f"ds_write_b128 v{V_T16}, v[{tt+4}:{tt+7}] offset:{GB_OFF+1024}", "z"), 5, 68, "v")]
    zs = Seq(z, maxper=3, force=True)
    d0 = Dag(a, [(lambda: a.wait_ds("rs"), [], False, 101)] + [(t_, [0] + [d + 1 for d in dp], tr, e) for t_, dp, tr, e in phi_ops(T[0], PT[0], R, RL, 112, 102)])
    if first:
        LA = cfg.get("la0", 3)
        ring.maxg = 12
        it = []
        done_a = cfg["_a0"]
        for blk in range(LA, 11):
            e = 12 * (blk - LA)
            need = [s for s in range(done_a, 40) if L.fragpos(0, s) < 12 * blk + 12]
            done_a += len(need)
            ops = [((lambda b=blk: ring.step(min(12 * b + 12, 124))), 4) for k in range(3 if blk < 10 else 1)]
            ops += [((lambda s=s: aload(a, s, setup)), 2) for s in need]
            it += [(f_, sl, e + int(k * 12 / len(ops)), "vm") for k, (f_, sl) in enumerate(ops)]
        pp = []
        if cfg.get("fuse", True):
            def chk(shift, target, gate):
                def f():
                    poll_check(a, shift, target)
                    if gate:
                        ring.gate = gate
                return f
            g0, dg = cfg.get("pkpoll", 20), cfg.get("pkstep", 15)
            pp += [(lambda: a.vm(S0.signal_text(), "dsig"), 3, 1, "s")]
            for n_, (kind, idx, shift, target, gate) in enumerate(((L.C_X, S_TB32, 8, 4, 0), (L.C_PQKV, S_KVC, 8, 60, SCR), (L.C_PWO, S_CW, 0, 20, P3S),
                                                                   (L.C_PW13, S_KVC, 0, 24, P4S), (L.C_PW2, S_CW, 0, 48, INF))):
                if not (shift and cfg.get("onesig", True)):
                    pp += [((lambda kind=kind, idx=idx: poll_issue(a, kind, idx)), 5, g0 + dg * n_, "s"), (chk(shift, target, gate), 6, g0 + dg * n_ + dg - 2, "s")]
                if n_ == 0:
                    pp += [(lambda: stats_load(a, L.ST), 10, 30, "s")]
            pp += [(lambda: res_load(a), 8, 98, "s")]
        sc = Sched([Seq(it, force=True, maxper=2), Seq(pp, force=True, maxper=1), pz, d0, RingFill(ring, 12 * (11 - LA), 164), zs] +
                   stats_seq(a, cfg, None, L.ST, tail, polled=False), 6, 2.0)
        bars = {12 * k: min(12 * k + 12, 123) for k in range(11)}
        hook = None
    else:
        ap = cfg.get("aper", 2.3)
        al = Seq([((lambda s=s: aload(a, s, setup)), 2, int(ap * (s - AW)), "vm") for s in range(AW, 40)], force=True, maxper=1)
        if early:
            ver = Verifier(a, cfg, S_XA, L.X, lambda s_: s_ % 5 == 4)
        sc = Sched([al, pz, d0] + stats_seq(a, cfg, L.C_X, L.ST, tail) + [RingFill(ring, 0, cfg.get("lim1a", 240), PK3 if park else None, 60, cheap=True), zs], 6, cfg.get("per1", 2.3))
        bars = {0: 48, 48: 72, 72: 96, 96: 123}

        def hook():
            gap_check(a, cfg)
            cfg["_slot"] = 0
            stamp(a, "end", cfg, 0)
            for s in range(AW):
                aload(a, s, setup)
    run_pass(a, ring, mf, sc, bars, cfg.get("d32", 9), G32, hook, ver=ver)
    ring.maxg = 16
    assert ring.freed >= P2S - RING, ring.freed
    cfg["_info"].append(f"P1a({first}): ring.next {ring.next} parked {ring.parked} late {getattr(ring, 'late', 0)}")
    stamp(a, "P1a done", cfg)
    if first:
        P = 128
        a.wait_vm("res")
        for p in range(10):
            a.e(f"v_lshlrev_b32 v{V_RES+2*p}, 16, v{P+p}\nv_and_b32 v{V_RES+2*p+1}, 0xffff0000, v{P+p}")
    KVA = [80, 64, 96, 128]
    pairs = [(0, 2), (0, 1), (1, 2), (1, 1)]

    def kvm(b, u):
        x, y = pairs[b]
        c = "0" if u == 0 else f"v[{KVA[b]}:{KVA[b]+15}]"
        a.e(f"v_mfma_f32_32x32x16_bf16 v[{KVA[b]}:{KVA[b]+15}], v[{PT[x]+4*u}:{PT[x]+4*u+3}], v[{PT[y]+4*u}:{PT[y]+4*u+3}], {c}")
    f = phi_tile(a, T[1], PT[1], R, RL, tt, True)
    for k, g in enumerate(f):
        g()
        if k % cfg.get("pk_every", 14) == 0:
            ring.any_step((PK3,))
    set_exec(a, 0xFF000000, 0xFF000000)
    for p in range(8):
        a.e(f"v_mov_b32 v{PT[1]+p}, 0x3f803f80")
    a.e("s_mov_b64 exec, -1")
    stamp(a, "phi done", cfg, 3)
    for n, (b, u) in enumerate(((1, 0), (1, 1), (3, 0), (3, 1))):
        kvm(b, u)
        if n & 1 and cfg.get("pk_kv", 1):
            ring.any_step((PK3,))
        for p in (2 * n, 2 * n + 1):
            a.e(f"v_mul_f32 v{T[2]+2*p}, v{T[2]+2*p}, v{R+2*p}\nv_mul_f32 v{T[2]+2*p+1}, v{T[2]+2*p+1}, v{R+2*p+1}")
        for p in (2 * n, 2 * n + 1):
            a.e(f"v_cvt_pk_bf16_f32 v{PT[2]+p}, v{T[2]+2*p}, v{T[2]+2*p+1}")
    rho = lambda l, i: 8 * i + 4 * (l >> 5)
    for i, (b, u) in enumerate(((0, 0), (0, 1), (2, 0), (2, 1))):
        if i:
            a.e("s_mov_b64 exec, -1")
        kvm(b, u)
        if cfg.get("pk_kv", 1):
            ring.any_step((PK3,))
        set_exec(a, *lanemask(lambda l: (l & 31) == 24 or (8 <= (l & 31) < 16 and rho(l, i) >= 20)))
        a.ds(f"ds_write_b128 v{V_G1}, v[{KVA[1]+4*i}:{KVA[1]+4*i+3}] offset:{32*i}", "g")
    set_exec(a, *lanemask(lambda l: 8 <= (l & 31) < 16 or (l & 31) == 24))
    a.ds(f"ds_write_b128 v{V_G1}, v[{KVA[3]}:{KVA[3]+3}] offset:128", "g")
    for i in range(4):
        set_exec(a, *lanemask(lambda l: ((l & 31) < 20) == (rho(l, i) < 20)))
        a.ds(f"ds_write_b128 v{V_G0}, v[{KVA[0]+4*i}:{KVA[0]+4*i+3}] offset:{32*i}", "g")
    set_exec(a, *lanemask(lambda l: (l & 31) >= 20))
    a.ds(f"ds_write_b128 v{V_G0}, v[{KVA[2]}:{KVA[2]+3}] offset:128", "g")
    a.e("s_mov_b64 exec, -1")
    a.wait_ds_all()
    stamp(a, "G written", cfg, 3)
    ring.barrier(P1S + 164)
    for w in range(4):
        a.ds(f"ds_read_b128 v[{64+4*w}:{67+4*w}], v{V_T16} offset:{GC_OFF + w*GC_STR}", "g")
    a.e(f"s_add_u32 s{S_T}, s{S_LOFF}, s{S_KVS}")

    def kvstore():
        a.wait_ds("g")
        a.e("v_pk_add_f32 v[64:65], v[64:65], v[68:69]\nv_pk_add_f32 v[66:67], v[66:67], v[70:71]")
        a.e("v_pk_add_f32 v[72:73], v[72:73], v[76:77]\nv_pk_add_f32 v[74:75], v[74:75], v[78:79]")
        a.e("v_pk_add_f32 v[64:65], v[64:65], v[72:73]\nv_pk_add_f32 v[66:67], v[66:67], v[74:75]")
        a.e("v_cvt_pk_bf16_f32 v68, v64, v65\nv_cvt_pk_bf16_f32 v69, v66, v67")
        a.wait_vm(("poison", "kv"))
        chaos(a, cfg, L.C_KV, S_KVC)
        a.e(f"s_mov_b64 exec, s[{S_M210}:{S_M210+1}]")
        a.vm(f"buffer_store_dwordx2 v[68:69], v{V_T8}, s[{SRD_WS}:{SRD_WS+3}], s{S_T} offen sc1", "kvst")
        if early:
            esignal(a, cfg, L.C_KV, S_KVC)
        set_exec(a, 0x00FF0000, 0x00FF0000)
        for i in range(4):
            a.ds(f"ds_write_b64 v{V_QW1}, v[{PT[1]+2*i}:{PT[1]+2*i+1}] offset:{16*i}", "q")
        a.e("s_mov_b64 exec, -1")
        stamp(a, "kv stored", cfg)
    mf = panel(a, P1S, (3,), False)
    if early:
        sg = Seq(poison_items(a, "x1", 2) + [(lambda: poll_issue(a, L.C_KV, S_KVC), 5, cfg.get("kvp", 18), "s")], force=True, maxper=1)
    else:
        sg = Seq([(lambda: (a.wait_vm("kvst"), signal(a, L.C_KV, S_KVC)), 5, cfg.get("kvsig", 22), "s")], force=True)
    sc = Sched([sg, RingFill(ring, 0, INF, PK3 if park else None, 0, maxn=cfg.get("n1b", 17))], 6, cfg.get("per1b", 2.4))
    run_pass(a, ring, mf, sc, {cfg.get("b1b", 24): 0}, cfg.get("d32", 9), 3, kvstore)

    def kvload():
        a.e(f"s_add_u32 s{S_T}, s{S_LOFF}, s{S_KVR}")
        a.e(f"s_mov_b64 exec, s[{S_MKV}:{S_MKV+1}]")
        for i in range(8):
            a.vm(f"buffer_load_dwordx4 v[{72+4*i}:{75+4*i}], v{V_KVL}, s[{SRD_WS}:{SRD_WS+3}], s{S_T} offen sc1", ("kv", i))
            if i < 7:
                a.e(f"s_add_u32 s{S_T}, s{S_T}, {2 * L.KV_STR}")
        a.e("s_mov_b64 exec, -1")
    if early:
        stamp(a, "P1b done", cfg)
        poll_check(a)
        stamp(a, "kv polled", cfg)
        kvload()
    f = phi_tile(a, T[3], PT[0], R, RL, tt, False)
    for k, g in enumerate(f):
        g()
        if not early and k == cfg.get("kvpoll", 8):
            poll_issue(a, L.C_KV, S_KVC)
        if k % cfg.get("pk_t3", 16) == 12:
            ring.any_step((PK3A, PK3), P2S + 100)
    for i in range(4):
        a.ds(f"ds_write_b64 v{V_QW3}, v[{PT[0]+2*i}:{PT[0]+2*i+1}] offset:{16*i}", "q")
    if not early:
        stamp(a, "P1b done", cfg)
        poll_check(a)
        stamp(a, "kv polled", cfg)
        kvload()
    PQ = 144
    for s in range(2):
        for u in range(2):
            a.ds(f"ds_read_b64_tr_b16 v[{PQ+4*s+2*u}:{PQ+4*s+2*u+1}], v{V_QR} offset:{(16*s+4*u)*72}", "pq")
    for u in range(2):
        a.ds(f"ds_read_b64_tr_b16 v[{PQ+8+2*u}:{PQ+8+2*u+1}], v{V_QR2} offset:{4*u*72}", "pq")
    for k in range(cfg.get("dmakv", 2)):
        ring.any_step((PK3A, PK3), P2S + 100)
    stamp(a, "kv issued", cfg, 3)
    lsum, lre = a.label("Lkvsum"), a.label("Lkvre")
    a.e(f"s_mov_b32 s{S_RT+1}, 0\n{lsum}:")
    for i in range(8):
        if i % 2 == 0:
            a.wait_vm(("kv", i + 1))
            if i in (0, 6):
                stamp(a, f"kv got{i}", cfg, 3)
        for c in range(4):
            src = 72 + 4 * i + c
            if i == 0:
                a.e(f"v_lshlrev_b32 v{64+2*c}, 16, v{src}\nv_and_b32 v{65+2*c}, 0xffff0000, v{src}")
            else:
                t_ = 104 + 2 * c
                a.e(f"v_lshlrev_b32 v{t_}, 16, v{src}\nv_and_b32 v{t_+1}, 0xffff0000, v{src}")
        if i:
            for c in range(4):
                a.e(f"v_pk_add_f32 v[{64+2*c}:{65+2*c}], v[{64+2*c}:{65+2*c}], v[{104+2*c}:{105+2*c}]")
    if early:
        a.e("v_max_u32 v112, v72, v74")
        for i in range(1, 8):
            a.e(f"v_max3_u32 v112, v{72+4*i}, v{74+4*i}, v112")
        a.e(f"v_cmp_eq_u32 vcc, -1, v112\ns_and_b64 vcc, vcc, s[{S_MKV}:{S_MKV+1}]\ns_cbranch_scc1 {lre}\n{lre}_b:")
        b = Asm()
        b.e(f"{lre}:\n" + ("s_add_u32 s87, s87, 256\n" if cfg.get("timing") else "") + f"s_add_u32 s{S_RT+1}, s{S_RT+1}, 1\ns_cmp_ge_u32 s{S_RT+1}, {RETRY}\ns_cbranch_scc1 {lre}_b")
        keep, a.out = a.out, b.out
        svq = list(a.vmq)
        kvload()
        a.e(f"s_waitcnt vmcnt(0)\ns_branch {lsum}")
        a.vmq = svq
        cfg["_cold"].append("\n".join(x.text for x in a.out))
        a.out = keep
    for k in range(cfg.get("dmasum", 6)):
        ring.any_step((PK3A, PK3), P2S + 100)
    for k in range(4):
        a.e(f"v_permlane32_swap_b32 v{64+k}, v{68+k}")
    a.e("v_pk_add_f32 v[64:65], v[64:65], v[68:69]\nv_pk_add_f32 v[66:67], v[66:67], v[70:71]")
    a.e("v_cvt_pk_bf16_f32 v68, v64, v65\nv_cvt_pk_bf16_f32 v69, v66, v67")
    a.e(f"s_mov_b64 exec, s[{S_MKV}:{S_MKV+1}]")
    a.ds(f"ds_write_b64 v{V_GBW}, v[68:69]", "gb")
    a.e("s_mov_b64 exec, -1")
    a.wait_ds_all()
    stamp(a, "kv summed", cfg)
    stamp_flush(a, cfg)
    ring.barrier(0)
    GX, GY, DX, DY = 208, 220, 64, 80
    for s in range(3):
        a.ds(f"ds_read_b128 v[{GY+4*s}:{GY+4*s+3}], v{V_GBY} offset:{32*s}", ("gy", s))
    for s in range(3):
        a.ds(f"ds_read_b128 v[{GX+4*s}:{GX+4*s+3}], v{V_GBX} offset:{32*s}", ("gx", s))
    for s in range(3):
        a.wait_ds(("gy", s))
        c = "0" if s == 0 else f"v[{DY}:{DY+15}]"
        a.e(f"v_mfma_f32_32x32x16_bf16 v[{DY}:{DY+15}], v[{GY+4*s}:{GY+4*s+3}], v[{PQ+4*s}:{PQ+4*s+3}], {c}")
    for s in range(3):
        a.wait_ds(("gx", s))
        c = "0" if s == 0 else f"v[{DX}:{DX+15}]"
        a.e(f"v_mfma_f32_32x32x16_bf16 v[{DX}:{DX+15}], v[{GX+4*s}:{GX+4*s+3}], v[{PQ+4*s}:{PQ+4*s+3}], {c}")
    a.e(f"s_add_u32 s{S_T}, s{S_LOFF}, s{S_OS}")
    r0, r1 = 232, 234
    a.e(f"v_add_f32 v{r0}, s{S_EPS2}, v{DY+8}\nv_add_f32 v{r1}, s{S_EPS2}, v{DY+9}")
    a.e(f"v_rcp_f32 v{r0}, v{r0}\nv_rcp_f32 v{r1}, v{r1}")
    OP = 236
    a.wait_vm(("poison", "o"))
    chaos(a, cfg, L.C_O, S_TB32)
    for (src, rr, dst, off) in ((DY, (r0, r1), OP + 8, 512), (DX, (r0, r0), OP, 0), (DX + 8, (r1, r1), OP + 4, 768)):
        for p in range(4):
            r = rr[p >> 1]
            a.e(f"v_pk_mul_f32 v[{src+2*p}:{src+2*p+1}], v[{src+2*p}:{src+2*p+1}], v[{r}:{r+1}] op_sel_hi:[1,0]")
        for p in range(4):
            a.e(f"v_cvt_pk_bf16_f32 v{dst+p}, v{src+2*p}, v{src+2*p+1}")
        if off == 512:
            a.e("s_mov_b32 exec_hi, 0")
        a.vm(f"buffer_store_dwordx4 v[{dst}:{dst+3}], v{V_OST}, s[{SRD_WS}:{SRD_WS+3}], s{S_T} offen offset:{off} sc1", "ost")
        if off == 512:
            a.e("s_mov_b64 exec, -1")
    stamp(a, "o stored", cfg)
    if not early:
        ring.steps(cfg.get("dmao", 8))
        a.wait_vm("ost")
    esignal(a, cfg, L.C_O, S_TB32)
    stamp(a, "o sig", cfg, 3)
    n = ring.steps(limit=P2S + 100)
    n1, n2 = cfg.get("eo0" if first else "eo", (2, 4))
    for k in range(n1):
        ring.park(PK3A) if ring.park_ready(PK3A) else ring.any_step((PK3,))
    gap_issue(a, cfg, L.C_O, S_TB32P)
    for k in range(n2):
        ring.park(PK3A) if ring.park_ready(PK3A) else ring.any_step((PK3,))
    cfg["_info"].append(f"P1({first}) end: ring.next {ring.next} late parks {n}")
    ring.cons = P2S
    a.wait_vm(lambda t: isdma(t) and t[1] < P2S + 100)
    stamp(a, "o signalled", cfg, 4)


def next_layer(a):
    a.e(f"s_mov_b32 s{S_LAY}, 1\ns_mov_b32 s{S_LOFF}, {L.LBASE + L.LSTR}\ns_mov_b32 s{S_COFF}, {L.CNT_PER_LAYER * L.CNT_STRIDE}")


def out_epilogue(a, ring, cfg, xconst, stconst, kind, nextlayer, final_branch):
    P = V_TMP
    a.e(f"s_add_u32 s{S_T}, s{S_LOFF}, s{S_XS}\ns_add_u32 s{S_T}, s{S_T}, {xconst}")
    for p in range(10):
        a.e(f"v_cvt_pk_bf16_f32 v{P+p}, v{V_RES+2*p}, v{V_RES+2*p+1}")
    if final_branch:
        cfg["_final"] = (list(cfg["_pend"]), cfg["_k"][0])
        a.e(f"s_cmp_eq_u32 s{S_LAY}, 1\ns_cbranch_scc1 L_final")
    early = cfg.get("early", True)
    a.wait_vm(("poison", "x2" if nextlayer else "x1"))
    chaos(a, cfg, kind, S_TB32P, nextlayer)
    a.vm(f"buffer_store_dwordx4 v[{P}:{P+3}], v{V_XS1}, s[{SRD_WS}:{SRD_WS+3}], s{S_T} offen sc1", "xst")
    a.vm(f"buffer_store_dwordx4 v[{P+4}:{P+7}], v{V_XS1}, s[{SRD_WS}:{SRD_WS+3}], s{S_T} offen offset:2048 sc1", "xst")
    a.vm(f"buffer_store_dwordx2 v[{P+8}:{P+9}], v{V_XS2}, s[{SRD_WS}:{SRD_WS+3}], s{S_T} offen sc1", "xst")
    if early:
        esignal(a, cfg, kind, S_TB32P, nextlayer)
        if cfg.get("ebar", True):
            ring.barrier(0)
    f = []
    for p in range(10):
        f += lines(a, f"v_lshlrev_b32 v{V_RES+2*p}, 16, v{P+p}\nv_and_b32 v{V_RES+2*p+1}, 0xffff0000, v{P+p}")
    t = V_TMP + 16
    f += lines(a, f"v_pk_add_f32 v[{t}:{t+1}], v[{V_RES}:{V_RES+1}], v[{V_RES+2}:{V_RES+3}]")
    f += lines(a, f"v_pk_add_f32 v[{t+2}:{t+3}], v[{V_RES+4}:{V_RES+5}], v[{V_RES+6}:{V_RES+7}]")
    for p in range(4, 10):
        d = t + 2 * (p & 1)
        f += lines(a, f"v_pk_add_f32 v[{d}:{d+1}], v[{d}:{d+1}], v[{V_RES+2*p}:{V_RES+2*p+1}]")
    f += lines(a, f"v_pk_add_f32 v[{t}:{t+1}], v[{t}:{t+1}], v[{t+2}:{t+3}]\nv_add_f32 v{t}, v{t}, v{t+1}")

    def red(x, y):
        return lines(a, f"v_mov_b32 v{y}, v{x}\nv_permlane16_swap_b32 v{x}, v{y}\nv_add_f32 v{x}, v{x}, v{y}\n"
                        f"v_mov_b32 v{y}, v{x}\nv_permlane32_swap_b32 v{x}, v{y}\nv_add_f32 v{x}, v{x}, v{y}")
    f += red(t, t + 1)
    f += lines(a, f"v_mul_f32 v{t}, {f32bits(1.0/80)}, v{t}")
    q = t + 4
    for p in range(10):
        d = t + 8 + 2 * (p & 3)
        f += lines(a, f"v_pk_add_f32 v[{d}:{d+1}], v[{V_RES+2*p}:{V_RES+2*p+1}], v[{t}:{t+1}] op_sel_hi:[1,0] neg_lo:[0,1] neg_hi:[0,1]")
        qq = q + 2 * (p & 1)
        if p < 2:
            f += lines(a, f"v_pk_mul_f32 v[{qq}:{qq+1}], v[{d}:{d+1}], v[{d}:{d+1}]")
        else:
            f += lines(a, f"v_pk_fma_f32 v[{qq}:{qq+1}], v[{d}:{d+1}], v[{d}:{d+1}], v[{qq}:{qq+1}]")
    f += lines(a, f"v_pk_add_f32 v[{q}:{q+1}], v[{q}:{q+1}], v[{q+2}:{q+3}]\nv_add_f32 v{t+1}, v{q}, v{q+1}")
    f += red(t + 1, t + 2)
    for k, g in enumerate(f):
        g()
        p_ = ring.plan()
        if p_ and k % (cfg.get("fl_every", 4) if p_[0] == "flush" else cfg.get("epi_every", 10)) == 2:
            ring.steps(1)
        if not nextlayer and k % cfg.get("epi_every", 10) == 5:
            for pk in (PK3A, PK3):
                if ring.park_ready(pk):
                    ring.park(pk)
                    break
        if early and k == cfg.get("xpoll", 40):
            if nextlayer:
                a.e(f"s_mov_b32 s{S_COFF}, {L.CNT_PER_LAYER * L.CNT_STRIDE}")
            gap_issue(a, cfg, kind, S_TB32)
            if nextlayer:
                a.e(f"s_mov_b32 s{S_COFF}, 0")
    a.e(f"s_add_u32 s{S_T}, s{S_LOFF}, s{S_STS}\ns_add_u32 s{S_T}, s{S_T}, {stconst}")
    a.e("s_mov_b64 exec, 0xffff")
    a.vm(f"buffer_store_dwordx2 v[{t}:{t+1}], v{V_STS}, s[{SRD_WS}:{SRD_WS+3}], s{S_T} offen sc1", "sst")
    a.e("s_mov_b64 exec, -1")
    key = "x2" if nextlayer else "x1"
    if early:
        if not cfg.get("ebar", True):
            ring.barrier(0)
        n1, n2 = cfg.get("e" + key, (0, 8) if nextlayer else (0, INF))
        ring.steps(n1)
        stamp(a, key + " epi end", cfg, 1)
        cnt_off(a, S_T + 9, kind, S_TB32P, nextlayer)
        if nextlayer:
            ring.steps(n2)
        else:
            while ring.any_step((PK3A, PK3), PK3):
                pass
        while ring.open:
            ring.step()
        if nextlayer:
            next_layer(a)
    else:
        ring.steps(cfg.get("dma_after_st", 2))
        a.wait_vm("xst")
        signal(a, kind, S_TB32P, nextlayer)
        ring.barrier(0)
        n1, n2, n3 = cfg.get("gap" + key, (5, 3, 4) if nextlayer else (5, 3, INF))
        ring.steps(n1)
        a.wait_vm("sst")
        signal(a, kind, S_TB32P, nextlayer, S_C256)
        ring.steps(n2)
        stamp(a, key + " epi end", cfg, 1)
        if nextlayer:
            next_layer(a)
        gap_issue(a, cfg, kind, S_TB32)
        ring.steps(n3)
        while ring.open:
            ring.step()
    cfg["_info"].append(f"epilogue end: ring.next {ring.next}")


def mk16(a, pos, t, s, reg, tag):
    def f(b):
        c = V_RES + 4 * t
        a.e(f"v_mfma_f32_16x16x32_bf16 v[{c}:{c+3}], v[{b}:{b+3}], a[{reg}:{reg+3}], v[{c}:{c+3}]")
    return (pos, (tag, s), f)


class ParkFill:
    def __init__(self, ring, early, order, limit):
        self.ring, self.early, self.order, self.limit = ring, early, order, limit

    def take(self, sc, g, kinds):
        if "vm" not in kinds or g < self.early or not sc.vm_ok(g):
            return
        r = self.ring
        if r.park_ready(PK3A):
            r.park(PK3A)
        elif not r.any_step(self.order, self.limit):
            return
        sc.use(3, "vm", g)

    def done(self):
        return True

    def flush(self):
        pass


def phase2(a, ring, cfg, first):
    AW = cfg.get("aw2", 12)
    setup = a_setup(a, S_OA, L.O)
    mf = [mk16(a, P2S + 5 * s + t, t, s, 4 * s, "A") for s in range(20) for t in range(5)]
    al = Seq([((lambda s=s: aload(a, s, setup)), 2, 4 * (s - AW), "vm") for s in range(AW, 20)], force=True, maxper=1)
    sc = Sched([al, ParkFill(ring, cfg.get("dma2", 34), (PK3,), PK3A if PK3A in ring.parks else INF)], 2, cfg.get("per2", 4.5))

    def hook():
        gap_check(a, cfg)
        stamp(a, "P2 polled", cfg)
        for s in range(AW):
            aload(a, s, setup)
    bars = {0: P2S + 100}
    if cfg.get("b2", 0):
        bars[cfg.get("b2", 0)] = 0
    ver = Verifier(a, cfg, S_OA, L.O) if cfg.get("early", True) else None
    run_pass(a, ring, mf, sc, bars, cfg.get("d16", 15), 5, hook, V_ACC, ver=ver)
    stamp(a, "P2 done", cfg)
    out_epilogue(a, ring, cfg, L.X1, L.ST1, L.C_X1, False, False)


def silu_ops(a):
    NRL, VA = V_ST + 2, V_ST + 4
    ops = []
    last_e = {}
    k = 0
    for t in range(6):
        early = L.fragpos(t, 40) + 2
        acc, dst = T32[t], V_TMP + 4 * t
        cv = []
        for r in range(8):
            g, u = acc + r, acc + 8 + r
            e = V_TMP + 24 + k % 16
            k += 1
            b = len(ops)
            ops.append((f"v_mul_f32 v{e}, v{g}, v{NRL}", [last_e[e]] if e in last_e else [], False, early))
            ops.append((f"v_exp_f32 v{e}, v{e}", [b], True, early))
            ops.append((f"v_mul_f32 v{g}, v{g}, v{u}", [b], False, early))
            ops.append((f"v_fma_f32 v{e}, v{e}, v{VA}, v{VA}", [b + 1], False, early))
            ops.append((f"v_rcp_f32 v{e}, v{e}", [b + 3], True, early))
            ops.append((f"v_mul_f32 v{g}, v{g}, v{e}", [b + 2, b + 4], False, early))
            last_e[e] = b + 5
            if r & 1:
                ops.append((f"v_cvt_pk_bf16_f32 v{dst + (r >> 1)}, v{g-1}, v{g}", [b - 1, b + 5], False, early))
                cv.append(len(ops) - 1)

        def st(d=dst, t=t):
            a.e(f"s_add_u32 s{S_T+1}, s{S_LOFF}, s{S_HS[t >> 1]}")
            a.vm(f"buffer_store_dwordx4 v[{d}:{d+3}], v{V_HST}, s[{SRD_WS}:{SRD_WS+3}], s{S_T+1} offen offset:{512*(t & 1)} sc1", ("hst", t))
        ops.append((st, cv, False, early))
    return ops


A4REG = lambda s: (160 + 4 * s) if s < 24 else 4 * (s - 24)


def phase34(a, ring, cfg):
    AW = cfg.get("aw", 10)
    setup = a_setup(a, S_XA, L.X1)
    setup4 = a_setup(a, S_HA, L.H)
    mf = panel(a, P3S, range(6), True)
    ap = cfg.get("aper", 2.3)
    al = Seq([((lambda s=s: aload(a, s, setup)), 2, int(ap * (s - AW)), "vm") for s in range(AW, 40)], force=True, maxper=1)
    tail = lines(a, f"v_mul_f32 v{V_ST+2}, {f32bits(-LOG2E)}, v{V_ST}\nv_mov_b32 v{V_ST+4}, v{P1_TT+2}")
    d = Dag(a, silu_ops(a))
    d.keep = True

    def sig(inst):
        def f():
            stores = [k for k, o in enumerate(d.ops) if callable(o[0])]
            assert stores[2 * inst] in d.at and stores[2 * inst + 1] in d.at, ("h signal before its stores", inst)
            a.wait_vm(lambda t: t in (("hst", 2 * inst), ("hst", 2 * inst + 1)))
            signal(a, L.C_H0 + inst, S_TB32)
        return f

    def a4(s):
        def f():
            if s < 24:
                assert not any(isfl(t) for t in flat_tags(a.lgq)) and (ring.next >= P4S or PK3 not in ring.parks), "parked registers still in use"
            aload(a, s, setup4, A4REG(s), "H")
        return f
    h0s, h0p, h0c = cfg.get("h0", (166, 190, 212))
    h1s, h1p = cfg.get("h1", (212, 236))
    sg = Seq([(sig(0), 5, h0s, "s"), (lambda: poll_issue(a, L.C_H0, S_TB32P), 5, h0p, "s"),
              (lambda: poll_check(a), 6, h0c, "s"), (sig(1), 5, h1s, "s")], force=True)
    a4p = cfg.get("a4per", 2.6)
    n_early = min(16, int((246 - h0c - 1) / a4p) + 1)
    a4s = Seq([(a4(s), 2, h0c + 1 + int(a4p * s), "vm") for s in range(n_early)], force=True, maxper=1)
    pe = cfg.get("per3e", 3.5)
    period = lambda g: pe if 102 <= g < cfg.get("e0end", 140) else cfg.get("per3", 2.3)
    early = cfg.get("early", True)
    ver = Verifier(a, cfg, S_XA, L.X1, lambda s_: s_ % 5 == 4) if early else None
    pz = Seq(poison_items(a, "x2", cfg.get("pz3", 192)) if early else [], force=True, maxper=1)
    sc = Sched([al, sg, a4s, pz, d] + stats_seq(a, cfg, L.C_X1, L.ST1, tail) + [RingFill(ring, 0)], 6, period, cfg.get("fl3", 3))
    bars = {0: P3S + 48}
    for b in range(24, 246, cfg.get("b3", 24)):
        bars[b] = min(P3S + b + cfg.get("b3", 24), P3S + 246)
    st = {idx: (lambda n=n: stamp(a, f"P3.{n}", cfg, 2)) for n, idx in enumerate((0, 40, 80, 122, 163, 204))}

    assert PK3A not in ring.parks or ring.next >= ring.parks[PK3A][0]

    def hook():
        gap_check(a, cfg)
        stamp(a, "P3 polled", cfg)
        for s in range(AW):
            aload(a, s, setup)
    run_pass(a, ring, mf, sc, bars, cfg.get("d32", 9), G32, hook, stamps=st, ver=ver)
    stores = [d.at.get(k) for k, o in enumerate(d.ops) if callable(o[0])]
    cfg["_info"].append(f"P3: h stores at {stores} ring.next {ring.next - P4S} early A4 {n_early} late {getattr(ring, 'late', 0)}")
    stamp(a, "P3 done", cfg)
    ring.cons = P4S
    poll_issue(a, L.C_H1, S_TB32P)
    d.off = 250
    AW4 = max(n_early, min(16, cfg.get("aw4", 16)))
    sc0 = Sched([Seq([(a4(s), 2, 2 * (s - n_early), "vm") for s in range(n_early, AW4)], force=True, maxper=1), d, RingFill(ring, 0, TOT)], 8, 2.3)
    g = 0
    while not (sc0.streams[0].done() and d.done()):
        sc0.gap(g, 0)
        g += 1
    stamp(a, "h epi end", cfg)
    mf = [mk16(a, P4S + 5 * s + t, t, s, A4REG(s), "H") for s in range(48) for t in range(5)]
    lead = cfg.get("lead4", 12)
    it = []
    for s in range(AW4, 48):
        k = max(5 * (s - lead), cfg.get("h1c", 0) + 4 * (s - 16))
        if s in (16, 32):
            it.append((lambda: poll_check(a), 6, k, "s"))
        it.append((a4(s), 2, k, "vm"))
    k32 = max(5 * (32 - lead), cfg.get("h1c", 0) + 64)
    sg = Seq([(sig(2), 5, cfg.get("h2sig", 30), "s"),
              (lambda: poll_issue(a, L.C_H2, S_TB32P), 5, k32 - cfg.get("plead", 35), "s")], force=True)
    sc = Sched([Seq(it, force=True, maxper=2), sg, RingFill(ring, 0, TOT), RingFill(ring, cfg.get("nx4", 170))], 2, cfg.get("per4", 2.5), cfg.get("fl4", 4))
    bars = {}
    for b in range(0, 240, 30):
        bars[b] = min(P4S + b + 30, P4S + 240)
    st = {idx: (lambda n=n: stamp(a, f"P4.{n}", cfg, 2)) for n, idx in enumerate((0, 40, 80, 120, 160, 200))}
    run_pass(a, ring, mf, sc, bars, cfg.get("d16", 15), 5, None, V_ACC, stamps=st)
    cfg["_info"].append(f"P4: ring.next {ring.next - TOT} late {getattr(ring, 'late', 0)}")
    stamp(a, "P4 done", cfg)
    out_epilogue(a, ring, cfg, L.LSTR + L.X, L.LSTR + L.ST, L.C_X, True, True)


def merge_q(x, y):
    flat = lambda t: set(t) if isinstance(t, frozenset) else {t}
    n = min(len(x), len(y))
    out = [flat(x[len(x) - n + k]) | flat(y[len(y) - n + k]) for k in range(n)]
    extra = set()
    for t in x[:len(x) - n] + y[:len(y) - n]:
        extra |= flat(t)
    return ([frozenset(extra)] if extra else []) + [frozenset(o) for o in out]


def gen_main(name="main_kernel", cfg=None):
    cfg = cfg or {}
    a = Asm()
    parks = {}
    if cfg.get("park", False):
        parks[PK3] = (PK3 + 4 * cfg.get("npk", 23), 160)
    if cfg.get("parka", True):
        parks[PK3A] = (PK3A + 4 * cfg.get("npka", 20), 80)
    ring = Ring(a, parks)
    cfg["_info"] = []
    cfg["_stamps"] = []
    cfg["_pend"] = []
    cfg["_cold"] = []
    cfg["_spun"] = False
    cfg["_k"] = [0]
    a.e(f".globl {name}\n.p2align 8\n.type {name},@function\n{name}:")
    a.e("s_cmp_ge_u32 s2, 256\ns_cbranch_scc1 L_end")
    fuse = cfg.get("fuse", True)
    late = cfg.get("late", True)
    a.e(f"s_load_dwordx2 s[44:45], s[0:1], 56\ns_load_dwordx2 s[12:13], s[0:1], 72\ns_load_dwordx2 s[68:69], s[0:1], 64")
    a.e(f"v_and_b32 v{V_LANE}, 63, v0\nv_lshlrev_b32 v{V_L16}, 4, v{V_LANE}\nv_lshlrev_b32 v{V_T16}, 4, v0")
    a.e(f"v_lshrrev_b32 v30, 6, v0\nv_readfirstlane_b32 s{S_W}, v30")
    a.e("s_waitcnt lgkmcnt(0)")
    for d in (SRD_WS, SRD_NX):
        a.e(f"s_mov_b32 s{d}, s12\ns_and_b32 s{d+1}, s13, 0xffff\ns_mov_b32 s{d+2}, {L.WS_USED}\ns_mov_b32 s{d+3}, 0x20000")
    a.e(f"s_mov_b32 s8, s44\ns_and_b32 s9, s45, 0xffff\ns_mov_b32 s10, {2048*1280}\ns_mov_b32 s11, 0x20000")
    a.e(f"s_mov_b32 s{S_LAY}, 0\ns_mov_b32 s{S_LOFF}, {L.LBASE}\ns_mov_b32 s{S_COFF}, 0")
    if cfg.get("timing"):
        a.e(f"s_add_u32 s72, s12, {cfg['timing']}\ns_addc_u32 s73, s13, 0\ns_and_b32 s73, s73, 0xffff\ns_mov_b32 s74, {1024*512}\ns_mov_b32 s75, 0x20000")
        a.e(f"s_lshl_b32 s{S_TS+2}, s2, 2\ns_add_u32 s{S_TS+2}, s{S_TS+2}, s{S_W}\ns_lshl_b32 s{S_TS+2}, s{S_TS+2}, 9\nv_lshlrev_b32 v30, 2, v{V_LANE}\nv_mov_b32 v31, 0\ns_mov_b32 s87, 0")
    stamp(a, "start", cfg, 0)
    if fuse:
        ring.gate, ring.wflag = (SCR if cfg.get("onesig", True) else 96), "sc1"
        S0.DIAG = bool(cfg.get("timing") and cfg.get("s0diag"))
        S0.XSIG = cfg.get("xsig", 16)
        S0.EARLY0, S0.ONESIG = cfg.get("early0", False), cfg.get("onesig", True)
        S0.TOUCH = cfg.get("touch", 0)
        S0.part1(a, name)
    rb = cfg.get("xr", 2)
    cb = rb - 1
    a.e(f"s_and_b32 s46, s2, 7\ns_lshr_b32 s46, s46, {cb}\ns_lshl_b32 s46, s46, {rb}\ns_lshr_b32 s47, s2, 3\ns_and_b32 s47, s47, {(1 << rb) - 1}\ns_add_u32 s{S_I}, s46, s47")
    a.e(f"s_and_b32 s46, s2, {(1 << cb) - 1}\ns_lshl_b32 s46, s46, {5 - rb}\ns_lshr_b32 s47, s2, {3 + rb}\ns_add_u32 s{S_J}, s46, s47")
    a.e(f"s_lshl_b32 s{S_W1K}, s{S_W}, 10")
    a.e(f"s_lshr_b32 s48, s{S_J}, 1\ns_and_b32 s49, s{S_J}, 1")
    a.e(f"s_mul_i32 s20, s{S_J}, {L.WQKV_STR}\ns_add_u32 s20, s20, {L.WQKV}")
    a.e(f"s_mul_i32 s21, s48, {L.WO_STR}\ns_add_u32 s21, s21, {L.WO}")
    a.e(f"s_mul_i32 s22, s{S_J}, {L.W13_STR}\ns_add_u32 s22, s22, {L.W13}")
    a.e(f"s_mul_i32 s23, s48, {L.W2_STR}\ns_add_u32 s23, s23, {L.W2}")
    a.e(f"s_lshl_b32 s{S_CW}, s48, 2\ns_add_u32 s{S_CW}, s{S_CW}, s{S_W}")
    ring.freed = 0
    a.e(f"s_lshl_b32 s{S_TB32}, s{S_I}, 2\ns_add_u32 s{S_TB32}, s{S_TB32}, s{S_W}")
    a.e(f"s_mul_i32 s{S_XA}, s{S_TB32}, 40960\ns_lshl_b32 s{S_STA}, s{S_TB32}, 11")
    setup0 = a_setup(a, S_XA, L.X)
    a.e(f"s_lshl_b32 s{S_WG[8]}, s{S_W}, 11\ns_mul_i32 s{S_WG[12]}, s{S_W}, 3072\ns_lshl_b32 s{S_WG[16]}, s{S_W}, 12")

    def late_consts():
        for g_ in (8, 12, 16):
            a.e(f"v_add_u32 v{V_TG[g_]}, s{S_WG[g_]}, v{V_L16}")
        a.e(f"v_add_u32 v{V_T16B}, 0x10000, v{V_T16}\nv_add_u32 v{V_T16C}, 0x20000, v{V_T16}\nv_lshlrev_b32 v{V_T8}, 3, v0")

    def first_loads():
        ring.maxg = 12
        for blk in range(cfg.get("la0", 3)):
            for k in range(3):
                ring.step(12 * blk + 12)
            for s_ in range(4 * blk, 4 * blk + 4):
                aload(a, s_, setup0)
                cfg["_a0"] = s_ + 1
    if not fuse:
        late_consts()
        first_loads()
    a.e(f"s_lshl_b32 s{S_TB16}, s{S_I}, 3\ns_lshl_b32 s46, s49, 2\ns_add_u32 s{S_TB16}, s{S_TB16}, s46\ns_add_u32 s{S_TB16}, s{S_TB16}, s{S_W}")
    a.e(f"s_lshr_b32 s{S_TB32P}, s{S_TB16}, 1")
    a.e(f"s_mul_i32 s{S_OA}, s{S_TB16}, 20480\ns_mul_i32 s{S_HA}, s{S_TB16}, 49152")
    a.e(f"s_and_b32 s50, s{S_TB16}, 1")
    a.e(f"s_mul_i32 s{S_XS}, s{S_TB32P}, 40960\ns_mul_i32 s46, s48, 5120\ns_add_u32 s{S_XS}, s{S_XS}, s46\ns_lshl_b32 s46, s50, 8\ns_add_u32 s{S_XS}, s{S_XS}, s46")
    a.e(f"s_lshl_b32 s{S_STS}, s{S_TB32P}, 11\ns_lshl_b32 s46, s48, 8\ns_add_u32 s{S_STS}, s{S_STS}, s46\ns_lshl_b32 s46, s50, 7\ns_add_u32 s{S_STS}, s{S_STS}, s46")
    a.e(f"s_mul_i32 s{S_OS}, s{S_TB32}, 40960\ns_mul_i32 s46, s{S_J}, 1280\ns_add_u32 s{S_OS}, s{S_OS}, s46\ns_add_u32 s{S_OS}, s{S_OS}, {L.O}")
    a.e(f"s_mul_i32 s47, s{S_TB32}, {2*49152}\ns_add_u32 s47, s47, {L.H}")
    a.e(f"s_lshl_b32 s46, s{S_J}, 10\ns_add_u32 s{S_HS[0]}, s47, s46")
    a.e(f"s_add_u32 s{S_HS[1]}, s{S_HS[0]}, {32*512}\ns_add_u32 s{S_HS[2]}, s{S_HS[0]}, {64*512}")
    a.e(f"s_mul_i32 s{S_KVR}, s{S_J}, {16*L.KV_STR}\ns_add_u32 s{S_KVR}, s{S_KVR}, {L.KV}")
    a.e(f"s_mul_i32 s46, s{S_I}, {L.KV_STR}\ns_add_u32 s{S_KVS}, s{S_KVR}, s46")
    a.e(f"s_mul_i32 s{S_OUT}, s{S_TB16}, {16*1280}\ns_mul_i32 s46, s48, 160\ns_add_u32 s{S_OUT}, s{S_OUT}, s46")
    a.e(f"s_lshl_b32 s{S_KVC}, s{S_J}, 2\ns_add_u32 s{S_KVC}, s{S_KVC}, s{S_W}")
    a.e(f"s_mov_b32 s{S_ONE}, 1\ns_mov_b32 s{S_C256}, 256\ns_mov_b32 s{S_LO32}, -1\ns_mov_b32 s{S_LO32+1}, 0")
    for r_ in range(4):
        a.e(f"v_mov_b32 v{V_POI+r_}, -1")
    a.e(f"s_mov_b32 s{S_EPS2}, {f32bits(1e-6)}\ns_mov_b32 s{S_EPS2+1}, {f32bits(1e-6)}\ns_mov_b32 s{S_ONE2}, 1.0\ns_mov_b32 s{S_ONE2+1}, 1.0")
    a.e(f"v_mov_b32 v216, 210\nv_cmp_gt_u32 s[{S_M210}:{S_M210+1}], v216, v0")
    tok, hf, t16, g, x, y, z = 208, 209, 210, 211, 212, 213, 214
    ln = V_LANE
    a.e(f"v_add_u32 v{V_L16B}, 0x10000, v{V_L16}\nv_add_u32 v{V_L16C}, 0x20000, v{V_L16}")
    a.e(f"v_and_b32 v{tok}, 31, v{ln}\nv_lshrrev_b32 v{hf}, 5, v{ln}\nv_and_b32 v{t16}, 15, v{ln}\nv_lshrrev_b32 v{g}, 4, v{ln}")
    a.e(f"v_lshlrev_b32 v{x}, 10, v{hf}\nv_lshl_add_u32 v{V_STL}, v{tok}, 3, v{x}")
    a.e(f"v_lshlrev_b32 v{x}, 8, v{hf}\nv_lshl_add_u32 v{x}, v{t16}, 4, v{x}\nv_bfe_u32 v{y}, v{ln}, 4, 1")
    a.e(f"v_mul_u32_u24 v{z}, 20480, v{y}\nv_add_u32 v{V_OST}, v{x}, v{z}")
    a.e(f"v_mul_u32_u24 v{z}, 49152, v{y}\nv_add_u32 v{V_HST}, v{x}, v{z}")
    a.e(f"v_lshlrev_b32 v{x}, 9, v{g}\nv_lshl_add_u32 v{V_XS1}, v{t16}, 4, v{x}")
    a.e(f"v_lshlrev_b32 v{x}, 9, v{hf}\nv_lshl_add_u32 v{x}, v{t16}, 4, v{x}\nv_lshl_add_u32 v{x}, v{y}, 3, v{x}\nv_add_u32 v{V_XS2}, 4096, v{x}")
    a.e(f"v_mul_u32_u24 v{x}, 1280, v{t16}\nv_lshl_add_u32 v{V_OUT1}, v{g}, 4, v{x}\nv_lshl_add_u32 v{x}, v{g}, 3, v{x}\nv_add_u32 v{V_OUT2}, 128, v{x}")
    a.e(f"v_lshlrev_b32 v{V_STS}, 3, v{ln}")
    P = 128
    if not fuse:
        res_load(a)
        stats_load(a, L.ST)
    a.e(f"s_mul_i32 s46, s{S_W}, {GC_STR}\ns_add_u32 s46, s46, {GC_OFF}")
    a.e(f"v_mul_u32_u24 v{x}, 80, v{tok}\nv_lshl_add_u32 v{x}, v{hf}, 4, v{x}\nv_add_u32 v{x}, s46, v{x}")
    a.e(f"v_subrev_u32 v{y}, 80, v{x}\nv_cmp_le_u32 vcc, 20, v{tok}\nv_cndmask_b32 v{V_G0}, v{x}, v{y}, vcc")
    a.e(f"v_add_u32 v{y}, {23*80}, v{x}\nv_add_u32 v{x}, {16*80}, v{x}\nv_cmp_gt_u32 vcc, 16, v{tok}\nv_cndmask_b32 v{V_G1}, v{x}, v{y}, vcc")
    a.e(f"s_lshl_b32 s46, s{S_W}, 5\nv_add_u32 v215, s46, v{tok}\nv_cmp_gt_u32 s[{S_MKV}:{S_MKV+1}], 0x69, v215" .replace("0x69, v215", "v216, v215").replace("v_cmp_gt", "v_mov_b32 v216, 105\nv_cmp_gt"))
    a.e(f"v_mul_u32_u24 v{x}, {L.KV_STR}, v{hf}\nv_lshl_add_u32 v{V_KVL}, v215, 4, v{x}\nv_lshl_add_u32 v215, v215, 1, v{hf}")
    a.e(f"v_mul_u32_u24 v{x}, 205, v215\nv_lshrrev_b32 v{x}, 10, v{x}\nv_mul_u32_u24 v{y}, 5, v{x}\nv_sub_u32 v{y}, v215, v{y}")
    a.e(f"v_mul_u32_u24 v{z}, 112, v{x}\nv_lshl_add_u32 v{z}, v{y}, 3, v{z}\nv_add_u32 v{z}, {GB_OFF}, v{z}\nv_add_u32 v{y}, 40, v{z}")
    a.e(f"v_cmp_le_u32 vcc, 20, v{x}\nv_cndmask_b32 v{y}, v{z}, v{y}, vcc\nv_cmp_eq_u32 vcc, 40, v{x}\nv_cndmask_b32 v{V_GBW}, v{y}, v{z}, vcc")
    a.e(f"v_lshrrev_b32 v{x}, 4, v{tok}\nv_mul_u32_u24 v{x}, 24, v{x}\nv_bfe_u32 v{y}, v{tok}, 2, 1\nv_lshl_add_u32 v{x}, v{y}, 3, v{x}")
    a.e(f"v_bfe_u32 v{y}, v{tok}, 3, 1\nv_lshl_add_u32 v{x}, v{y}, 2, v{x}\nv_and_b32 v{z}, 3, v{tok}\nv_add_u32 v{x}, v{x}, v{z}")
    a.e(f"v_mul_u32_u24 v{x}, 112, v{x}\nv_lshl_add_u32 v{x}, v{hf}, 4, v{x}\nv_add_u32 v{V_GBX}, {GB_OFF}, v{x}")
    a.e(f"v_lshl_add_u32 v{x}, v{y}, 2, v{z}\nv_add_u32 v{x}, 16, v{x}\nv_mov_b32 v{y}, 42")
    a.e(f"v_and_b32 v215, 0x14, v{tok}\nv_cmp_eq_u32 vcc, 0, v215\nv_cndmask_b32 v{y}, v{y}, v{x}, vcc")
    a.e(f"v_add_u32 v{x}, 40, v{z}\nv_and_b32 v215, 0x1a, v{tok}\nv_cmp_eq_u32 vcc, 16, v215\nv_cndmask_b32 v{y}, v{y}, v{x}, vcc")
    a.e(f"v_mul_u32_u24 v{x}, 112, v{y}\nv_lshl_add_u32 v{x}, v{hf}, 4, v{x}\nv_add_u32 v{V_GBY}, {GB_OFF}, v{x}")
    a.e(f"s_mul_i32 s46, s{S_W}, 2304\ns_add_u32 s46, s46, {QT_OFF}\ns_mul_i32 s47, s{S_W}, 576\ns_add_u32 s47, s47, {Q1_OFF}")
    a.e(f"v_mul_u32_u24 v{x}, 72, v{tok}\nv_lshl_add_u32 v{x}, v{hf}, 3, v{x}\nv_add_u32 v{V_QW3}, s46, v{x}")
    a.e(f"v_add_u32 v{x}, s47, v{x}\nv_subrev_u32 v{V_QW1}, {16*72}, v{x}")
    a.e(f"v_bfe_u32 v{x}, v{ln}, 2, 2\nv_mul_u32_u24 v{x}, 72, v{x}\nv_bfe_u32 v{y}, v{ln}, 4, 1\nv_lshl_add_u32 v{x}, v{y}, 5, v{x}")
    a.e(f"v_and_b32 v{y}, 3, v{ln}\nv_lshl_add_u32 v{x}, v{y}, 3, v{x}\nv_add_u32 v{V_QR2}, s47, v{x}")
    a.e(f"v_mul_u32_u24 v{y}, {8*72}, v{hf}\nv_add_u32 v{x}, v{x}, v{y}\nv_add_u32 v{V_QR}, s46, v{x}")
    a.e(f"v_mov_b32 v{V_C2}, 0\nv_mov_b32 v{V_C3}, 0\nv_mov_b32 v{V_LO}, 0\nv_mov_b32 v{V_C2+1}, 0\nv_mov_b32 v{V_C3+1}, 0")
    set_exec(a, 0x00FF00FF, 0x00FF00FF)
    a.e(f"v_mov_b32 v{V_C3}, s{S_EPS2}\nv_mov_b32 v{V_LO}, s{S_EPS2}")
    set_exec(a, 0x0000FF00, 0x0000FF00)
    a.e(f"v_mov_b32 v{V_C2}, 0xff800000\nv_mov_b32 v{V_LO}, 0xff800000")
    a.e("s_mov_b64 exec, -1")
    a.e(f"s_lshl_b32 s46, s{S_W}, 8\ns_add_u32 s46, s46, {RS_OFF}")
    a.e(f"v_lshlrev_b32 v{x}, 2, v{ln}\nv_add_u32 v{V_RSW}, s46, v{x}\nv_lshlrev_b32 v{x}, 4, v{hf}\nv_add_u32 v{V_RSR}, s46, v{x}")
    if fuse:
        stamp(a, "setup done", cfg)
        S0.part2(a, SPIN)
        stamp(a, "packed", cfg)
        d = SRD_NX
        a.e(f"s_mov_b32 s{d}, s12\ns_and_b32 s{d+1}, s13, 0xffff\ns_mov_b32 s{d+2}, {L.WS_USED}\ns_mov_b32 s{d+3}, 0x20000")
        poll_issue(a, L.C_PQKV, S_KVC)
        poll2_a(a, L.C_X, S_TB32)
        a.e("s_nop 1")
        late_consts()
        poll_check(a, 0, 60)
        stamp(a, "qkv polled", cfg)
        poll2_check(a, cfg, 4)
        stamp(a, "pk polled", cfg)
        first_loads()
    stamp(a, "P1 polled", cfg)
    phase1(a, ring, cfg, True)
    phase2(a, ring, cfg, True)
    a.e("s_branch L_join")
    j0 = (ring.next, ring.cons, ring.freed, dict(ring.parked), list(cfg["_pend"]), cfg["_k"][0])
    tags0 = list(a.vmq)
    lg0 = list(a.lgq)
    a.e("L_top:")
    cfg["_pend"][:], cfg["_k"][0] = cfg.get("_ptop", ([], 0))
    top = cfg.get("_top", ([("dma", p_) for p_ in range(0, RING, 4)], RING))
    a.vmq = list(top[0])
    a.lgq = []
    ring.next, ring.pub, ring.cons, ring.freed, ring.parked = top[1], 0, 0, 0, {}
    phase1(a, ring, cfg, False)
    phase2(a, ring, cfg, False)
    assert j0 == (ring.next, ring.cons, ring.freed, dict(ring.parked), list(cfg["_pend"]), cfg["_k"][0]), (j0, ring.next, ring.cons)
    a.e("L_join:")
    a.vmq = merge_q(tags0, a.vmq)
    a.lgq = merge_q(lg0, a.lgq)
    phase34(a, ring, cfg)
    assert ring.freed == TOT and not ring.open, (ring.next, ring.freed)
    bottom = ([((t[0], t[1] - TOT) if isdma(t) else "old") for t in a.vmq], ring.next - TOT)
    ptop = (list(cfg["_pend"]), cfg["_k"][0])
    if cfg.get("_top") != bottom or cfg.get("_ptop") != ptop:
        cfg = dict(cfg)
        cfg["_top"] = bottom
        cfg["_ptop"] = ptop
        return gen_main(name, cfg)
    import sys
    print("\n".join(cfg["_info"]), "nops", a.nops_added, file=sys.stderr)
    a.e(f"s_mov_b32 s{SRD_NX+2}, 0")
    a.e("s_branch L_top")
    a.e("L_final:")
    cfg["_pend"][:], cfg["_k"][0] = cfg["_final"]
    cfg["_slot"] = 1
    P = V_TMP
    a.e(f"buffer_store_dwordx4 v[{P}:{P+3}], v{V_OUT1}, s[8:11], s{S_OUT} offen {cfg.get('outflag', '')}")
    a.e(f"buffer_store_dwordx4 v[{P+4}:{P+7}], v{V_OUT1}, s[8:11], s{S_OUT} offen offset:64 {cfg.get('outflag', '')}")
    a.e(f"buffer_store_dwordx2 v[{P+8}:{P+9}], v{V_OUT2}, s[8:11], s{S_OUT} offen {cfg.get('outflag', '')}")
    stamp(a, "end", cfg, 0)
    a.e("s_waitcnt vmcnt(0)")
    a.e("L_end:\ns_endpgm")
    for blk in cfg["_cold"]:
        a.e(blk)
    t = a.text()
    if cfg.get("timing"):
        t += "; STAMPS " + "|".join(cfg["_stamps"]) + "\n"
    return t, kd(name, 512, 102, 256), a


if __name__ == "__main__":
    t, k, a = gen_main()
    print(t)
```

```python
from asmcore import *
import layout as L

U_QKV, U_WO, U_W13, U_W2, U_END = 0, 120, 160, 352, 448
STAGE = 96 * 1024
NBOOT = 20
R_QKV, R_W13, R_W2, R_X, R_BOOT, R_IDLE = 0, 1, 2, 3, 4, 5
SU, SROLE, SH = 58, 59, 57
SRC = 64
WS = "s[4:7]"
DBG = 68
V = lambda n: 60 + n
LN, L16 = 1, 2
DIAG = False
XSIG = 16
EXP = 0
TOUCH = 0
EARLY0 = True
ONESIG = True
V_SA, V_SD = 138, 139


def vv(text):
    import re
    t = re.sub(r"\bv\[(\d+):(\d+)\]", lambda m: f"v[{V(int(m.group(1)))}:{V(int(m.group(2)))}]", text)
    t = re.sub(r"\bv(\d+)\b", lambda m: f"v{V(int(m.group(1)))}", t)
    return t.replace("LANE", f"v{LN}").replace("L16", f"v{L16}")


def diag(a, lane):
    if DIAG:
        a.e(f"s_memrealtime s[100:101]\ns_waitcnt lgkmcnt(0)\nv_writelane_b32 v31, s100, {lane}")


def src_srd(a, koff_sgpr_or_imm, size):
    a.e(f"s_load_dwordx2 s[52:53], s[0:1], {koff_sgpr_or_imm}\ns_waitcnt lgkmcnt(0)")
    a.e(f"s_mov_b32 s{SRC}, s52\ns_and_b32 s{SRC+1}, s53, 0xffff\ns_mov_b32 s{SRC+2}, {size}\ns_mov_b32 s{SRC+3}, 0x20000")


def decode(a):
    a.e(f"s_lshl_b32 s{SU}, s3, 8\ns_add_u32 s{SU}, s{SU}, s2\ns_mov_b32 s{SROLE}, {R_QKV}")
    a.e(f"s_cmp_ge_u32 s{SU}, {U_WO}\ns_cselect_b32 s{SROLE}, {R_W2}, s{SROLE}")
    a.e(f"s_cmp_ge_u32 s{SU}, {U_W13}\ns_cselect_b32 s{SROLE}, {R_W13}, s{SROLE}")
    a.e(f"s_cmp_ge_u32 s{SU}, {U_W2}\ns_cselect_b32 s{SROLE}, {R_W2}, s{SROLE}")
    a.e(f"s_cmp_ge_u32 s{SU}, {U_END}\ns_cselect_b32 s{SROLE}, {R_IDLE}, s{SROLE}")
    a.e(f"s_cmp_eq_u32 s3, 2\ns_cselect_b32 s{SROLE}, {R_X}, s{SROLE}\ns_cselect_b32 s{SU}, s2, s{SU}")
    a.e(f"s_cmp_eq_u32 s3, 3\ns_cselect_b32 s{SROLE}, {R_BOOT}, s{SROLE}")


def qkv_ids(a):
    a.e(f"s_mul_i32 s44, s{SU}, 137\ns_lshr_b32 s44, s44, 12\ns_mul_i32 s46, s44, 30\ns_sub_u32 s45, s{SU}, s46")


def w13_ids(a):
    a.e(f"s_sub_u32 s45, s{SU}, {U_W13}\ns_and_b32 s51, s45, 1\ns_lshr_b32 s45, s45, 1")
    a.e("s_mul_i32 s44, s45, 43\ns_lshr_b32 s44, s44, 10\ns_mul_i32 s46, s44, 24\ns_sub_u32 s45, s45, s46")


def w2_ids(a):
    a.e(f"s_sub_u32 s45, s{SU}, {U_W2}\ns_sub_u32 s46, s{SU}, {U_WO}\ns_cmp_lt_u32 s{SU}, {U_W13}")
    a.e("s_cselect_b32 s45, s46, s45\ns_cselect_b32 s51, 1, 0\ns_and_b32 s44, s45, 1\ns_lshr_b32 s45, s45, 1")


def stage_base(a, s):
    a.e(f"s_mul_i32 s{s}, s3, 20480\ns_add_u32 s{s}, s{s}, {STAGE}")


def issue_cols(a, pitch):
    a.e(vv(f"v_lshrrev_b32 v5, 3, LANE\nv_and_b32 v6, 7, LANE\nv_mul_u32_u24 v5, {pitch}, v5\nv_lshl_add_u32 v5, v6, 4, v5"))
    a.e(f"s_mul_i32 s46, s44, {160*pitch}\ns_lshl_b32 s47, s45, 7\ns_add_u32 s46, s46, s47")
    stage_base(a, 47)
    for n in range(20):
        a.e(f"s_add_u32 m0, s47, {n*1024}")
        a.e(vv(f"buffer_load_dwordx4 v5, s[{SRC}:{SRC+3}], s46 offen lds"))
        a.e(f"s_add_u32 s46, s46, {8*pitch}")


def issue_qkv(a):
    src_srd(a, 8, 640 * 3840)
    qkv_ids(a)
    issue_cols(a, 3840)


def issue_w13(a):
    w13_ids(a)
    a.e("s_lshl_b32 s46, s51, 3\ns_add_u32 s46, s46, 32")
    src_srd(a, "s46", 640 * 3072)
    issue_cols(a, 3072)


def issue_w2(a):
    w2_ids(a)
    a.e("s_cmp_eq_u32 s51, 1\ns_cselect_b32 s46, 16, 48")
    a.e(f"s_mov_b32 s50, {1536*1280}\ns_cselect_b32 s50, {640*1280}, s50")
    src_srd(a, "s46", "s50")
    for n in range(5):
        a.e(vv(f"v_add_u32 v5, {64*n}, LANE\nv_mul_u32_u24 v6, 205, v5\nv_lshrrev_b32 v6, 13, v6\nv_mul_u32_u24 v6, 640, v6\nv_lshl_add_u32 v{8+n}, v5, 4, v6"))
    a.e("s_mul_i32 s46, s45, 40960\ns_mul_i32 s47, s44, 640\ns_add_u32 s46, s46, s47")
    stage_base(a, 47)
    for n in range(20):
        a.e(f"s_add_u32 m0, s47, {n*1024}")
        a.e(vv(f"buffer_load_dwordx4 v{8+n%5}, s[{SRC}:{SRC+3}], s46 offen lds"))
        if n % 5 == 4 and n < 19:
            a.e(f"s_add_u32 s46, s46, {8*1280}")


def issue_x(a):
    src_srd(a, 0, 2048 * 1280)
    a.e(f"s_mul_i32 s46, s{SU}, 10240")
    a.e(vv("v_and_b32 v5, 7, LANE\nv_lshrrev_b32 v6, 3, LANE\nv_mul_u32_u24 v7, 1280, v5\nv_lshl_add_u32 v7, v6, 4, v7"))
    for q in range(10):
        a.e(vv(f"buffer_load_dwordx4 v[{16+4*q}:{19+4*q}], v7, s[{SRC}:{SRC+3}], s46 offen offset:{q*128}"))


def issue_boot(a, name):
    lab = a.label("Ls0b")
    if TOUCH:
        a.e(vv(f"v_lshlrev_b32 v5, {TOUCH}, LANE\nbuffer_load_dword v13, v5, {WS}, 0 offen"))
    a.e(f"s_sub_u32 s47, s2, {U_WO}\ns_cmp_ge_u32 s47, {NBOOT}\ns_cbranch_scc1 {lab}")
    a.e(vv(f"v_mov_b32 v4, 0\nv_lshlrev_b32 v5, 8, LANE\ns_lshl_b32 s46, s47, 14\nbuffer_store_dword v4, v5, {WS}, s46 offen sc1"))
    a.e(f"s_waitcnt vmcnt(0)\ns_mov_b32 s46, 1\ns_atomic_add s46, s[{DBG}:{DBG+1}], 0")
    diag(a, 62)
    a.e(f"{lab}:")
    lab2 = a.label("Ls0c")
    a.e(f"s_cmp_lt_u32 s2, {U_WO}\ns_cbranch_scc1 {lab2}")
    a.e(f"s_getpc_b64 s[50:51]\n{lab2}_pc:\ns_sub_u32 s50, s50, {lab2}_pc-{name}\ns_subb_u32 s51, s51, 0")
    a.e("s_lshr_b32 s52, s47, 3\ns_lshl_b32 s52, s52, 12")
    a.e(vv(f"v_lshlrev_b32 v8, 6, LANE\nv_add_u32 v8, s52, v8\nv_cmp_gt_u32 vcc, L_end-{name}-4, v8"))
    a.e(vv("v_mov_b32 v11, s51\nv_add_co_u32 v10, s[54:55], s50, v8\nv_addc_co_u32 v11, s[54:55], 0, v11, s[54:55]"))
    a.e(f"s_and_saveexec_b64 s[54:55], vcc\ns_cbranch_execz {lab2}")
    a.e(vv("global_load_dword v12, v[10:11], off"))
    a.e(f"{lab2}:\ns_mov_b64 exec, -1")


def boot_issue(a):
    a.e(f"s_load_dword s56, s[{DBG}:{DBG+1}], 0")


def boot_check(a, spin):
    ok = a.label("Lbk")
    a.e("s_waitcnt vmcnt(0) lgkmcnt(0)")
    diag(a, 58)
    a.e(f"s_cmp_ge_u32 s56, {NBOOT}\ns_cbranch_scc1 {ok}")
    boot_wait(a, spin)
    a.e(f"{ok}:")


def boot_wait(a, spin):
    lp, ok = a.label("Lbw"), a.label("Lbo")
    a.e(vv(f"s_mov_b32 s55, 0\nv_mov_b32 v8, 0\n{lp}:\nglobal_load_dword v9, v8, s[{DBG}:{DBG+1}] sc1\ns_waitcnt vmcnt(0)\nv_readfirstlane_b32 s56, v9"))
    a.e(f"s_cmp_ge_u32 s56, {NBOOT}\ns_cbranch_scc1 {ok}\ns_add_u32 s55, s55, 1\ns_cmp_lt_u32 s55, {spin}\ns_cbranch_scc1 {lp}\n{ok}:")


def frag_table(a, base, pstr, o):
    a.e("s_mul_i32 s46, s44, 30\ns_mul_i32 s47, s44, 20\ns_add_u32 s47, s47, 20\ns_mul_i32 s48, s44, 10\ns_add_u32 s49, s48, 82\ns_add_u32 s50, s46, 2")
    a.e("s_mov_b32 s52, 3072\ns_mov_b32 s53, 3072\ns_cmp_ge_u32 s44, 2")
    a.e("s_cselect_b32 s46, s47, s46\ns_cselect_b32 s50, s49, s50\ns_cselect_b32 s52, 2048, s52\ns_cselect_b32 s53, 1024, s53")
    p, q, r = o, o + 1, o + 2
    a.e(vv(f"v_add_u32 v{p}, s46, v10\nv_mov_b32 v{q}, s52\nv_add_u32 v{r}, 100, v10"))
    a.e(vv("v_mov_b32 v6, s50\nv_mov_b32 v7, s53\nv_mov_b32 v8, 122\nv_cmp_eq_u32 vcc, 2, v10"))
    a.e(vv(f"v_cndmask_b32 v{p}, v{p}, v6, vcc\nv_cndmask_b32 v{q}, v{q}, v7, vcc\nv_cndmask_b32 v{r}, v{r}, v8, vcc"))
    a.e(vv("v_mul_u32_u24 v8, 41, v10\nv_add_u32 v6, s48, v8\nv_add_u32 v8, 40, v8\nv_mov_b32 v7, 1024\nv_cmp_lt_u32 vcc, 2, v10"))
    a.e(vv(f"v_cndmask_b32 v{p}, v{p}, v6, vcc\nv_cndmask_b32 v{q}, v{q}, v7, vcc\nv_cndmask_b32 v{r}, v{r}, v8, vcc"))
    a.e(vv(f"v_mul_u32_u24 v6, {pstr}, v11\nv_lshl_add_u32 v6, v12, 4, v6\nv_add_u32 v6, {base}, v6"))
    a.e(vv(f"v_lshl_add_u32 v{p}, v{p}, 10, v6\nv_lshl_add_u32 v{r}, v{r}, 10, v6\nv_lshrrev_b32 v7, 5, LANE\nv_lshl_add_u32 v{p}, v7, 9, v{p}"))
    a.e("s_lshr_b32 s46, s44, 1\ns_lshl_b32 s46, s46, 9\ns_and_b32 s47, s44, 1\ns_lshl_b32 s47, s47, 3\ns_add_u32 s46, s46, s47")
    a.e(vv(f"v_add_u32 v{r}, s46, v{r}"))


def krow_addr(a):
    stage_base(a, 46)
    a.e(vv("v_lshrrev_b32 v7, 5, LANE\nv_lshlrev_b32 v7, 3, v7\nv_bfe_u32 v8, LANE, 2, 2\nv_add_u32 v7, v7, v8\nv_lshlrev_b32 v7, 7, v7\nv_add_u32 v7, s46, v7"))


AD = (13, 61)
DATA = (76, 160)


def cols_stores(a):
    a.e(vv("v_mov_b32 v9, 0\nv_mov_b32 v5, 0\nv_mov_b32 v10, 0\nv_mov_b32 v11, 0\ns_mov_b32 s46, 0x3f803f80"))
    diag(a, 59)
    a.e("s_waitcnt vmcnt(0)")
    diag(a, 60)

    def rd(k):
        h, s = divmod(k, 10)
        for u in range(2):
            d = DATA[h] + 4 * s + 2 * u
            a.ds(f"ds_read_b64_tr_b16 v[{d}:{d+1}], v{V(4)} offset:{(16*s+4*u)*128 + 64*h}", ("t", k))
    for k in range(7):
        rd(k)
    for k in range(20):
        h, s = divmod(k, 10)
        d = DATA[h] + 4 * s
        a.wait_ds(("t", k))
        a.e(f"buffer_store_dwordx4 v[{d}:{d+3}], v{V(AD[h])}, {WS}, 0 offen sc1\nv_add_u32 v{V(AD[h])}, v{V(AD[h])}, v{V(AD[h]+1)}")
        if k + 7 < 20:
            rd(k + 7)


def cols_sums(a):
    accs = ((9, 5), (10, 11))
    for r in range(40):
        for h in range(2):
            acc = V(accs[h][r & 1])
            a.e(f"v_dot2_f32_bf16 v{acc}, v{DATA[h]+r}, s46, v{acc}")
    a.e(vv("v_add_f32 v9, v9, v5\nv_add_f32 v10, v10, v11\nv_permlane32_swap_b32 v9, v10\nv_add_f32 v9, v9, v10"))
    a.e(vv("v_cvt_pk_bf16_f32 v6, v9, v9\nv_and_b32 v10, 0xffff0000, v6\nv_sub_f32 v10, v9, v10\nv_cvt_pk_bf16_f32 v7, v10, v10"))
    a.e(vv(f"v_cmp_gt_u32 vcc, 32, LANE\nv_cndmask_b32 v12, v{AD[1]+2}, v{AD[0]+2}, vcc"))


def cols_sumstore(a):
    a.e(vv(f"buffer_store_dwordx2 v[6:7], v12, {WS}, 0 offen sc1"))


def sig_regs(a, nlanes, kind, own=False):
    a.e(f"s_mov_b32 s46, {kind * 64 * L.CNT_STRIDE}" if isinstance(kind, int) else kind)
    a.e(vv(f"v_lshlrev_b32 v4, 8, v4\nv_add_u32 v4, s46, v4\nv_bfrev_b32 v6, 1\nv_cmp_gt_u32 vcc, {nlanes}, LANE"))
    a.e(f"v_cndmask_b32 v{V_SA}, v{V(6)}, v{V(4)}, vcc")
    if own:
        a.e(f"v_cmp_lt_i32 vcc, 0, v{V(5)}\nv_cndmask_b32 v{V_SA}, v{V(6)}, v{V_SA}, vcc\nv_mov_b32 v{V_SD}, v{V(5)}")


def signal_text():
    return f"buffer_atomic_add v{V_SD}, v{V_SA}, {WS}, 0 offen sc1"


def proc_qkv(a, spin):
    qkv_ids(a)
    a.e("s_mul_i32 s51, s45, 26\ns_lshr_b32 s51, s51, 8\ns_lshl_b32 s57, s45, 3\ns_mul_i32 s47, s51, 80\ns_sub_u32 s57, s57, s47")
    a.e("s_mul_i32 s47, s57, 205\ns_lshr_b32 s47, s47, 10\ns_add_u32 s48, s57, 8")
    a.e(vv("v_lshrrev_b32 v6, 2, LANE\nv_add_u32 v6, s47, v6\nv_and_b32 v7, 3, LANE\nv_lshl_add_u32 v4, v6, 2, v7"))
    a.e(vv("v_mul_u32_u24 v6, 5, v6\nv_add_u32 v7, 5, v6\nv_min_i32 v7, s48, v7\nv_max_i32 v6, s57, v6\nv_sub_u32 v5, v7, v6"))
    sig_regs(a, 12, L.C_PQKV, own=True)
    for h in range(2):
        a.e(vv(f"v_bfe_u32 v6, LANE, 3, 2\nv_add_u32 v6, s57, v6\nv_add_u32 v6, {4*h}, v6"))
        a.e(vv("v_mul_u32_u24 v11, 205, v6\nv_lshrrev_b32 v11, 10, v11\nv_mul_u32_u24 v7, 5, v11\nv_sub_u32 v6, v6, v7"))
        a.e("s_mov_b32 s48, 3\ns_mov_b32 s49, 16\ns_cmp_eq_u32 s51, 1\ns_cselect_b32 s48, 0, s48\ns_cselect_b32 s49, 0, s49")
        a.e("s_cmp_eq_u32 s51, 2\ns_cselect_b32 s48, 2, s48\ns_cselect_b32 s49, 8, s49")
        a.e(vv("v_mov_b32 v10, s48\nv_lshlrev_b32 v12, 3, v6\nv_mov_b32 v7, s49\nv_cmp_eq_u32 vcc, 4, v6"))
        a.e(vv("v_cndmask_b32 v10, v10, 1, vcc\nv_cndmask_b32 v12, v12, v7, vcc\nv_and_b32 v7, 7, LANE\nv_add_u32 v12, v12, v7"))
        frag_table(a, L.WQKV, L.WQKV_STR, AD[h])
    krow_addr(a)
    a.e(vv("v_bfe_u32 v6, LANE, 4, 1\nv_lshl_add_u32 v7, v6, 5, v7\nv_and_b32 v6, 3, LANE\nv_lshl_add_u32 v4, v6, 3, v7"))


def proc_w13(a, spin):
    w13_ids(a)
    a.e("s_lshl_b32 s46, s45, 1\ns_and_b32 s46, s46, 15")
    a.e(vv("v_and_b32 v6, 1, LANE\nv_add_u32 v6, s46, v6\nv_lshrrev_b32 v7, 1, LANE\nv_lshl_add_u32 v4, v6, 2, v7"))
    sig_regs(a, 8, L.C_PW13)
    for h in range(2):
        a.e(f"s_lshl_b32 s46, s45, 1\ns_add_u32 s46, s46, {h}\ns_and_b32 s47, s46, 15\ns_lshr_b32 s46, s46, 4\ns_lshl_b32 s46, s46, 1\ns_lshl_b32 s48, s51, 4")
        a.e(vv("v_bfe_u32 v6, LANE, 4, 1\nv_add_u32 v10, s46, v6\nv_mov_b32 v11, s47\nv_and_b32 v12, 15, LANE\nv_add_u32 v12, s48, v12"))
        frag_table(a, L.W13, L.W13_STR, AD[h])
    krow_addr(a)
    a.e(vv("v_bfe_u32 v6, LANE, 4, 1\nv_lshl_add_u32 v7, v6, 5, v7"))
    a.e(vv("v_and_b32 v8, 1, LANE\nv_lshl_add_u32 v7, v8, 4, v7\nv_bfe_u32 v8, LANE, 1, 1\nv_lshl_add_u32 v4, v8, 3, v7"))


def proc_w2(a, spin):
    w2_ids(a)
    a.e("s_lshl_b32 s46, s44, 2")
    a.e(vv("v_and_b32 v6, 3, LANE\nv_add_u32 v6, s46, v6\nv_lshrrev_b32 v7, 2, LANE\nv_lshl_add_u32 v4, v6, 2, v7"))
    sig_regs(a, 16, f"s_mov_b32 s46, {L.C_PW2 * 64 * L.CNT_STRIDE}\ns_cmp_eq_u32 s51, 1\ns_cselect_b32 s46, {L.C_PWO * 64 * L.CNT_STRIDE}, s46")
    a.e(f"s_mov_b32 s49, {L.W2}\ns_mov_b32 s50, {L.W2_STR}\ns_cmp_eq_u32 s51, 1\ns_cselect_b32 s49, {L.WO}, s49\ns_cselect_b32 s50, {L.WO_STR}, s50")
    a.e("s_lshl_b32 s48, s44, 2\ns_mul_i32 s48, s48, s50\ns_add_u32 s49, s49, s48\ns_mul_i32 s48, s45, 5120\ns_add_u32 s49, s49, s48")
    stage_base(a, 46)
    a.e(vv("v_lshrrev_b32 v7, 4, LANE\nv_lshlrev_b32 v7, 3, v7\nv_bfe_u32 v8, LANE, 2, 2\nv_add_u32 v7, v7, v8\nv_mul_u32_u24 v7, 640, v7\nv_add_u32 v7, s46, v7"))
    a.e(vv("v_and_b32 v8, 3, LANE\nv_lshl_add_u32 v4, v8, 4, v7\nv_lshl_add_u32 v5, v8, 3, v7"))
    diag(a, 59)
    a.e("s_waitcnt vmcnt(0)")
    diag(a, 60)
    reg = lambda f: DATA[f // 10] + 4 * (f % 10)

    def rd(f):
        cc, t = divmod(f, 5)
        for u in range(2):
            off = cc * 160 + ((t >> 1) * 64 + (t & 1) * 8 if t < 4 else 128) + u * 4 * 640
            a.ds(f"ds_read_b64_tr_b16 v[{reg(f)+2*u}:{reg(f)+2*u+1}], v{V(4 if t < 4 else 5)} offset:{off}", ("t", f))
    for f in range(7):
        rd(f)
    for f in range(20):
        cc, t = divmod(f, 5)
        a.wait_ds(("t", f))
        if t < 4:
            a.e(f"buffer_store_dwordx4 v[{reg(f)}:{reg(f)+3}], v{L16}, {WS}, s49 offen offset:{t*1024} sc1")
        else:
            a.e(f"s_add_u32 s48, s49, 4096\nbuffer_store_dwordx4 v[{reg(f)}:{reg(f)+3}], v{L16}, {WS}, s48 offen sc1\ns_add_u32 s49, s49, s50")
        if f + 7 < 20:
            rd(f + 7)


def proc_x(a, spin):
    a.e(f"s_and_b32 s44, s{SU}, 3\ns_lshl_b32 s44, s44, 3\ns_lshr_b32 s45, s{SU}, 2")
    a.e(vv("v_mov_b32 v4, s45"))
    sig_regs(a, 1, L.C_X)
    a.e(vv("v_and_b32 v5, 7, LANE\nv_add_u32 v5, s44, v5\nv_lshrrev_b32 v6, 3, LANE"))
    a.e(vv("v_lshlrev_b32 v10, 9, v6\nv_lshl_add_u32 v10, v5, 4, v10\nv_lshlrev_b32 v11, 8, v6\nv_lshl_add_u32 v11, v5, 3, v11"))
    a.e(f"s_mul_i32 s46, s45, 40960\ns_add_u32 s46, s46, {L.LBASE + L.X}\ns_lshl_b32 s47, s45, 11\ns_add_u32 s47, s47, {L.LBASE + L.ST}")
    a.e(vv("s_mov_b32 s48, 0x3f803f80\nv_mov_b32 v12, 0\nv_mov_b32 v13, 0"))
    diag(a, 59)
    a.e("s_waitcnt vmcnt(0)")
    diag(a, 60)
    for q in range(10):
        a.e(vv(f"buffer_store_dwordx4 v[{16+4*q}:{19+4*q}], v10, {WS}, s46 offen sc1\ns_add_u32 s46, s46, 4096"))
    if not ONESIG:
        a.e("s_barrier")
    for r in range(40):
        a.e(vv(f"v_dot2_f32_bf16 v{12+(r&1)}, v{16+r}, s48, v{12+(r&1)}"))
    a.e(vv(f"v_add_f32 v12, v12, v13\nv_mul_f32 v12, {f32bits(1.0/80)}, v12\nv_mov_b32 v14, 0\nv_mov_b32 v15, 0"))
    for r in range(40):
        t = 56 + 2 * (r & 3)
        a.e(vv(f"v_lshlrev_b32 v{t}, 16, v{16+r}\nv_and_b32 v{t+1}, 0xffff0000, v{16+r}"))
        a.e(vv(f"v_pk_add_f32 v[{t}:{t+1}], v[{t}:{t+1}], v[12:13] op_sel_hi:[1,0] neg_lo:[0,1] neg_hi:[0,1]"))
        a.e(vv(f"v_pk_fma_f32 v[14:15], v[{t}:{t+1}], v[{t}:{t+1}], v[14:15]"))
    st = vv(f"v_add_f32 v13, v14, v15\nbuffer_store_dwordx2 v[12:13], v11, {WS}, s47 offen sc1")
    if ONESIG:
        a.e(st + "\ns_barrier")
    boot_issue(a)
    boot_check(a, spin)
    a.e(f"s_lshl_b32 s49, s45, 8\ns_mov_b32 s50, 1\ns_atomic_add s50, s[12:13], s49")
    diag(a, 62)
    if ONESIG:
        a.e(f"v_bfrev_b32 v{V_SA}, 1")
    else:
        a.e(st + f"\nv_mov_b32 v{V_SD}, 256")


def part1(a, name):
    decode(a)
    done = a.label("Ls0p1")
    for role, fn in ((R_QKV, issue_qkv), (R_X, issue_x), (R_BOOT, lambda a: issue_boot(a, name))):
        nx = a.label("Ls0n")
        a.e(f"s_cmp_lg_u32 s{SROLE}, {role}\ns_cbranch_scc1 {nx}")
        fn(a)
        a.e(f"s_branch {done}\n{nx}:")
    a.e(f"{done}:")


def part2(a, spin):
    done, nq, nx, n2, cols, sums = (a.label("Ls0") for _ in range(6))

    def bar0(before):
        if not EARLY0:
            if before:
                a.e("s_barrier")
            return
        lb = a.label("Ls0")
        a.e(f"s_cmp_eq_u32 s3, 0\ns_cbranch_scc{1 if before else 0} {lb}\ns_barrier\n{lb}:")
    a.e(f"v_bfrev_b32 v{V_SA}, 1\nv_mov_b32 v{V_SD}, 1")
    a.e(f"s_cmp_lg_u32 s{SROLE}, {R_X}\ns_cbranch_scc1 {nx}")
    proc_x(a, spin)
    a.e(f"s_branch {done}\n{nx}:")
    a.e(f"s_cmp_lg_u32 s{SROLE}, {R_QKV}\ns_cbranch_scc1 {nq}")
    proc_qkv(a, spin)
    a.e(f"s_branch {cols}\n{nq}:")
    bar0(True)
    a.e(f"s_cmp_lg_u32 s{SROLE}, {R_W2}\ns_cbranch_scc1 {n2}")
    issue_w2(a)
    bar0(False)
    proc_w2(a, spin)
    a.e(f"s_branch {done}\n{n2}:")
    a.e(f"s_cmp_lg_u32 s{SROLE}, {R_W13}\ns_cbranch_scc1 {done}")
    issue_w13(a)
    bar0(False)
    proc_w13(a, spin)
    a.e(f"{cols}:")
    cols_stores(a)
    if not ONESIG:
        a.e(f"s_cmp_lg_u32 s{SROLE}, {R_QKV}\ns_cbranch_scc1 {sums}\ns_barrier\n{sums}:")
    cols_sums(a)
    lw = a.label("Ls0")
    if ONESIG:
        cols_sumstore(a)
    a.e(f"s_cmp_lg_u32 s{SROLE}, {R_QKV}\ns_cbranch_scc1 {lw}")
    if ONESIG:
        a.e("s_barrier")
    boot_issue(a)
    boot_check(a, spin)
    a.e("s_mul_i32 s47, s57, 205\ns_lshr_b32 s47, s47, 10\ns_add_u32 s48, s57, 8")
    for jj in range(3):
        sk = a.label("Ls0k")
        a.e(f"s_add_u32 s49, s47, {jj}\ns_mul_i32 s50, s49, 5\ns_add_u32 s51, s50, 5\ns_min_i32 s51, s51, s48\ns_max_i32 s50, s50, s57")
        a.e(f"s_sub_i32 s{52+jj}, s51, s50\ns_cmp_lt_i32 s{52+jj}, 1\ns_cbranch_scc1 {sk}")
        a.e(f"s_lshl_b32 s49, s49, 10\ns_add_u32 s49, s49, {L.C_PQKV * 64 * L.CNT_STRIDE}")
        for rep in range(4):
            a.e(f"s_atomic_add s{52+jj}, s[12:13], s49" + ("\ns_add_u32 s49, s49, 256" if rep < 3 else ""))
        a.e(f"{sk}:")
    diag(a, 62)
    a.e(f"v_bfrev_b32 v{V_SA}, 1" if ONESIG else f"v_lshlrev_b32 v{V_SD}, 8, v{V_SD}")
    a.e(f"{lw}:")
    if not ONESIG:
        cols_sumstore(a)
    a.e(f"{done}:")
    diag(a, 61)
    a.e("s_barrier")
```

```python
from asmcore import *
import layout as L
import gen_stage0 as S0

RING = 156
P1S, SCR, P2S, P3S, P4S, TOT = 0, 164, 192, 292, 540, 780
FIX = RING * 1024
SCRB = (SCR % RING) * 1024
GC_OFF, GC_STR = SCRB, 3360
GB_OFF = GC_OFF + 4 * GC_STR
QT_OFF = GB_OFF + 5120
RS_OFF = FIX
Q1_OFF = FIX + 1024
assert QT_OFF + 4 * 2304 <= SCRB + 28 * 1024
LOG2E = 1.4426950408889634
SPIN = 400000

V_LANE, V_L16, V_T16, V_L16B, V_L16C = 1, 2, 3, 4, 5
V_STL, V_OST, V_HST, V_XS1, V_XS2, V_OUT1, V_OUT2 = 6, 7, 8, 9, 10, 11, 12
V_G0, V_G1, V_GBW, V_GBX, V_GBY = 13, 14, 15, 16, 17
V_QW3, V_QW1, V_QR, V_QR2 = 18, 19, 20, 21
V_C2, V_C3, V_LO = 22, 24, 26
V_RSW, V_RSR, V_STS = 27, 28, 29
V_RES = 32
V_MF = 52
V_ST = 56
V_ACC = 64
V_FIFO = 160
V_TMP = 208
S_W, S_I, S_J, S_LAY, S_LOFF, S_COFF, S_W1K = 3, 14, 15, 16, 17, 18, 19
S_SEG = {P1S: 20, P2S: 21, P3S: 22, P4S: 23}
S_TB32, S_TB16, S_TB32P = 24, 25, 26
S_XA, S_STA, S_OA, S_HA, S_XS, S_STS, S_OS = 27, 28, 29, 30, 31, 32, 33
S_HS = (34, 35, 36)
S_KVS, S_KVR, S_OUT, S_KVC = 38, 39, 40, 41
S_T = 44
S_M210 = 60
S_ONE = 62
S_POLL = 63
S_C256 = 42
SRD_WS, SRD_OUT, SRD_NX = 4, 8, 64
S_DBG = 68
S_A = 70
S_EPS2 = 76
S_ONE2 = 78
S_TS = 80


V_TG = {4: V_T16, 8: 196, 12: 197, 16: 198}
S_WG = {4: S_W1K, 8: 84, 12: 85, 16: 86}
V_T16B, V_T16C, V_T8, V_KVL = 199, 200, 201, 202
S_MKV = 88
S_LO32 = 96
S_RT = 98
V_POI = 204
V_CHK = 203
RETRY = 3000
S_CW = 83
S_PA, S_PB, S_PADDR = 37, 43, 71
A_PARK = 160
INF = 10 ** 9
isdma = lambda t: isinstance(t, tuple) and t[0] == "dma"
isfl = lambda t: isinstance(t, tuple) and t[0] == "flush"


def flat_tags(q):
    for t in q:
        if isinstance(t, frozenset):
            yield from t
        else:
            yield t


class Ring:
    def __init__(self, a, parks):
        self.a = a
        self.next = 0
        self.pub = 0
        self.freed = 0
        self.cons = 0
        self.open = None
        self.parks = parks
        self.parked = {}
        self.maxg = 16
        self.gate = INF
        self.wflag = ""

    def seg(self, pos):
        p = pos % TOT
        for s, e in ((P1S, SCR), (P2S, P3S), (P3S, P4S), (P4S, TOT)):
            if s <= p < e:
                return s, p - s, e - p
        return None

    def skip(self):
        if self.next % TOT == SCR:
            self.next += P2S - SCR

    def park_of(self, pos):
        for s, (e, r) in self.parks.items():
            if s <= pos < e:
                return s
        return None

    def plan(self, limit=INF):
        if self.open:
            return ("dma", 3)
        n = self.next + (P2S - SCR if self.next % TOT == SCR else 0)
        if n >= limit or n >= self.gate or n + 4 - RING > self.freed:
            return None
        pk = self.park_of(n)
        if pk is not None:
            if self.parked.get(pk, 0) <= (n - pk) // 4:
                return None
            return ("flush", 5)
        return ("dma", 5)

    def step(self, limit=INF):
        a = self.a
        p = self.plan(limit)
        assert p is not None
        if not self.open:
            self.skip()
        pos = self.next
        if p[0] == "flush":
            pk = self.park_of(pos)
            q = (pos - pk) // 4
            a.wait_vm(("park", pos))
            addr = (pos % RING) * 1024
            base = (V_T16, V_T16B, V_T16C)[addr >> 16]
            rb = self.parks[pk][1] + 4 * q
            a.ds(f"ds_write_b128 v{base}, a[{rb}:{rb+3}] offset:{addr & 0xffff}", ("flush", pos))
            self.next = pos + 4
            return
        if not self.open:
            s, rel, left = self.seg(pos)
            g = min(self.maxg, left, RING - pos % RING, (self.freed + RING - pos) // 4 * 4, max(4, (limit - pos + 3) // 4 * 4))
            for ps in self.parks:
                if pos < ps:
                    g = min(g, ps - pos)
            assert g >= 4 and g % 4 == 0
            a.e(f"s_add_u32 m0, s{S_WG[g]}, {(pos % RING) * 1024}")
            a.e(f"s_add_u32 s{S_T+15}, s{S_SEG[s]}, {rel * 1024}")
            self.open = [pos, g, 0]
        st, g, k = self.open
        srd = SRD_NX if st >= TOT else SRD_WS
        a.vm(f"buffer_load_dwordx4 v{V_TG[g]}, s[{srd}:{srd+3}], s{S_T+15} offen offset:{k*1024} {self.wflag} lds", ("dma", st))
        self.open[2] += 1
        if self.open[2] == g // 4:
            self.next = st + g
            self.open = None

    def steps(self, maxn=INF, limit=INF):
        n = 0
        while n < maxn and self.plan(limit):
            self.step(limit)
            n += 1
        while self.open and maxn == INF:
            self.step(limit)
        return n

    def park_ready(self, pk):
        return pk in self.parks and pk < self.gate and pk + 4 * self.parked.get(pk, 0) < self.parks[pk][0]

    def park(self, pk):
        a = self.a
        q = self.parked.get(pk, 0)
        pos = pk + 4 * q
        s, rel, left = self.seg(pos)
        rb = self.parks[pk][1] + 4 * q
        a.e(f"s_add_u32 s{S_T+14}, s{S_SEG[s]}, {rel * 1024}")
        a.vm(f"buffer_load_dwordx4 a[{rb}:{rb+3}], v{V_T16}, s[{SRD_WS}:{SRD_WS+3}], s{S_T+14} offen {self.wflag}", ("park", pos))
        self.parked[pk] = q + 1

    def any_step(self, pks=(), limit=INF):
        if self.plan(limit):
            self.step(limit)
            return True
        for pk in pks:
            if self.park_ready(pk):
                self.park(pk)
                return True
        return False

    def barrier(self, need):
        a = self.a
        while need > self.next and not (self.next % TOT == SCR and not self.open and need <= self.next + P2S - SCR):
            self.step()
            self.late = getattr(self, "late", 0) + 1
        a.wait_both(lambda t: isdma(t) and t[1] < need, lambda t: isfl(t) and t[1] < need)
        a.e("s_barrier")
        out = [t[1] for t in a.vm_tags() if isdma(t)] + [t[1] for t in flat_tags(a.lgq) if isfl(t)] + [self.next]
        self.pub = min(out)
        if self.pub % TOT == SCR:
            self.pub += P2S - SCR
        self.freed = max(self.freed, self.cons)

    def read(self, pos, reg):
        assert pos < self.pub, (pos, self.pub)
        addr = (pos % RING) * 1024
        base = (V_L16, V_L16B, V_L16C)[addr >> 16]
        self.a.ds(f"ds_read_b128 v[{reg}:{reg+3}], v{base} offset:{addr & 0xffff}", ("frag", pos))


class Seq:
    def __init__(self, items, force=False, maxper=99):
        self.items = list(items)
        self.force = force
        self.maxper = maxper

    def take(self, sc, g, kinds):
        n = 0
        while self.items and n < self.maxper:
            fn, slots, early, kind = self.items[0]
            if kind not in kinds or early > g:
                return
            if not self.force:
                if slots > sc.free and not (sc.fresh and slots > sc.budget):
                    return
                if kind == "vm" and not sc.vm_ok(g):
                    return
            fn()
            sc.use(slots, kind, g)
            self.items.pop(0)
            n += 1

    def done(self):
        return not self.items

    def flush(self):
        for it in self.items:
            it[0]()
        self.items = []


class Dag:
    def __init__(self, a, ops):
        self.a, self.ops = a, ops
        self.left = list(range(len(ops)))
        self.at = {}
        self.off = 0
        self.keep = False

    def emit(self, k):
        t = self.ops[k][0]
        t() if callable(t) else self.a.e(t)

    def take(self, sc, g, kinds):
        g += self.off
        for k in list(self.left)[:80]:
            text, deps, tr, early = self.ops[k]
            kind = "vm" if callable(text) else ("s" if text.startswith("s_") else "v")
            if early > g or kind not in kinds or any(d not in self.at or self.at[d] >= g for d in deps):
                continue
            slots = 3 if kind == "vm" else (2 if tr else 1)
            if slots > sc.free:
                continue
            self.emit(k)
            sc.use(slots, kind, g - self.off)
            self.at[k] = g
            self.left.remove(k)

    def done(self):
        return not self.left

    def flush(self):
        if self.keep:
            return
        g = 10 ** 6
        while self.left:
            g += 1
            n = 0
            for k in list(self.left):
                if n < 6 and all(d in self.at and self.at[d] < g for d in self.ops[k][1]):
                    self.emit(k)
                    self.at[k] = g
                    self.left.remove(k)
                    n += 1


class RingFill:
    def __init__(self, ring, early=0, limit=INF, park=None, park_early=0, maxn=INF, cheap=False):
        self.cheap = cheap
        self.ring, self.early, self.limit, self.park, self.park_early, self.maxn = ring, early, limit, park, park_early, maxn

    def take(self, sc, g, kinds):
        if "vm" not in kinds:
            return
        r = self.ring
        if g >= self.early and self.maxn > 0:
            p = r.plan(self.limit)
            if p and p[0] == "flush":
                if (p[1] <= sc.free or sc.fresh) and g >= sc.fl_t:
                    r.step(self.limit)
                    sc.use(p[1], "s", g)
                    sc.fl_t = g + sc.fl_per
            elif p and sc.vm_ok(g) and (p[1] <= sc.free or sc.fresh or self.cheap):
                r.step(self.limit)
                sc.use(0 if self.cheap else p[1], "vm", g)
                self.maxn -= 1
                return
        if self.park is not None and g >= self.park_early and r.park_ready(self.park) and sc.vm_ok(g) and (3 <= sc.free or sc.fresh or self.cheap):
            r.park(self.park)
            sc.use(0 if self.cheap else 3, "vm", g)

    def done(self):
        return True

    def flush(self):
        pass


class Sched:
    def __init__(self, streams, budget, period, fl_per=3):
        self.streams, self.budget, self.period = streams, budget, period
        self.vm_t = 0.0
        self.fl_t, self.fl_per = 0, fl_per

    def vm_ok(self, g):
        return self.vm_t <= g

    def use(self, slots, kind, g):
        self.free -= slots
        self.fresh = False
        if kind == "vm":
            per = self.period(g) if callable(self.period) else self.period
            self.vm_t = max(self.vm_t, g - 1.0) + per

    def gap(self, g, used):
        self.free = self.budget - used
        self.fresh = True
        for s in self.streams:
            s.take(self, g, ("vm", "s"))
        for s in self.streams:
            s.take(self, g, ("v", "s"))
            assert g < getattr(s, "deadline", INF) or s.done(), ("deadline", g)

    def finish(self):
        for s in self.streams:
            s.flush()


def run_pass(a, ring, mf, sc, bars, depth, group, hook=None, fifo=V_FIFO, stamps=None, ver=None):
    n = len(mf)
    starts = {}
    m = 0
    while m < n:
        g = group(m) if callable(group) else group
        starts[m] = min(m + g, n) - 1
        m += g
    tags_of = lambda m: {mf[k][1] for k in range(m, starts[m] + 1)}

    def rd(m):
        if m in bars:
            ring.barrier(bars[m])
        ring.read(mf[m][0], fifo + 4 * (m % depth))

    for m in range(min(depth - 1, n)):
        rd(m)
    if hook:
        hook()
    if ver:
        t0 = tags_of(0)
        a.wait_vm(lambda t: t in t0)
        ver.compare(ver.fresh(t0))
        ver.branch()
    todo = []
    for m in range(n):
        if m in starts:
            last = starts[m]
            tags = tags_of(m)
            if ver:
                assert not ver.fresh(tags) and not ver.pending
                tags = tags_of(last + 1) if last + 1 < n else set()
                todo = ver.fresh(tags)
            a.wait_both(lambda t: t in tags, ("frag", mf[last][0]))
            ring.cons = mf[last][0] + 1
        mf[m][2](fifo + 4 * (m % depth))
        used = 0
        if m + depth - 1 < n:
            used += 3 if (m + depth - 1) in bars else 1
            rd(m + depth - 1)
        if m + 1 in starts:
            used += 1
        if ver and ver.pending:
            ver.branch()
            used += 1
        if todo:
            used += ver.cost(todo)
        sc.gap(m, used)
        if todo:
            ver.compare(todo)
            todo = []
        if stamps and m in stamps:
            stamps[m]()
    sc.finish()


class Verifier:
    def __init__(self, a, cfg, rel_sgpr, const, both=lambda s: False):
        self.inc = {L.X: 1, L.O: 1 << 16, L.X1: 1 << 24}[const]
        self.a, self.cfg, self.rel, self.const, self.both = a, cfg, rel_sgpr, const, both
        self.done = set()
        self.pending = None

    def fresh(self, tags):
        return sorted(t[1] for t in tags if isinstance(t, tuple) and t[1] not in self.done)

    def regs(self, steps):
        return [4 * s + d for s in steps for d in ((0, 2) if self.both(s) else (0,))]

    def cost(self, steps):
        return 2 * len(self.regs(steps))

    def cmp_text(self, steps):
        r = self.regs(steps)
        t = [f"v_accvgpr_read_b32 v{V_CHK}, a{r[0]}"]
        for x in r[1:]:
            t += [f"v_accvgpr_read_b32 v23, a{x}", f"v_max_u32 v{V_CHK}, v23, v{V_CHK}"]
        t += [f"v_cmp_eq_u32 vcc, -1, v{V_CHK}"]
        return "\n".join(t)

    def compare(self, steps):
        self.a.e(self.cmp_text(steps))
        self.pending = steps
        self.done.update(steps)

    def branch(self):
        a = self.a
        lr, lb = a.label("Lre"), a.label("Lbk")
        a.e(f"s_cbranch_vccnz {lr}\n{lb}:")
        t = [f"{lr}:", f"s_mov_b32 s{S_RT+1}, 0", f"{lr}_l:"]
        if self.cfg.get("timing"):
            t += [f"s_add_u32 s87, s87, {self.inc}"]
        for s in self.pending:
            t += [f"s_add_u32 s{S_RT}, s{S_LOFF}, s{self.rel}", f"s_add_u32 s{S_RT}, s{S_RT}, {self.const + s * 1024}",
                  f"buffer_load_dwordx4 a[{4*s}:{4*s+3}], v{V_L16}, s[{SRD_WS}:{SRD_WS+3}], s{S_RT} offen sc1"]
        t += ["s_waitcnt vmcnt(0)", self.cmp_text(self.pending), f"s_add_u32 s{S_RT+1}, s{S_RT+1}, 1",
              f"s_cbranch_vccz {lb}", f"s_cmp_lt_u32 s{S_RT+1}, {RETRY}", f"s_cbranch_scc1 {lr}_l", f"s_branch {lb}"]
        self.cfg["_cold"].append("\n".join(t))
        self.pending = None


def vseq(fns, early, kind="v", slots=1):
    return [(f, slots, early, kind) for f in fns]


def aload(a, s, sbase_setup, reg=None, tag="A"):
    if s % 4 == 0:
        sbase_setup(s)
    r = 4 * s if reg is None else reg
    a.vm(f"buffer_load_dwordx4 a[{r}:{r+3}], v{V_L16}, s[{SRD_WS}:{SRD_WS+3}], s{S_A} offen offset:{(s%4)*1024} sc1", (tag, s))


def lines(a, text):
    return [(lambda t=t: a.e(t)) for t in text.strip().split("\n") if t.strip()]


def cnt_off(a, dst, kind, sidx, nextlayer=False):
    c = (kind * 64 + (L.CNT_PER_LAYER if nextlayer else 0)) * L.CNT_STRIDE
    a.e(f"s_lshl_b32 s{dst}, s{sidx}, 8\ns_add_u32 s{dst}, s{dst}, s{S_COFF}")
    if c:
        a.e(f"s_add_u32 s{dst}, s{dst}, {c}")


def signal(a, kind, sidx, nextlayer=False, inc=S_ONE):
    cnt_off(a, S_T + 13, kind, sidx, nextlayer)
    a.e(f"s_atomic_add s{inc}, s[12:13], s{S_T+13}")


def chaos(a, cfg, kind, sidx, nextlayer=False):
    if not cfg.get("chaos"):
        return
    signal(a, kind, sidx, nextlayer)
    lb = a.label("Lchaos")
    a.e(f"s_and_b32 s{S_RT}, s2, {cfg['chaos']}\ns_cbranch_scc0 {lb}\ns_sleep 100\n{lb}:")


def esignal(a, cfg, kind, sidx, nextlayer=False):
    if cfg.get("qwait", False):
        a.wait_vm(lambda t: t not in ("xst", "ost", "kvst"))
    if cfg.get("sdelay"):
        a.e(f"s_sleep {cfg['sdelay']}")
    if not cfg.get("chaos"):
        signal(a, kind, sidx, nextlayer)


def poll_issue(a, kind, sidx):
    cnt_off(a, S_T + 12, kind, sidx)
    a.e(f"s_mov_b32 s{S_POLL}, 0")
    a.e(f"s_atomic_add s{S_POLL}, s[12:13], s{S_T+12} glc")


def poll_check(a, shift=0, target=16):
    lp, ok = a.label("Lpoll"), a.label("Lok")
    a.e(f"s_mov_b32 s{S_T+11}, 0")
    a.e(f"{lp}:")
    a.e("s_waitcnt lgkmcnt(0)")
    a.lgq = []
    a.e(f"s_bfe_u32 s{S_POLL}, s{S_POLL}, {(8 << 16) | shift}")
    a.e(f"s_cmp_ge_u32 s{S_POLL}, {target}\ns_cbranch_scc1 {ok}")
    a.e(f"s_mov_b32 s{S_POLL}, 0")
    a.e(f"s_atomic_add s{S_POLL}, s[12:13], s{S_T+12} glc")
    a.e(f"s_add_u32 s{S_T+11}, s{S_T+11}, 1")
    a.e(f"s_cmp_lt_u32 s{S_T+11}, {SPIN}\ns_cbranch_scc1 {lp}")
    a.e("s_waitcnt lgkmcnt(0)")
    a.e(f"{ok}:")


def poll2_a(a, kind, sidx):
    cnt_off(a, S_PADDR, kind, sidx)
    a.e(f"s_mov_b32 s{S_PA}, 0\ns_mov_b32 s{S_PB}, 0")
    a.e(f"s_atomic_umax s{S_PA}, s[12:13], s{S_PADDR} glc")


def poll2_check(a, cfg, target=16):
    lp, ok = a.label("Lpoll"), a.label("Lok")
    T_ = S_T + 11
    n_lds = len(a.lgq)
    a.e(f"s_atomic_umax s{S_PB}, s[12:13], s{S_PADDR} glc")
    a.e(f"s_mov_b32 s{T_}, 0")
    a.e(f"{lp}:")
    for r in (S_PA, S_PB):
        a.e("s_waitcnt lgkmcnt(1)")
        a.e(f"s_max_u32 s{S_RT}, s{S_PA}, s{S_PB}\ns_and_b32 s{S_RT}, s{S_RT}, 0xff")
        a.e(f"s_cmp_ge_u32 s{S_RT}, {target}\ns_cbranch_scc1 {ok}")
        a.e(f"s_atomic_umax s{r}, s[12:13], s{S_PADDR} glc")
    a.e(f"s_add_u32 s{T_}, s{T_}, 1\ns_cmp_lt_u32 s{T_}, {SPIN}\ns_cbranch_scc1 {lp}")
    a.e(f"{ok}:")
    a.lgq = a.lgq[-1:]


def gap_issue(a, cfg, kind, sidx):
    (poll2_a if cfg.get("dual", True) else poll_issue)(a, kind, sidx)


def gap_check(a, cfg):
    if cfg.get("dual", True):
        if cfg.get("dsleep"):
            a.e(f"s_sleep {cfg['dsleep']}")
        poll2_check(a, cfg)
    else:
        poll_check(a)


def poll(a, kind, sidx, shift=0):
    poll_issue(a, kind, sidx)
    poll_check(a, shift)


def a_setup(a, rel_sgpr, const):
    def f(s):
        if s == 0:
            a.e(f"s_add_u32 s{S_A}, s{S_LOFF}, s{rel_sgpr}\ns_add_u32 s{S_A}, s{S_A}, {const}")
        else:
            a.e(f"s_add_u32 s{S_A}, s{S_A}, 4096")
    return f


def res_load(a):
    P = 128
    a.e(f"s_add_u32 s{S_T}, s{S_XS}, {L.LBASE + L.X}")
    a.vm(f"buffer_load_dwordx4 v[{P}:{P+3}], v{V_XS1}, s[{SRD_WS}:{SRD_WS+3}], s{S_T} offen sc1", "res")
    a.vm(f"buffer_load_dwordx4 v[{P+4}:{P+7}], v{V_XS1}, s[{SRD_WS}:{SRD_WS+3}], s{S_T} offen offset:2048 sc1", "res")
    a.vm(f"buffer_load_dwordx2 v[{P+8}:{P+9}], v{V_XS2}, s[{SRD_WS}:{SRD_WS+3}], s{S_T} offen sc1", "res")


def stats_load(a, const):
    a.e(f"s_add_u32 s{S_T}, s{S_LOFF}, s{S_STA}\ns_add_u32 s{S_T}, s{S_T}, {const}")
    for n in range(4):
        a.vm(f"buffer_load_dwordx2 v[{V_ST+2*n}:{V_ST+2*n+1}], v{V_STL}, s[{SRD_WS}:{SRD_WS+3}], s{S_T} offen offset:{n*256} sc1", "st")


def stats_math(a, t):
    S = V_ST
    f = [lambda: a.wait_vm("st")]
    f += lines(a, f"""
v_add_f32 v{t}, v{S}, v{S+2}
v_add_f32 v{t+1}, v{S+4}, v{S+6}
v_add_f32 v{t}, v{t}, v{t+1}
v_mov_b32 v{t+1}, v{t}
v_permlane32_swap_b32 v{t}, v{t+1}
v_add_f32 v{t}, v{t}, v{t+1}
v_mul_f32 v{t}, {f32bits(-0.125)}, v{t}
""")
    for n in range(4):
        f += lines(a, f"""
v_add_f32 v{t+1}, v{S+2*n}, v{t}
v_mul_f32 v{t+1}, v{t+1}, v{t+1}
v_fmac_f32 v{S+2*n+1}, {f32bits(80.0)}, v{t+1}
""")
    f += lines(a, f"""
v_add_f32 v{t+1}, v{S+1}, v{S+3}
v_add_f32 v{t+2}, v{S+5}, v{S+7}
v_add_f32 v{t+1}, v{t+1}, v{t+2}
v_mov_b32 v{t+2}, v{t+1}
v_permlane32_swap_b32 v{t+1}, v{t+2}
v_add_f32 v{t+1}, v{t+1}, v{t+2}
v_mov_b32 v{t+2}, {f32bits(1e-5)}
v_fmac_f32 v{t+2}, {f32bits(1.0/640)}, v{t+1}
v_rsq_f32 v{S}, v{t+2}
v_cvt_pk_bf16_f32 v{t+1}, v{t}, v{t}
v_and_b32 v{t+1}, 0xffff0000, v{t+1}
v_sub_f32 v{t+1}, v{t}, v{t+1}
v_cvt_pk_bf16_f32 v{V_MF}, v{t}, v{t+1}
v_mov_b32 v{V_MF+1}, v{V_MF}
v_mov_b32 v{V_MF+2}, v{V_MF}
v_mov_b32 v{V_MF+3}, v{V_MF}
""")
    return f


def stamp(a, name, cfg, level=1, real=False):
    if cfg.get("spin"):
        if name == "start":
            a.e("s_memrealtime s[100:101]\ns_waitcnt lgkmcnt(0)")
        elif name == cfg["spin"][0] and not cfg.get("_spun"):
            cfg["_spun"] = True
            lp = a.label("Lspin")
            a.e(f"{lp}:\ns_memrealtime s[90:91]\ns_waitcnt lgkmcnt(0)\ns_sub_u32 s90, s90, s100\ns_cmp_lt_u32 s90, {cfg['spin'][1]}\ns_cbranch_scc1 {lp}")
            a.lgq = []
        return
    if not cfg.get("timing") or level > cfg.get("level", 1):
        return
    if (name in ("start", "end") or cfg.get("allrt")) and not real:
        stamp(a, name, cfg, level, True)
        if cfg.get("allrt") and name not in ("start", "end"):
            return
    names = cfg["_stamps"]
    key = ("rt_" if real else "") + name
    if key not in names:
        names.append(key)
    n = names.index(key)
    pend = cfg["_pend"]
    k = cfg["_k"][0]
    cfg["_k"][0] += 1
    pair = 90 + 2 * (k % 3)
    if len(pend) == 2:
        p, idx = pend.pop(0)
        a.e(f"v_writelane_b32 v31, s{p}, {idx}")
    a.e(f"{'s_memrealtime' if real else 's_memtime'} s[{pair}:{pair+1}]")
    pend.append((pair, n))
    if name == "end" and not real:
        stamp_flush(a, cfg, True)


def stamp_flush(a, cfg, store=False):
    if not cfg.get("timing"):
        return
    a.e("s_waitcnt lgkmcnt(0)")
    a.lgq = []
    while cfg["_pend"]:
        p, idx = cfg["_pend"].pop(0)
        a.e(f"v_writelane_b32 v31, s{p}, {idx}")
    cfg["_k"][0] = 0
    if store:
        a.e("v_writelane_b32 v31, s87, 63\ns_mov_b32 s87, 0")
        a.e(f"s_add_u32 s{S_TS+1}, s{S_TS+2}, {256 * cfg['_slot']}")
        a.vm(f"buffer_store_dword v31, v30, s[72:75], s{S_TS+1} offen", "stamp")
        a.e("s_nop 1\nv_mov_b32 v31, 0")


def phi_tile(a, acc, dst, R, RL, t, mixed):
    f = []
    for p in range(8):
        r = 2 * p
        u, e = t + 4 * (p & 1), t + 4 * (p & 1) + 2
        if mixed:
            f += lines(a, f"""
v_pk_fma_f32 v[{e}:{e+1}], v[{acc+r}:{acc+r+1}], v[{RL+r}:{RL+r+1}], v[{V_C2}:{V_C2+1}] op_sel_hi:[1,1,0]
v_pk_fma_f32 v[{u}:{u+1}], v[{acc+r}:{acc+r+1}], v[{R+r}:{R+r+1}], v[{V_C3}:{V_C3+1}] op_sel_hi:[1,1,0]
v_exp_f32 v{e}, v{e} clamp
v_exp_f32 v{e+1}, v{e+1} clamp
v_max_f32 v{u}, v{V_LO}, v{u}
v_max_f32 v{u+1}, v{V_LO}, v{u+1}
""")
        else:
            f += lines(a, f"""
v_pk_mul_f32 v[{e}:{e+1}], v[{acc+r}:{acc+r+1}], v[{RL+r}:{RL+r+1}]
v_pk_fma_f32 v[{u}:{u+1}], v[{acc+r}:{acc+r+1}], v[{R+r}:{R+r+1}], s[{S_EPS2}:{S_EPS2+1}]
v_exp_f32 v{e}, v{e} clamp
v_exp_f32 v{e+1}, v{e+1} clamp
v_max_f32 v{u}, s{S_EPS2}, v{u}
v_max_f32 v{u+1}, s{S_EPS2}, v{u+1}
""")
        f += lines(a, f"""
v_pk_add_f32 v[{u}:{u+1}], v[{u}:{u+1}], v[{e}:{e+1}]
v_cvt_pk_bf16_f32 v{dst+p}, v{u}, v{u+1}
""")
    return f


def set_exec(a, lo, hi):
    a.e(f"s_mov_b32 exec_lo, {lo:#x}\ns_mov_b32 exec_hi, {hi:#x}")


def lanemask(fn):
    m = 0
    for l in range(64):
        if fn(l):
            m |= 1 << l
    return m & 0xffffffff, m >> 32


T32 = [V_ACC + 16 * t for t in range(6)]
P1_R, P1_RL = V_TMP, V_TMP + 16
P1_PT = [144, 152, 240]
P1_TT = 248
PK3 = P3S + 156
PK3A = P3S + 52
G32 = lambda m: 3 if m < 60 else (4 if m < 100 else (2 if m == 100 else 3))


def mk32(a, pos, t, s, wfirst):
    def f(b):
        x = f"a[{4*s}:{4*s+3}]" if s < 40 else f"v[{V_MF}:{V_MF+3}]"
        c = "0" if s == 0 else f"v[{T32[t]}:{T32[t]+15}]"
        w = f"v[{b}:{b+3}]"
        p, q = (w, x) if wfirst else (x, w)
        a.e(f"v_mfma_f32_32x32x16_bf16 v[{T32[t]}:{T32[t]+15}], {p}, {q}, {c}")
    return (pos, ("A", s) if s < 40 else "none", f)


def panel(a, base, tiles, wfirst):
    return sorted((mk32(a, base + L.fragpos(t, s), t, s, wfirst) for t in tiles for s in range(41)), key=lambda x: x[0])


def poison_items(a, what, early, step=3):
    W = f"s[{SRD_WS}:{SRD_WS+3}]"
    P4, P2 = f"v[{V_POI}:{V_POI+3}]", f"v[{V_POI}:{V_POI+1}]"
    T_ = S_T + 10
    tag = ("poison", what)
    if what == "kv":
        def f():
            a.e(f"s_add_u32 s{T_}, s{S_LOFF}, s{S_KVS}\ns_mov_b64 exec, s[{S_M210}:{S_M210+1}]")
            a.vm(f"buffer_store_dwordx2 {P2}, v{V_T8}, {W}, s{T_} offen sc1", tag)
            a.e("s_mov_b64 exec, -1")
        fs = [f]
    elif what == "o":
        def f0():
            a.e(f"s_add_u32 s{T_}, s{S_LOFF}, s{S_OS}")
            a.vm(f"buffer_store_dwordx4 {P4}, v{V_OST}, {W}, s{T_} offen sc1", tag)
        fs = [f0, lambda: a.vm(f"buffer_store_dwordx4 {P4}, v{V_OST}, {W}, s{T_} offen offset:512 sc1", tag),
              lambda: a.vm(f"buffer_store_dwordx4 {P4}, v{V_OST}, {W}, s{T_} offen offset:768 sc1", tag)]
    else:
        const = L.X1 if what == "x1" else L.LSTR + L.X
        srd = W if what == "x1" else f"s[{SRD_NX}:{SRD_NX+3}]"

        def f0():
            a.e(f"s_add_u32 s{T_}, s{S_LOFF}, s{S_XS}\ns_add_u32 s{T_}, s{T_}, {const}")
            a.vm(f"buffer_store_dwordx4 {P4}, v{V_XS1}, {srd}, s{T_} offen sc1", tag)
        fs = [f0, lambda: a.vm(f"buffer_store_dwordx4 {P4}, v{V_XS1}, {srd}, s{T_} offen offset:2048 sc1", tag),
              lambda: a.vm(f"buffer_store_dwordx2 {P2}, v{V_XS2}, {srd}, s{T_} offen sc1", tag)]
    return [(f_, 4, early + step * k, "vm") for k, f_ in enumerate(fs)]


def stats_seq(a, cfg, kind, const, tail, polled=True):
    it = []
    p0 = cfg.get("stp", 20)
    if polled and cfg.get("early", True):
        it += [(lambda: (a.wait_vm(lambda t: t in ("sst", "old")), a.e(f"s_atomic_add s{S_C256}, s[12:13], s{S_T+9}")), 2, 0, "s")]
    if polled:
        it += [(lambda: poll_issue(a, kind, S_TB32), 5, p0, "s"),
               (lambda: poll_check(a, 8), 6, p0 + 24, "s"),
               (lambda: stats_load(a, const), 10, p0 + 25, "s")]
    m = Seq(vseq(stats_math(a, P1_TT) + tail, cfg.get("stm", 74)), maxper=3)
    m.deadline = 97
    return [Seq(it, force=True, maxper=1), m]


def phi_ops(acc, dst, R, RL, tmp, early):
    ops = []
    last = {}
    for r in range(16):
        e = tmp + r % 8
        x = acc + r
        b = len(ops)
        ops.append((f"v_mul_f32 v{e}, v{x}, v{RL+r}", [last[e]] if e in last else [], False, early))
        ops.append((f"v_exp_f32 v{e}, v{e} clamp", [b], True, early))
        ops.append((f"v_fma_f32 v{x}, v{x}, v{R+r}, s{S_EPS2}", [b], False, early))
        ops.append((f"v_max_f32 v{x}, s{S_EPS2}, v{x}", [b + 2], False, early))
        ops.append((f"v_add_f32 v{x}, v{x}, v{e}", [b + 1, b + 3], False, early))
        last[e] = b + 4
        if r & 1:
            ops.append((f"v_cvt_pk_bf16_f32 v{dst + (r >> 1)}, v{x-1}, v{x}", [b - 1, b + 4], False, early))
    return ops


def phase1(a, ring, cfg, first):
    AW = cfg.get("aw", 10)
    T, R, RL, PT, tt = T32, P1_R, P1_RL, P1_PT, P1_TT
    park = True
    early = cfg.get("early", True)
    ver = None
    pz = Seq(poison_items(a, "kv", cfg.get("pz1", 76)) + poison_items(a, "o", cfg.get("pz1", 76) + 4) if early else [], force=True, maxper=1)
    setup = a_setup(a, S_XA, L.X)
    mf = panel(a, P1S, (0, 1, 2), False)
    tail = lines(a, f"v_mul_f32 v{tt}, {f32bits(LOG2E)}, v{V_ST}\nv_cndmask_b32 v{tt}, v{tt}, v{V_ST}, s[{S_LO32}:{S_LO32+1}]")
    tail += [lambda: a.ds(f"ds_write_b32 v{V_RSW}, v{tt}", "rs")]
    for i in range(4):
        tail += [lambda i=i: a.ds(f"ds_read_b128 v[{R+4*i}:{R+4*i+3}], v{V_RSR} offset:{32*i}", "rs")]
        tail += [lambda i=i: a.ds(f"ds_read_b128 v[{RL+4*i}:{RL+4*i+3}], v{V_RSR} offset:{128+32*i}", "rs")]
    z = vseq(lines(a, f"v_mov_b32 v{tt+4}, 0\nv_mov_b32 v{tt+5}, 0\nv_mov_b32 v{tt+6}, 0\nv_mov_b32 v{tt+7}, 0"), 50)
    z += [(lambda: a.ds(f"ds_write_b128 v{V_T16}, v[{tt+4}:{tt+7}] offset:{GB_OFF}", "z"), 5, 66, "v"),
          (lambda: a.ds(f"ds_write_b128 v{V_T16}, v[{tt+4}:{tt+7}] offset:{GB_OFF+1024}", "z"), 5, 68, "v")]
    zs = Seq(z, maxper=3, force=True)
    d0 = Dag(a, [(lambda: a.wait_ds("rs"), [], False, 101)] + [(t_, [0] + [d + 1 for d in dp], tr, e) for t_, dp, tr, e in phi_ops(T[0], PT[0], R, RL, 112, 102)])
    if first:
        LA = cfg.get("la0", 3)
        ring.maxg = 12
        it = []
        done_a = cfg["_a0"]
        for blk in range(LA, 11):
            e = 12 * (blk - LA)
            need = [s for s in range(done_a, 40) if L.fragpos(0, s) < 12 * blk + 12]
            done_a += len(need)
            ops = [((lambda b=blk: ring.step(min(12 * b + 12, 124))), 4) for k in range(3 if blk < 10 else 1)]
            ops += [((lambda s=s: aload(a, s, setup)), 2) for s in need]
            it += [(f_, sl, e + int(k * 12 / len(ops)), "vm") for k, (f_, sl) in enumerate(ops)]
        pp = []
        if cfg.get("fuse", True):
            def chk(shift, target, gate):
                def f():
                    poll_check(a, shift, target)
                    if gate:
                        ring.gate = gate
                return f
            g0, dg = cfg.get("pkpoll", 20), cfg.get("pkstep", 15)
            pp += [(lambda: a.vm(S0.signal_text(), "dsig"), 3, 1, "s")]
            for n_, (kind, idx, shift, target, gate) in enumerate(((L.C_X, S_TB32, 8, 4, 0), (L.C_PQKV, S_KVC, 8, 60, SCR), (L.C_PWO, S_CW, 0, 20, P3S),
                                                                   (L.C_PW13, S_KVC, 0, 24, P4S), (L.C_PW2, S_CW, 0, 48, INF))):
                if not (shift and cfg.get("onesig", True)):
                    pp += [((lambda kind=kind, idx=idx: poll_issue(a, kind, idx)), 5, g0 + dg * n_, "s"), (chk(shift, target, gate), 6, g0 + dg * n_ + dg - 2, "s")]
                if n_ == 0:
                    pp += [(lambda: stats_load(a, L.ST), 10, 30, "s")]
            pp += [(lambda: res_load(a), 8, 98, "s")]
        sc = Sched([Seq(it, force=True, maxper=2), Seq(pp, force=True, maxper=1), pz, d0, RingFill(ring, 12 * (11 - LA), 164), zs] +
                   stats_seq(a, cfg, None, L.ST, tail, polled=False), 6, 2.0)
        bars = {12 * k: min(12 * k + 12, 123) for k in range(11)}
        hook = None
    else:
        ap = cfg.get("aper", 2.3)
        al = Seq([((lambda s=s: aload(a, s, setup)), 2, int(ap * (s - AW)), "vm") for s in range(AW, 40)], force=True, maxper=1)
        if early:
            ver = Verifier(a, cfg, S_XA, L.X, lambda s_: s_ % 5 == 4)
        sc = Sched([al, pz, d0] + stats_seq(a, cfg, L.C_X, L.ST, tail) + [RingFill(ring, 0, cfg.get("lim1a", 240), PK3 if park else None, 60, cheap=True), zs], 6, cfg.get("per1", 2.3))
        bars = {0: 48, 48: 72, 72: 96, 96: 123}

        def hook():
            gap_check(a, cfg)
            cfg["_slot"] = 0
            stamp(a, "end", cfg, 0)
            for s in range(AW):
                aload(a, s, setup)
    run_pass(a, ring, mf, sc, bars, cfg.get("d32", 9), G32, hook, ver=ver)
    ring.maxg = 16
    assert ring.freed >= P2S - RING, ring.freed
    cfg["_info"].append(f"P1a({first}): ring.next {ring.next} parked {ring.parked} late {getattr(ring, 'late', 0)}")
    stamp(a, "P1a done", cfg)
    if first:
        P = 128
        a.wait_vm("res")
        for p in range(10):
            a.e(f"v_lshlrev_b32 v{V_RES+2*p}, 16, v{P+p}\nv_and_b32 v{V_RES+2*p+1}, 0xffff0000, v{P+p}")
    KVA = [80, 64, 96, 128]
    pairs = [(0, 2), (0, 1), (1, 2), (1, 1)]

    def kvm(b, u):
        x, y = pairs[b]
        c = "0" if u == 0 else f"v[{KVA[b]}:{KVA[b]+15}]"
        a.e(f"v_mfma_f32_32x32x16_bf16 v[{KVA[b]}:{KVA[b]+15}], v[{PT[x]+4*u}:{PT[x]+4*u+3}], v[{PT[y]+4*u}:{PT[y]+4*u+3}], {c}")
    f = phi_tile(a, T[1], PT[1], R, RL, tt, True)
    for k, g in enumerate(f):
        g()
        if k % cfg.get("pk_every", 14) == 0:
            ring.any_step((PK3,))
    set_exec(a, 0xFF000000, 0xFF000000)
    for p in range(8):
        a.e(f"v_mov_b32 v{PT[1]+p}, 0x3f803f80")
    a.e("s_mov_b64 exec, -1")
    stamp(a, "phi done", cfg, 3)
    for n, (b, u) in enumerate(((1, 0), (1, 1), (3, 0), (3, 1))):
        kvm(b, u)
        if n & 1 and cfg.get("pk_kv", 1):
            ring.any_step((PK3,))
        for p in (2 * n, 2 * n + 1):
            a.e(f"v_mul_f32 v{T[2]+2*p}, v{T[2]+2*p}, v{R+2*p}\nv_mul_f32 v{T[2]+2*p+1}, v{T[2]+2*p+1}, v{R+2*p+1}")
        for p in (2 * n, 2 * n + 1):
            a.e(f"v_cvt_pk_bf16_f32 v{PT[2]+p}, v{T[2]+2*p}, v{T[2]+2*p+1}")
    rho = lambda l, i: 8 * i + 4 * (l >> 5)
    for i, (b, u) in enumerate(((0, 0), (0, 1), (2, 0), (2, 1))):
        if i:
            a.e("s_mov_b64 exec, -1")
        kvm(b, u)
        if cfg.get("pk_kv", 1):
            ring.any_step((PK3,))
        set_exec(a, *lanemask(lambda l: (l & 31) == 24 or (8 <= (l & 31) < 16 and rho(l, i) >= 20)))
        a.ds(f"ds_write_b128 v{V_G1}, v[{KVA[1]+4*i}:{KVA[1]+4*i+3}] offset:{32*i}", "g")
    set_exec(a, *lanemask(lambda l: 8 <= (l & 31) < 16 or (l & 31) == 24))
    a.ds(f"ds_write_b128 v{V_G1}, v[{KVA[3]}:{KVA[3]+3}] offset:128", "g")
    for i in range(4):
        set_exec(a, *lanemask(lambda l: ((l & 31) < 20) == (rho(l, i) < 20)))
        a.ds(f"ds_write_b128 v{V_G0}, v[{KVA[0]+4*i}:{KVA[0]+4*i+3}] offset:{32*i}", "g")
    set_exec(a, *lanemask(lambda l: (l & 31) >= 20))
    a.ds(f"ds_write_b128 v{V_G0}, v[{KVA[2]}:{KVA[2]+3}] offset:128", "g")
    a.e("s_mov_b64 exec, -1")
    a.wait_ds_all()
    stamp(a, "G written", cfg, 3)
    ring.barrier(P1S + 164)
    for w in range(4):
        a.ds(f"ds_read_b128 v[{64+4*w}:{67+4*w}], v{V_T16} offset:{GC_OFF + w*GC_STR}", "g")
    a.e(f"s_add_u32 s{S_T}, s{S_LOFF}, s{S_KVS}")

    def kvstore():
        a.wait_ds("g")
        a.e("v_pk_add_f32 v[64:65], v[64:65], v[68:69]\nv_pk_add_f32 v[66:67], v[66:67], v[70:71]")
        a.e("v_pk_add_f32 v[72:73], v[72:73], v[76:77]\nv_pk_add_f32 v[74:75], v[74:75], v[78:79]")
        a.e("v_pk_add_f32 v[64:65], v[64:65], v[72:73]\nv_pk_add_f32 v[66:67], v[66:67], v[74:75]")
        a.e("v_cvt_pk_bf16_f32 v68, v64, v65\nv_cvt_pk_bf16_f32 v69, v66, v67")
        a.wait_vm(("poison", "kv"))
        chaos(a, cfg, L.C_KV, S_KVC)
        a.e(f"s_mov_b64 exec, s[{S_M210}:{S_M210+1}]")
        a.vm(f"buffer_store_dwordx2 v[68:69], v{V_T8}, s[{SRD_WS}:{SRD_WS+3}], s{S_T} offen sc1", "kvst")
        if early:
            esignal(a, cfg, L.C_KV, S_KVC)
        set_exec(a, 0x00FF0000, 0x00FF0000)
        for i in range(4):
            a.ds(f"ds_write_b64 v{V_QW1}, v[{PT[1]+2*i}:{PT[1]+2*i+1}] offset:{16*i}", "q")
        a.e("s_mov_b64 exec, -1")
        stamp(a, "kv stored", cfg)
    mf = panel(a, P1S, (3,), False)
    if early:
        sg = Seq(poison_items(a, "x1", 2) + [(lambda: poll_issue(a, L.C_KV, S_KVC), 5, cfg.get("kvp", 18), "s")], force=True, maxper=1)
    else:
        sg = Seq([(lambda: (a.wait_vm("kvst"), signal(a, L.C_KV, S_KVC)), 5, cfg.get("kvsig", 22), "s")], force=True)
    sc = Sched([sg, RingFill(ring, 0, INF, PK3 if park else None, 0, maxn=cfg.get("n1b", 17))], 6, cfg.get("per1b", 2.4))
    run_pass(a, ring, mf, sc, {cfg.get("b1b", 24): 0}, cfg.get("d32", 9), 3, kvstore)

    def kvload():
        a.e(f"s_add_u32 s{S_T}, s{S_LOFF}, s{S_KVR}")
        a.e(f"s_mov_b64 exec, s[{S_MKV}:{S_MKV+1}]")
        for i in range(8):
            a.vm(f"buffer_load_dwordx4 v[{72+4*i}:{75+4*i}], v{V_KVL}, s[{SRD_WS}:{SRD_WS+3}], s{S_T} offen sc1", ("kv", i))
            if i < 7:
                a.e(f"s_add_u32 s{S_T}, s{S_T}, {2 * L.KV_STR}")
        a.e("s_mov_b64 exec, -1")
    if early:
        stamp(a, "P1b done", cfg)
        poll_check(a)
        stamp(a, "kv polled", cfg)
        kvload()
    f = phi_tile(a, T[3], PT[0], R, RL, tt, False)
    for k, g in enumerate(f):
        g()
        if not early and k == cfg.get("kvpoll", 8):
            poll_issue(a, L.C_KV, S_KVC)
        if k % cfg.get("pk_t3", 16) == 12:
            ring.any_step((PK3A, PK3), P2S + 100)
    for i in range(4):
        a.ds(f"ds_write_b64 v{V_QW3}, v[{PT[0]+2*i}:{PT[0]+2*i+1}] offset:{16*i}", "q")
    if not early:
        stamp(a, "P1b done", cfg)
        poll_check(a)
        stamp(a, "kv polled", cfg)
        kvload()
    PQ = 144
    for s in range(2):
        for u in range(2):
            a.ds(f"ds_read_b64_tr_b16 v[{PQ+4*s+2*u}:{PQ+4*s+2*u+1}], v{V_QR} offset:{(16*s+4*u)*72}", "pq")
    for u in range(2):
        a.ds(f"ds_read_b64_tr_b16 v[{PQ+8+2*u}:{PQ+8+2*u+1}], v{V_QR2} offset:{4*u*72}", "pq")
    for k in range(cfg.get("dmakv", 2)):
        ring.any_step((PK3A, PK3), P2S + 100)
    stamp(a, "kv issued", cfg, 3)
    lsum, lre = a.label("Lkvsum"), a.label("Lkvre")
    a.e(f"s_mov_b32 s{S_RT+1}, 0\n{lsum}:")
    for i in range(8):
        if i % 2 == 0:
            a.wait_vm(("kv", i + 1))
            if i in (0, 6):
                stamp(a, f"kv got{i}", cfg, 3)
        for c in range(4):
            src = 72 + 4 * i + c
            if i == 0:
                a.e(f"v_lshlrev_b32 v{64+2*c}, 16, v{src}\nv_and_b32 v{65+2*c}, 0xffff0000, v{src}")
            else:
                t_ = 104 + 2 * c
                a.e(f"v_lshlrev_b32 v{t_}, 16, v{src}\nv_and_b32 v{t_+1}, 0xffff0000, v{src}")
        if i:
            for c in range(4):
                a.e(f"v_pk_add_f32 v[{64+2*c}:{65+2*c}], v[{64+2*c}:{65+2*c}], v[{104+2*c}:{105+2*c}]")
    if early:
        a.e("v_max_u32 v112, v72, v74")
        for i in range(1, 8):
            a.e(f"v_max3_u32 v112, v{72+4*i}, v{74+4*i}, v112")
        a.e(f"v_cmp_eq_u32 vcc, -1, v112\ns_and_b64 vcc, vcc, s[{S_MKV}:{S_MKV+1}]\ns_cbranch_scc1 {lre}\n{lre}_b:")
        b = Asm()
        b.e(f"{lre}:\n" + ("s_add_u32 s87, s87, 256\n" if cfg.get("timing") else "") + f"s_add_u32 s{S_RT+1}, s{S_RT+1}, 1\ns_cmp_ge_u32 s{S_RT+1}, {RETRY}\ns_cbranch_scc1 {lre}_b")
        keep, a.out = a.out, b.out
        svq = list(a.vmq)
        kvload()
        a.e(f"s_waitcnt vmcnt(0)\ns_branch {lsum}")
        a.vmq = svq
        cfg["_cold"].append("\n".join(x.text for x in a.out))
        a.out = keep
    for k in range(cfg.get("dmasum", 6)):
        ring.any_step((PK3A, PK3), P2S + 100)
    for k in range(4):
        a.e(f"v_permlane32_swap_b32 v{64+k}, v{68+k}")
    a.e("v_pk_add_f32 v[64:65], v[64:65], v[68:69]\nv_pk_add_f32 v[66:67], v[66:67], v[70:71]")
    a.e("v_cvt_pk_bf16_f32 v68, v64, v65\nv_cvt_pk_bf16_f32 v69, v66, v67")
    a.e(f"s_mov_b64 exec, s[{S_MKV}:{S_MKV+1}]")
    a.ds(f"ds_write_b64 v{V_GBW}, v[68:69]", "gb")
    a.e("s_mov_b64 exec, -1")
    a.wait_ds_all()
    stamp(a, "kv summed", cfg)
    stamp_flush(a, cfg)
    ring.barrier(0)
    GX, GY, DX, DY = 208, 220, 64, 80
    for s in range(3):
        a.ds(f"ds_read_b128 v[{GY+4*s}:{GY+4*s+3}], v{V_GBY} offset:{32*s}", ("gy", s))
    for s in range(3):
        a.ds(f"ds_read_b128 v[{GX+4*s}:{GX+4*s+3}], v{V_GBX} offset:{32*s}", ("gx", s))
    for s in range(3):
        a.wait_ds(("gy", s))
        c = "0" if s == 0 else f"v[{DY}:{DY+15}]"
        a.e(f"v_mfma_f32_32x32x16_bf16 v[{DY}:{DY+15}], v[{GY+4*s}:{GY+4*s+3}], v[{PQ+4*s}:{PQ+4*s+3}], {c}")
    for s in range(3):
        a.wait_ds(("gx", s))
        c = "0" if s == 0 else f"v[{DX}:{DX+15}]"
        a.e(f"v_mfma_f32_32x32x16_bf16 v[{DX}:{DX+15}], v[{GX+4*s}:{GX+4*s+3}], v[{PQ+4*s}:{PQ+4*s+3}], {c}")
    a.e(f"s_add_u32 s{S_T}, s{S_LOFF}, s{S_OS}")
    r0, r1 = 232, 234
    a.e(f"v_add_f32 v{r0}, s{S_EPS2}, v{DY+8}\nv_add_f32 v{r1}, s{S_EPS2}, v{DY+9}")
    a.e(f"v_rcp_f32 v{r0}, v{r0}\nv_rcp_f32 v{r1}, v{r1}")
    OP = 236
    a.wait_vm(("poison", "o"))
    chaos(a, cfg, L.C_O, S_TB32)
    for (src, rr, dst, off) in ((DY, (r0, r1), OP + 8, 512), (DX, (r0, r0), OP, 0), (DX + 8, (r1, r1), OP + 4, 768)):
        for p in range(4):
            r = rr[p >> 1]
            a.e(f"v_pk_mul_f32 v[{src+2*p}:{src+2*p+1}], v[{src+2*p}:{src+2*p+1}], v[{r}:{r+1}] op_sel_hi:[1,0]")
        for p in range(4):
            a.e(f"v_cvt_pk_bf16_f32 v{dst+p}, v{src+2*p}, v{src+2*p+1}")
        if off == 512:
            a.e("s_mov_b32 exec_hi, 0")
        a.vm(f"buffer_store_dwordx4 v[{dst}:{dst+3}], v{V_OST}, s[{SRD_WS}:{SRD_WS+3}], s{S_T} offen offset:{off} sc1", "ost")
        if off == 512:
            a.e("s_mov_b64 exec, -1")
    stamp(a, "o stored", cfg)
    if not early:
        ring.steps(cfg.get("dmao", 8))
        a.wait_vm("ost")
    esignal(a, cfg, L.C_O, S_TB32)
    stamp(a, "o sig", cfg, 3)
    n = ring.steps(limit=P2S + 100)
    n1, n2 = cfg.get("eo0" if first else "eo", (2, 4))
    for k in range(n1):
        ring.park(PK3A) if ring.park_ready(PK3A) else ring.any_step((PK3,))
    gap_issue(a, cfg, L.C_O, S_TB32P)
    for k in range(n2):
        ring.park(PK3A) if ring.park_ready(PK3A) else ring.any_step((PK3,))
    cfg["_info"].append(f"P1({first}) end: ring.next {ring.next} late parks {n}")
    ring.cons = P2S
    a.wait_vm(lambda t: isdma(t) and t[1] < P2S + 100)
    stamp(a, "o signalled", cfg, 4)


def next_layer(a):
    a.e(f"s_mov_b32 s{S_LAY}, 1\ns_mov_b32 s{S_LOFF}, {L.LBASE + L.LSTR}\ns_mov_b32 s{S_COFF}, {L.CNT_PER_LAYER * L.CNT_STRIDE}")


def out_epilogue(a, ring, cfg, xconst, stconst, kind, nextlayer, final_branch):
    P = V_TMP
    a.e(f"s_add_u32 s{S_T}, s{S_LOFF}, s{S_XS}\ns_add_u32 s{S_T}, s{S_T}, {xconst}")
    for p in range(10):
        a.e(f"v_cvt_pk_bf16_f32 v{P+p}, v{V_RES+2*p}, v{V_RES+2*p+1}")
    if final_branch:
        cfg["_final"] = (list(cfg["_pend"]), cfg["_k"][0])
        a.e(f"s_cmp_eq_u32 s{S_LAY}, 1\ns_cbranch_scc1 L_final")
    early = cfg.get("early", True)
    a.wait_vm(("poison", "x2" if nextlayer else "x1"))
    chaos(a, cfg, kind, S_TB32P, nextlayer)
    a.vm(f"buffer_store_dwordx4 v[{P}:{P+3}], v{V_XS1}, s[{SRD_WS}:{SRD_WS+3}], s{S_T} offen sc1", "xst")
    a.vm(f"buffer_store_dwordx4 v[{P+4}:{P+7}], v{V_XS1}, s[{SRD_WS}:{SRD_WS+3}], s{S_T} offen offset:2048 sc1", "xst")
    a.vm(f"buffer_store_dwordx2 v[{P+8}:{P+9}], v{V_XS2}, s[{SRD_WS}:{SRD_WS+3}], s{S_T} offen sc1", "xst")
    if early:
        esignal(a, cfg, kind, S_TB32P, nextlayer)
        if cfg.get("ebar", True):
            ring.barrier(0)
    f = []
    for p in range(10):
        f += lines(a, f"v_lshlrev_b32 v{V_RES+2*p}, 16, v{P+p}\nv_and_b32 v{V_RES+2*p+1}, 0xffff0000, v{P+p}")
    t = V_TMP + 16
    f += lines(a, f"v_pk_add_f32 v[{t}:{t+1}], v[{V_RES}:{V_RES+1}], v[{V_RES+2}:{V_RES+3}]")
    f += lines(a, f"v_pk_add_f32 v[{t+2}:{t+3}], v[{V_RES+4}:{V_RES+5}], v[{V_RES+6}:{V_RES+7}]")
    for p in range(4, 10):
        d = t + 2 * (p & 1)
        f += lines(a, f"v_pk_add_f32 v[{d}:{d+1}], v[{d}:{d+1}], v[{V_RES+2*p}:{V_RES+2*p+1}]")
    f += lines(a, f"v_pk_add_f32 v[{t}:{t+1}], v[{t}:{t+1}], v[{t+2}:{t+3}]\nv_add_f32 v{t}, v{t}, v{t+1}")

    def red(x, y):
        return lines(a, f"v_mov_b32 v{y}, v{x}\nv_permlane16_swap_b32 v{x}, v{y}\nv_add_f32 v{x}, v{x}, v{y}\n"
                        f"v_mov_b32 v{y}, v{x}\nv_permlane32_swap_b32 v{x}, v{y}\nv_add_f32 v{x}, v{x}, v{y}")
    f += red(t, t + 1)
    f += lines(a, f"v_mul_f32 v{t}, {f32bits(1.0/80)}, v{t}")
    q = t + 4
    for p in range(10):
        d = t + 8 + 2 * (p & 3)
        f += lines(a, f"v_pk_add_f32 v[{d}:{d+1}], v[{V_RES+2*p}:{V_RES+2*p+1}], v[{t}:{t+1}] op_sel_hi:[1,0] neg_lo:[0,1] neg_hi:[0,1]")
        qq = q + 2 * (p & 1)
        if p < 2:
            f += lines(a, f"v_pk_mul_f32 v[{qq}:{qq+1}], v[{d}:{d+1}], v[{d}:{d+1}]")
        else:
            f += lines(a, f"v_pk_fma_f32 v[{qq}:{qq+1}], v[{d}:{d+1}], v[{d}:{d+1}], v[{qq}:{qq+1}]")
    f += lines(a, f"v_pk_add_f32 v[{q}:{q+1}], v[{q}:{q+1}], v[{q+2}:{q+3}]\nv_add_f32 v{t+1}, v{q}, v{q+1}")
    f += red(t + 1, t + 2)
    for k, g in enumerate(f):
        g()
        p_ = ring.plan()
        if p_ and k % (cfg.get("fl_every", 4) if p_[0] == "flush" else cfg.get("epi_every", 10)) == 2:
            ring.steps(1)
        if not nextlayer and k % cfg.get("epi_every", 10) == 5:
            for pk in (PK3A, PK3):
                if ring.park_ready(pk):
                    ring.park(pk)
                    break
        if early and k == cfg.get("xpoll", 40):
            if nextlayer:
                a.e(f"s_mov_b32 s{S_COFF}, {L.CNT_PER_LAYER * L.CNT_STRIDE}")
            gap_issue(a, cfg, kind, S_TB32)
            if nextlayer:
                a.e(f"s_mov_b32 s{S_COFF}, 0")
    a.e(f"s_add_u32 s{S_T}, s{S_LOFF}, s{S_STS}\ns_add_u32 s{S_T}, s{S_T}, {stconst}")
    a.e("s_mov_b64 exec, 0xffff")
    a.vm(f"buffer_store_dwordx2 v[{t}:{t+1}], v{V_STS}, s[{SRD_WS}:{SRD_WS+3}], s{S_T} offen sc1", "sst")
    a.e("s_mov_b64 exec, -1")
    key = "x2" if nextlayer else "x1"
    if early:
        if not cfg.get("ebar", True):
            ring.barrier(0)
        n1, n2 = cfg.get("e" + key, (0, 8) if nextlayer else (0, INF))
        ring.steps(n1)
        stamp(a, key + " epi end", cfg, 1)
        cnt_off(a, S_T + 9, kind, S_TB32P, nextlayer)
        if nextlayer:
            ring.steps(n2)
        else:
            while ring.any_step((PK3A, PK3), PK3):
                pass
        while ring.open:
            ring.step()
        if nextlayer:
            next_layer(a)
    else:
        ring.steps(cfg.get("dma_after_st", 2))
        a.wait_vm("xst")
        signal(a, kind, S_TB32P, nextlayer)
        ring.barrier(0)
        n1, n2, n3 = cfg.get("gap" + key, (5, 3, 4) if nextlayer else (5, 3, INF))
        ring.steps(n1)
        a.wait_vm("sst")
        signal(a, kind, S_TB32P, nextlayer, S_C256)
        ring.steps(n2)
        stamp(a, key + " epi end", cfg, 1)
        if nextlayer:
            next_layer(a)
        gap_issue(a, cfg, kind, S_TB32)
        ring.steps(n3)
        while ring.open:
            ring.step()
    cfg["_info"].append(f"epilogue end: ring.next {ring.next}")


def mk16(a, pos, t, s, reg, tag):
    def f(b):
        c = V_RES + 4 * t
        a.e(f"v_mfma_f32_16x16x32_bf16 v[{c}:{c+3}], v[{b}:{b+3}], a[{reg}:{reg+3}], v[{c}:{c+3}]")
    return (pos, (tag, s), f)


class ParkFill:
    def __init__(self, ring, early, order, limit):
        self.ring, self.early, self.order, self.limit = ring, early, order, limit

    def take(self, sc, g, kinds):
        if "vm" not in kinds or g < self.early or not sc.vm_ok(g):
            return
        r = self.ring
        if r.park_ready(PK3A):
            r.park(PK3A)
        elif not r.any_step(self.order, self.limit):
            return
        sc.use(3, "vm", g)

    def done(self):
        return True

    def flush(self):
        pass


def phase2(a, ring, cfg, first):
    AW = cfg.get("aw2", 12)
    setup = a_setup(a, S_OA, L.O)
    mf = [mk16(a, P2S + 5 * s + t, t, s, 4 * s, "A") for s in range(20) for t in range(5)]
    al = Seq([((lambda s=s: aload(a, s, setup)), 2, 4 * (s - AW), "vm") for s in range(AW, 20)], force=True, maxper=1)
    sc = Sched([al, ParkFill(ring, cfg.get("dma2", 34), (PK3,), PK3A if PK3A in ring.parks else INF)], 2, cfg.get("per2", 4.5))

    def hook():
        gap_check(a, cfg)
        stamp(a, "P2 polled", cfg)
        for s in range(AW):
            aload(a, s, setup)
    bars = {0: P2S + 100}
    if cfg.get("b2", 0):
        bars[cfg.get("b2", 0)] = 0
    ver = Verifier(a, cfg, S_OA, L.O) if cfg.get("early", True) else None
    run_pass(a, ring, mf, sc, bars, cfg.get("d16", 15), 5, hook, V_ACC, ver=ver)
    stamp(a, "P2 done", cfg)
    out_epilogue(a, ring, cfg, L.X1, L.ST1, L.C_X1, False, False)


def silu_ops(a):
    NRL, VA = V_ST + 2, V_ST + 4
    ops = []
    last_e = {}
    k = 0
    for t in range(6):
        early = L.fragpos(t, 40) + 2
        acc, dst = T32[t], V_TMP + 4 * t
        cv = []
        for r in range(8):
            g, u = acc + r, acc + 8 + r
            e = V_TMP + 24 + k % 16
            k += 1
            b = len(ops)
            ops.append((f"v_mul_f32 v{e}, v{g}, v{NRL}", [last_e[e]] if e in last_e else [], False, early))
            ops.append((f"v_exp_f32 v{e}, v{e}", [b], True, early))
            ops.append((f"v_mul_f32 v{g}, v{g}, v{u}", [b], False, early))
            ops.append((f"v_fma_f32 v{e}, v{e}, v{VA}, v{VA}", [b + 1], False, early))
            ops.append((f"v_rcp_f32 v{e}, v{e}", [b + 3], True, early))
            ops.append((f"v_mul_f32 v{g}, v{g}, v{e}", [b + 2, b + 4], False, early))
            last_e[e] = b + 5
            if r & 1:
                ops.append((f"v_cvt_pk_bf16_f32 v{dst + (r >> 1)}, v{g-1}, v{g}", [b - 1, b + 5], False, early))
                cv.append(len(ops) - 1)

        def st(d=dst, t=t):
            a.e(f"s_add_u32 s{S_T+1}, s{S_LOFF}, s{S_HS[t >> 1]}")
            a.vm(f"buffer_store_dwordx4 v[{d}:{d+3}], v{V_HST}, s[{SRD_WS}:{SRD_WS+3}], s{S_T+1} offen offset:{512*(t & 1)} sc1", ("hst", t))
        ops.append((st, cv, False, early))
    return ops


A4REG = lambda s: (160 + 4 * s) if s < 24 else 4 * (s - 24)


def phase34(a, ring, cfg):
    AW = cfg.get("aw", 10)
    setup = a_setup(a, S_XA, L.X1)
    setup4 = a_setup(a, S_HA, L.H)
    mf = panel(a, P3S, range(6), True)
    ap = cfg.get("aper", 2.3)
    al = Seq([((lambda s=s: aload(a, s, setup)), 2, int(ap * (s - AW)), "vm") for s in range(AW, 40)], force=True, maxper=1)
    tail = lines(a, f"v_mul_f32 v{V_ST+2}, {f32bits(-LOG2E)}, v{V_ST}\nv_mov_b32 v{V_ST+4}, v{P1_TT+2}")
    d = Dag(a, silu_ops(a))
    d.keep = True

    def sig(inst):
        def f():
            stores = [k for k, o in enumerate(d.ops) if callable(o[0])]
            assert stores[2 * inst] in d.at and stores[2 * inst + 1] in d.at, ("h signal before its stores", inst)
            a.wait_vm(lambda t: t in (("hst", 2 * inst), ("hst", 2 * inst + 1)))
            signal(a, L.C_H0 + inst, S_TB32)
        return f

    def a4(s):
        def f():
            if s < 24:
                assert not any(isfl(t) for t in flat_tags(a.lgq)) and (ring.next >= P4S or PK3 not in ring.parks), "parked registers still in use"
            aload(a, s, setup4, A4REG(s), "H")
        return f
    h0s, h0p, h0c = cfg.get("h0", (166, 190, 212))
    h1s, h1p = cfg.get("h1", (212, 236))
    sg = Seq([(sig(0), 5, h0s, "s"), (lambda: poll_issue(a, L.C_H0, S_TB32P), 5, h0p, "s"),
              (lambda: poll_check(a), 6, h0c, "s"), (sig(1), 5, h1s, "s")], force=True)
    a4p = cfg.get("a4per", 2.6)
    n_early = min(16, int((246 - h0c - 1) / a4p) + 1)
    a4s = Seq([(a4(s), 2, h0c + 1 + int(a4p * s), "vm") for s in range(n_early)], force=True, maxper=1)
    pe = cfg.get("per3e", 3.5)
    period = lambda g: pe if 102 <= g < cfg.get("e0end", 140) else cfg.get("per3", 2.3)
    early = cfg.get("early", True)
    ver = Verifier(a, cfg, S_XA, L.X1, lambda s_: s_ % 5 == 4) if early else None
    pz = Seq(poison_items(a, "x2", cfg.get("pz3", 192)) if early else [], force=True, maxper=1)
    sc = Sched([al, sg, a4s, pz, d] + stats_seq(a, cfg, L.C_X1, L.ST1, tail) + [RingFill(ring, 0)], 6, period, cfg.get("fl3", 3))
    bars = {0: P3S + 48}
    for b in range(24, 246, cfg.get("b3", 24)):
        bars[b] = min(P3S + b + cfg.get("b3", 24), P3S + 246)
    st = {idx: (lambda n=n: stamp(a, f"P3.{n}", cfg, 2)) for n, idx in enumerate((0, 40, 80, 122, 163, 204))}

    assert PK3A not in ring.parks or ring.next >= ring.parks[PK3A][0]

    def hook():
        gap_check(a, cfg)
        stamp(a, "P3 polled", cfg)
        for s in range(AW):
            aload(a, s, setup)
    run_pass(a, ring, mf, sc, bars, cfg.get("d32", 9), G32, hook, stamps=st, ver=ver)
    stores = [d.at.get(k) for k, o in enumerate(d.ops) if callable(o[0])]
    cfg["_info"].append(f"P3: h stores at {stores} ring.next {ring.next - P4S} early A4 {n_early} late {getattr(ring, 'late', 0)}")
    stamp(a, "P3 done", cfg)
    ring.cons = P4S
    poll_issue(a, L.C_H1, S_TB32P)
    d.off = 250
    AW4 = max(n_early, min(16, cfg.get("aw4", 16)))
    sc0 = Sched([Seq([(a4(s), 2, 2 * (s - n_early), "vm") for s in range(n_early, AW4)], force=True, maxper=1), d, RingFill(ring, 0, TOT)], 8, 2.3)
    g = 0
    while not (sc0.streams[0].done() and d.done()):
        sc0.gap(g, 0)
        g += 1
    stamp(a, "h epi end", cfg)
    mf = [mk16(a, P4S + 5 * s + t, t, s, A4REG(s), "H") for s in range(48) for t in range(5)]
    lead = cfg.get("lead4", 12)
    it = []
    for s in range(AW4, 48):
        k = max(5 * (s - lead), cfg.get("h1c", 0) + 4 * (s - 16))
        if s in (16, 32):
            it.append((lambda: poll_check(a), 6, k, "s"))
        it.append((a4(s), 2, k, "vm"))
    k32 = max(5 * (32 - lead), cfg.get("h1c", 0) + 64)
    sg = Seq([(sig(2), 5, cfg.get("h2sig", 30), "s"),
              (lambda: poll_issue(a, L.C_H2, S_TB32P), 5, k32 - cfg.get("plead", 35), "s")], force=True)
    sc = Sched([Seq(it, force=True, maxper=2), sg, RingFill(ring, 0, TOT), RingFill(ring, cfg.get("nx4", 170))], 2, cfg.get("per4", 2.5), cfg.get("fl4", 4))
    bars = {}
    for b in range(0, 240, 30):
        bars[b] = min(P4S + b + 30, P4S + 240)
    st = {idx: (lambda n=n: stamp(a, f"P4.{n}", cfg, 2)) for n, idx in enumerate((0, 40, 80, 120, 160, 200))}
    run_pass(a, ring, mf, sc, bars, cfg.get("d16", 15), 5, None, V_ACC, stamps=st)
    cfg["_info"].append(f"P4: ring.next {ring.next - TOT} late {getattr(ring, 'late', 0)}")
    stamp(a, "P4 done", cfg)
    out_epilogue(a, ring, cfg, L.LSTR + L.X, L.LSTR + L.ST, L.C_X, True, True)


def merge_q(x, y):
    flat = lambda t: set(t) if isinstance(t, frozenset) else {t}
    n = min(len(x), len(y))
    out = [flat(x[len(x) - n + k]) | flat(y[len(y) - n + k]) for k in range(n)]
    extra = set()
    for t in x[:len(x) - n] + y[:len(y) - n]:
        extra |= flat(t)
    return ([frozenset(extra)] if extra else []) + [frozenset(o) for o in out]


def gen_main(name="main_kernel", cfg=None):
    cfg = cfg or {}
    a = Asm()
    parks = {}
    if cfg.get("park", False):
        parks[PK3] = (PK3 + 4 * cfg.get("npk", 23), 160)
    if cfg.get("parka", True):
        parks[PK3A] = (PK3A + 4 * cfg.get("npka", 20), 80)
    ring = Ring(a, parks)
    cfg["_info"] = []
    cfg["_stamps"] = []
    cfg["_pend"] = []
    cfg["_cold"] = []
    cfg["_spun"] = False
    cfg["_k"] = [0]
    a.e(f".globl {name}\n.p2align 8\n.type {name},@function\n{name}:")
    a.e("s_cmp_ge_u32 s2, 256\ns_cbranch_scc1 L_end")
    fuse = cfg.get("fuse", True)
    if fuse and cfg.get("ipf", 1):
        a.e(f"s_getpc_b64 s[46:47]\nv_lshlrev_b32 v64, 6, v0\nv_mov_b32 v67, s47\nv_add_co_u32 v66, vcc, s46, v64\nv_addc_co_u32 v67, vcc, 0, v67, vcc")
        if cfg.get("ipf", 1) == 2:
            a.e("s_and_b32 s48, s2, 0x18\ns_cbranch_scc1 L_noipf")
        a.e("global_load_dword v150, v[66:67], off\nL_noipf:")
    a.e(f"s_load_dwordx2 s[44:45], s[0:1], 56\ns_load_dwordx2 s[12:13], s[0:1], 72\ns_load_dwordx2 s[68:69], s[0:1], 64")
    a.e(f"v_and_b32 v{V_LANE}, 63, v0\nv_lshlrev_b32 v{V_L16}, 4, v{V_LANE}\nv_lshlrev_b32 v{V_T16}, 4, v0")
    a.e(f"v_lshrrev_b32 v30, 6, v0\nv_readfirstlane_b32 s{S_W}, v30")
    a.e("s_waitcnt lgkmcnt(0)")
    for d in (SRD_WS, SRD_NX):
        a.e(f"s_mov_b32 s{d}, s12\ns_and_b32 s{d+1}, s13, 0xffff\ns_mov_b32 s{d+2}, {L.WS_USED}\ns_mov_b32 s{d+3}, 0x20000")
    a.e(f"s_mov_b32 s8, s44\ns_and_b32 s9, s45, 0xffff\ns_mov_b32 s10, {2048*1280}\ns_mov_b32 s11, 0x20000")
    a.e(f"s_mov_b32 s{S_LAY}, 0\ns_mov_b32 s{S_LOFF}, {L.LBASE}\ns_mov_b32 s{S_COFF}, 0")
    if cfg.get("timing"):
        a.e(f"s_add_u32 s72, s12, {cfg['timing']}\ns_addc_u32 s73, s13, 0\ns_and_b32 s73, s73, 0xffff\ns_mov_b32 s74, {1024*512}\ns_mov_b32 s75, 0x20000")
        a.e(f"s_lshl_b32 s{S_TS+2}, s2, 2\ns_add_u32 s{S_TS+2}, s{S_TS+2}, s{S_W}\ns_lshl_b32 s{S_TS+2}, s{S_TS+2}, 9\nv_lshlrev_b32 v30, 2, v{V_LANE}\nv_mov_b32 v31, 0\ns_mov_b32 s87, 0")
    stamp(a, "start", cfg, 0)
    if fuse:
        ring.gate, ring.wflag = (SCR if cfg.get("onesig", True) else 96), "sc1"
        S0.DIAG = bool(cfg.get("timing") and cfg.get("s0diag"))
        S0.XSIG = cfg.get("xsig", 16)
        S0.EARLY0, S0.ONESIG = cfg.get("early0", False), cfg.get("onesig", True)
        S0.TOUCH = cfg.get("touch", 0)
        S0.part1(a, name)
    rb = cfg.get("xr", 2)
    cb = rb - 1
    a.e(f"s_and_b32 s46, s2, 7\ns_lshr_b32 s46, s46, {cb}\ns_lshl_b32 s46, s46, {rb}\ns_lshr_b32 s47, s2, 3\ns_and_b32 s47, s47, {(1 << rb) - 1}\ns_add_u32 s{S_I}, s46, s47")
    a.e(f"s_and_b32 s46, s2, {(1 << cb) - 1}\ns_lshl_b32 s46, s46, {5 - rb}\ns_lshr_b32 s47, s2, {3 + rb}\ns_add_u32 s{S_J}, s46, s47")
    a.e(f"s_lshl_b32 s{S_W1K}, s{S_W}, 10")
    a.e(f"s_lshr_b32 s48, s{S_J}, 1\ns_and_b32 s49, s{S_J}, 1")
    a.e(f"s_mul_i32 s20, s{S_J}, {L.WQKV_STR}\ns_add_u32 s20, s20, {L.WQKV}")
    a.e(f"s_mul_i32 s21, s48, {L.WO_STR}\ns_add_u32 s21, s21, {L.WO}")
    a.e(f"s_mul_i32 s22, s{S_J}, {L.W13_STR}\ns_add_u32 s22, s22, {L.W13}")
    a.e(f"s_mul_i32 s23, s48, {L.W2_STR}\ns_add_u32 s23, s23, {L.W2}")
    a.e(f"s_lshl_b32 s{S_CW}, s48, 2\ns_add_u32 s{S_CW}, s{S_CW}, s{S_W}")
    ring.freed = 0
    a.e(f"s_lshl_b32 s{S_TB32}, s{S_I}, 2\ns_add_u32 s{S_TB32}, s{S_TB32}, s{S_W}")
    a.e(f"s_mul_i32 s{S_XA}, s{S_TB32}, 40960\ns_lshl_b32 s{S_STA}, s{S_TB32}, 11")
    setup0 = a_setup(a, S_XA, L.X)
    a.e(f"s_lshl_b32 s{S_WG[8]}, s{S_W}, 11\ns_mul_i32 s{S_WG[12]}, s{S_W}, 3072\ns_lshl_b32 s{S_WG[16]}, s{S_W}, 12")

    def late_consts():
        for g_ in (8, 12, 16):
            a.e(f"v_add_u32 v{V_TG[g_]}, s{S_WG[g_]}, v{V_L16}")
        a.e(f"v_add_u32 v{V_T16B}, 0x10000, v{V_T16}\nv_add_u32 v{V_T16C}, 0x20000, v{V_T16}\nv_lshlrev_b32 v{V_T8}, 3, v0")

    def first_loads():
        ring.maxg = 12
        for blk in range(cfg.get("la0", 3)):
            for k in range(3):
                ring.step(12 * blk + 12)
            for s_ in range(4 * blk, 4 * blk + 4):
                aload(a, s_, setup0)
                cfg["_a0"] = s_ + 1
    if not fuse:
        late_consts()
        first_loads()
    a.e(f"s_lshl_b32 s{S_TB16}, s{S_I}, 3\ns_lshl_b32 s46, s49, 2\ns_add_u32 s{S_TB16}, s{S_TB16}, s46\ns_add_u32 s{S_TB16}, s{S_TB16}, s{S_W}")
    a.e(f"s_lshr_b32 s{S_TB32P}, s{S_TB16}, 1")
    a.e(f"s_mul_i32 s{S_OA}, s{S_TB16}, 20480\ns_mul_i32 s{S_HA}, s{S_TB16}, 49152")
    a.e(f"s_and_b32 s50, s{S_TB16}, 1")
    a.e(f"s_mul_i32 s{S_XS}, s{S_TB32P}, 40960\ns_mul_i32 s46, s48, 5120\ns_add_u32 s{S_XS}, s{S_XS}, s46\ns_lshl_b32 s46, s50, 8\ns_add_u32 s{S_XS}, s{S_XS}, s46")
    a.e(f"s_lshl_b32 s{S_STS}, s{S_TB32P}, 11\ns_lshl_b32 s46, s48, 8\ns_add_u32 s{S_STS}, s{S_STS}, s46\ns_lshl_b32 s46, s50, 7\ns_add_u32 s{S_STS}, s{S_STS}, s46")
    a.e(f"s_mul_i32 s{S_OS}, s{S_TB32}, 40960\ns_mul_i32 s46, s{S_J}, 1280\ns_add_u32 s{S_OS}, s{S_OS}, s46\ns_add_u32 s{S_OS}, s{S_OS}, {L.O}")
    a.e(f"s_mul_i32 s47, s{S_TB32}, {2*49152}\ns_add_u32 s47, s47, {L.H}")
    a.e(f"s_lshl_b32 s46, s{S_J}, 10\ns_add_u32 s{S_HS[0]}, s47, s46")
    a.e(f"s_add_u32 s{S_HS[1]}, s{S_HS[0]}, {32*512}\ns_add_u32 s{S_HS[2]}, s{S_HS[0]}, {64*512}")
    a.e(f"s_mul_i32 s{S_KVR}, s{S_J}, {16*L.KV_STR}\ns_add_u32 s{S_KVR}, s{S_KVR}, {L.KV}")
    a.e(f"s_mul_i32 s46, s{S_I}, {L.KV_STR}\ns_add_u32 s{S_KVS}, s{S_KVR}, s46")
    a.e(f"s_mul_i32 s{S_OUT}, s{S_TB16}, {16*1280}\ns_mul_i32 s46, s48, 160\ns_add_u32 s{S_OUT}, s{S_OUT}, s46")
    a.e(f"s_lshl_b32 s{S_KVC}, s{S_J}, 2\ns_add_u32 s{S_KVC}, s{S_KVC}, s{S_W}")
    a.e(f"s_mov_b32 s{S_ONE}, 1\ns_mov_b32 s{S_C256}, 256\ns_mov_b32 s{S_LO32}, -1\ns_mov_b32 s{S_LO32+1}, 0")
    for r_ in range(4):
        a.e(f"v_mov_b32 v{V_POI+r_}, -1")
    a.e(f"s_mov_b32 s{S_EPS2}, {f32bits(1e-6)}\ns_mov_b32 s{S_EPS2+1}, {f32bits(1e-6)}\ns_mov_b32 s{S_ONE2}, 1.0\ns_mov_b32 s{S_ONE2+1}, 1.0")
    a.e(f"v_mov_b32 v216, 210\nv_cmp_gt_u32 s[{S_M210}:{S_M210+1}], v216, v0")
    tok, hf, t16, g, x, y, z = 208, 209, 210, 211, 212, 213, 214
    ln = V_LANE
    a.e(f"v_add_u32 v{V_L16B}, 0x10000, v{V_L16}\nv_add_u32 v{V_L16C}, 0x20000, v{V_L16}")
    a.e(f"v_and_b32 v{tok}, 31, v{ln}\nv_lshrrev_b32 v{hf}, 5, v{ln}\nv_and_b32 v{t16}, 15, v{ln}\nv_lshrrev_b32 v{g}, 4, v{ln}")
    a.e(f"v_lshlrev_b32 v{x}, 10, v{hf}\nv_lshl_add_u32 v{V_STL}, v{tok}, 3, v{x}")
    a.e(f"v_lshlrev_b32 v{x}, 8, v{hf}\nv_lshl_add_u32 v{x}, v{t16}, 4, v{x}\nv_bfe_u32 v{y}, v{ln}, 4, 1")
    a.e(f"v_mul_u32_u24 v{z}, 20480, v{y}\nv_add_u32 v{V_OST}, v{x}, v{z}")
    a.e(f"v_mul_u32_u24 v{z}, 49152, v{y}\nv_add_u32 v{V_HST}, v{x}, v{z}")
    a.e(f"v_lshlrev_b32 v{x}, 9, v{g}\nv_lshl_add_u32 v{V_XS1}, v{t16}, 4, v{x}")
    a.e(f"v_lshlrev_b32 v{x}, 9, v{hf}\nv_lshl_add_u32 v{x}, v{t16}, 4, v{x}\nv_lshl_add_u32 v{x}, v{y}, 3, v{x}\nv_add_u32 v{V_XS2}, 4096, v{x}")
    a.e(f"v_mul_u32_u24 v{x}, 1280, v{t16}\nv_lshl_add_u32 v{V_OUT1}, v{g}, 4, v{x}\nv_lshl_add_u32 v{x}, v{g}, 3, v{x}\nv_add_u32 v{V_OUT2}, 128, v{x}")
    a.e(f"v_lshlrev_b32 v{V_STS}, 3, v{ln}")
    P = 128
    if not fuse:
        res_load(a)
        stats_load(a, L.ST)
    a.e(f"s_mul_i32 s46, s{S_W}, {GC_STR}\ns_add_u32 s46, s46, {GC_OFF}")
    a.e(f"v_mul_u32_u24 v{x}, 80, v{tok}\nv_lshl_add_u32 v{x}, v{hf}, 4, v{x}\nv_add_u32 v{x}, s46, v{x}")
    a.e(f"v_subrev_u32 v{y}, 80, v{x}\nv_cmp_le_u32 vcc, 20, v{tok}\nv_cndmask_b32 v{V_G0}, v{x}, v{y}, vcc")
    a.e(f"v_add_u32 v{y}, {23*80}, v{x}\nv_add_u32 v{x}, {16*80}, v{x}\nv_cmp_gt_u32 vcc, 16, v{tok}\nv_cndmask_b32 v{V_G1}, v{x}, v{y}, vcc")
    a.e(f"s_lshl_b32 s46, s{S_W}, 5\nv_add_u32 v215, s46, v{tok}\nv_cmp_gt_u32 s[{S_MKV}:{S_MKV+1}], 0x69, v215" .replace("0x69, v215", "v216, v215").replace("v_cmp_gt", "v_mov_b32 v216, 105\nv_cmp_gt"))
    a.e(f"v_mul_u32_u24 v{x}, {L.KV_STR}, v{hf}\nv_lshl_add_u32 v{V_KVL}, v215, 4, v{x}\nv_lshl_add_u32 v215, v215, 1, v{hf}")
    a.e(f"v_mul_u32_u24 v{x}, 205, v215\nv_lshrrev_b32 v{x}, 10, v{x}\nv_mul_u32_u24 v{y}, 5, v{x}\nv_sub_u32 v{y}, v215, v{y}")
    a.e(f"v_mul_u32_u24 v{z}, 112, v{x}\nv_lshl_add_u32 v{z}, v{y}, 3, v{z}\nv_add_u32 v{z}, {GB_OFF}, v{z}\nv_add_u32 v{y}, 40, v{z}")
    a.e(f"v_cmp_le_u32 vcc, 20, v{x}\nv_cndmask_b32 v{y}, v{z}, v{y}, vcc\nv_cmp_eq_u32 vcc, 40, v{x}\nv_cndmask_b32 v{V_GBW}, v{y}, v{z}, vcc")
    a.e(f"v_lshrrev_b32 v{x}, 4, v{tok}\nv_mul_u32_u24 v{x}, 24, v{x}\nv_bfe_u32 v{y}, v{tok}, 2, 1\nv_lshl_add_u32 v{x}, v{y}, 3, v{x}")
    a.e(f"v_bfe_u32 v{y}, v{tok}, 3, 1\nv_lshl_add_u32 v{x}, v{y}, 2, v{x}\nv_and_b32 v{z}, 3, v{tok}\nv_add_u32 v{x}, v{x}, v{z}")
    a.e(f"v_mul_u32_u24 v{x}, 112, v{x}\nv_lshl_add_u32 v{x}, v{hf}, 4, v{x}\nv_add_u32 v{V_GBX}, {GB_OFF}, v{x}")
    a.e(f"v_lshl_add_u32 v{x}, v{y}, 2, v{z}\nv_add_u32 v{x}, 16, v{x}\nv_mov_b32 v{y}, 42")
    a.e(f"v_and_b32 v215, 0x14, v{tok}\nv_cmp_eq_u32 vcc, 0, v215\nv_cndmask_b32 v{y}, v{y}, v{x}, vcc")
    a.e(f"v_add_u32 v{x}, 40, v{z}\nv_and_b32 v215, 0x1a, v{tok}\nv_cmp_eq_u32 vcc, 16, v215\nv_cndmask_b32 v{y}, v{y}, v{x}, vcc")
    a.e(f"v_mul_u32_u24 v{x}, 112, v{y}\nv_lshl_add_u32 v{x}, v{hf}, 4, v{x}\nv_add_u32 v{V_GBY}, {GB_OFF}, v{x}")
    a.e(f"s_mul_i32 s46, s{S_W}, 2304\ns_add_u32 s46, s46, {QT_OFF}\ns_mul_i32 s47, s{S_W}, 576\ns_add_u32 s47, s47, {Q1_OFF}")
    a.e(f"v_mul_u32_u24 v{x}, 72, v{tok}\nv_lshl_add_u32 v{x}, v{hf}, 3, v{x}\nv_add_u32 v{V_QW3}, s46, v{x}")
    a.e(f"v_add_u32 v{x}, s47, v{x}\nv_subrev_u32 v{V_QW1}, {16*72}, v{x}")
    a.e(f"v_bfe_u32 v{x}, v{ln}, 2, 2\nv_mul_u32_u24 v{x}, 72, v{x}\nv_bfe_u32 v{y}, v{ln}, 4, 1\nv_lshl_add_u32 v{x}, v{y}, 5, v{x}")
    a.e(f"v_and_b32 v{y}, 3, v{ln}\nv_lshl_add_u32 v{x}, v{y}, 3, v{x}\nv_add_u32 v{V_QR2}, s47, v{x}")
    a.e(f"v_mul_u32_u24 v{y}, {8*72}, v{hf}\nv_add_u32 v{x}, v{x}, v{y}\nv_add_u32 v{V_QR}, s46, v{x}")
    a.e(f"v_mov_b32 v{V_C2}, 0\nv_mov_b32 v{V_C3}, 0\nv_mov_b32 v{V_LO}, 0\nv_mov_b32 v{V_C2+1}, 0\nv_mov_b32 v{V_C3+1}, 0")
    set_exec(a, 0x00FF00FF, 0x00FF00FF)
    a.e(f"v_mov_b32 v{V_C3}, s{S_EPS2}\nv_mov_b32 v{V_LO}, s{S_EPS2}")
    set_exec(a, 0x0000FF00, 0x0000FF00)
    a.e(f"v_mov_b32 v{V_C2}, 0xff800000\nv_mov_b32 v{V_LO}, 0xff800000")
    a.e("s_mov_b64 exec, -1")
    a.e(f"s_lshl_b32 s46, s{S_W}, 8\ns_add_u32 s46, s46, {RS_OFF}")
    a.e(f"v_lshlrev_b32 v{x}, 2, v{ln}\nv_add_u32 v{V_RSW}, s46, v{x}\nv_lshlrev_b32 v{x}, 4, v{hf}\nv_add_u32 v{V_RSR}, s46, v{x}")
    if fuse:
        stamp(a, "setup done", cfg)
        S0.part2(a, SPIN)
        stamp(a, "packed", cfg)
        d = SRD_NX
        a.e(f"s_mov_b32 s{d}, s12\ns_and_b32 s{d+1}, s13, 0xffff\ns_mov_b32 s{d+2}, {L.WS_USED}\ns_mov_b32 s{d+3}, 0x20000")
        poll_issue(a, L.C_PQKV, S_KVC)
        poll2_a(a, L.C_X, S_TB32)
        a.e("s_nop 1")
        late_consts()
        poll_check(a, 0, 60)
        stamp(a, "qkv polled", cfg)
        poll2_check(a, cfg, 4)
        stamp(a, "pk polled", cfg)
        first_loads()
    stamp(a, "P1 polled", cfg)
    phase1(a, ring, cfg, True)
    phase2(a, ring, cfg, True)
    a.e("s_branch L_join")
    j0 = (ring.next, ring.cons, ring.freed, dict(ring.parked), list(cfg["_pend"]), cfg["_k"][0])
    tags0 = list(a.vmq)
    lg0 = list(a.lgq)
    a.e("L_top:")
    cfg["_pend"][:], cfg["_k"][0] = cfg.get("_ptop", ([], 0))
    top = cfg.get("_top", ([("dma", p_) for p_ in range(0, RING, 4)], RING))
    a.vmq = list(top[0])
    a.lgq = []
    ring.next, ring.pub, ring.cons, ring.freed, ring.parked = top[1], 0, 0, 0, {}
    phase1(a, ring, cfg, False)
    phase2(a, ring, cfg, False)
    assert j0 == (ring.next, ring.cons, ring.freed, dict(ring.parked), list(cfg["_pend"]), cfg["_k"][0]), (j0, ring.next, ring.cons)
    a.e("L_join:")
    a.vmq = merge_q(tags0, a.vmq)
    a.lgq = merge_q(lg0, a.lgq)
    phase34(a, ring, cfg)
    assert ring.freed == TOT and not ring.open, (ring.next, ring.freed)
    bottom = ([((t[0], t[1] - TOT) if isdma(t) else "old") for t in a.vmq], ring.next - TOT)
    ptop = (list(cfg["_pend"]), cfg["_k"][0])
    if cfg.get("_top") != bottom or cfg.get("_ptop") != ptop:
        cfg = dict(cfg)
        cfg["_top"] = bottom
        cfg["_ptop"] = ptop
        return gen_main(name, cfg)
    import sys
    print("\n".join(cfg["_info"]), "nops", a.nops_added, file=sys.stderr)
    a.e(f"s_mov_b32 s{SRD_NX+2}, 0")
    a.e("s_branch L_top")
    a.e("L_final:")
    cfg["_pend"][:], cfg["_k"][0] = cfg["_final"]
    cfg["_slot"] = 1
    P = V_TMP
    a.e(f"buffer_store_dwordx4 v[{P}:{P+3}], v{V_OUT1}, s[8:11], s{S_OUT} offen {cfg.get('outflag', '')}")
    a.e(f"buffer_store_dwordx4 v[{P+4}:{P+7}], v{V_OUT1}, s[8:11], s{S_OUT} offen offset:64 {cfg.get('outflag', '')}")
    a.e(f"buffer_store_dwordx2 v[{P+8}:{P+9}], v{V_OUT2}, s[8:11], s{S_OUT} offen {cfg.get('outflag', '')}")
    stamp(a, "end", cfg, 0)
    a.e("s_waitcnt vmcnt(0)")
    a.e("L_end:\ns_endpgm")
    for blk in cfg["_cold"]:
        a.e(blk)
    t = a.text()
    if cfg.get("timing"):
        t += "; STAMPS " + "|".join(cfg["_stamps"]) + "\n"
    return t, kd(name, 512, 102, 256), a


if __name__ == "__main__":
    t, k, a = gen_main()
    print(t)
```
